```python
import torch

def _softmax(x, axis=-1):
    return torch.softmax(x, dim=axis)
def _gelu(x):
    return torch.nn.functional.gelu(x, approximate="tanh")
def _silu(x):
    return torch.nn.functional.silu(x)
def _sigmoid(x):
    return torch.sigmoid(x)
def _layernorm(x, axis=-1, eps=1e-5):
    m = x.mean(dim=axis, keepdim=True)
    v = x.var(dim=axis, keepdim=True, unbiased=False)
    return (x - m) / torch.sqrt(v + eps)
def _scatter_add(tgt, idx, src, axis=0):
    return tgt.clone().index_add_(axis, idx, src)
def _segment_sum(src, seg, n):
    out = torch.zeros((n,) + src.shape[1:], dtype=src.dtype)
    return out.index_add_(0, seg, src)
def _pad(x, pw):
    flat = tuple(v for pair in reversed(pw) for v in pair)
    return torch.nn.functional.pad(x, flat)

kernel_name = 'interleave_layers__sliding_local_dilated__geglu_ffn__prompt'

def setup_inputs():

    _w = (lambda a: (lambda t: t.to(torch.bfloat16) if t.is_floating_point() else t)(torch.as_tensor(a)))
    def _A_setup():
        B, S, D = 1, 2048, 512
        return {
            "x": _w((lambda *s: torch.randn(*s, dtype=torch.bfloat16) * 0.05)(B, S, D)),
            "wqkv": _w((lambda *s: torch.randn(*s, dtype=torch.bfloat16) * 0.05)(D, 3 * D)),
            "wo": _w((lambda *s: torch.randn(*s, dtype=torch.bfloat16) * 0.05)(D, D)),
        }
    _A_in = _A_setup()

    def _B_setup():
        B, S, D, F = 1, 2048, 512, 1376
        return {
            "x": _w((lambda *s: torch.randn(*s, dtype=torch.bfloat16) * 0.05)(B, S, D)),
            "w_gate": _w((lambda *s: torch.randn(*s, dtype=torch.bfloat16) * 0.05)(D, F)),
            "w_up": _w((lambda *s: torch.randn(*s, dtype=torch.bfloat16) * 0.05)(D, F)),
            "w_down": _w((lambda *s: torch.randn(*s, dtype=torch.bfloat16) * 0.05)(F, D)),
        }
    _B_in = _B_setup()

    return {
        "A_x": _A_in["x"],
        "A_wqkv": _A_in["wqkv"],
        "A_wo": _A_in["wo"],
        "B_x": _B_in["x"],
        "B_w_gate": _B_in["w_gate"],
        "B_w_up": _B_in["w_up"],
        "B_w_down": _B_in["w_down"],
    }

def reference(A_x, A_wqkv, A_wo, B_x, B_w_gate, B_w_up, B_w_down):
    def _A_ref(x, wqkv, wo):
        B, S, D = x.shape
        H = 32; Dh = D // H
        W, dil = 8, 2
        qkv = (lambda x, *d: x.permute(*d))((x @ wqkv).reshape(B, S, 3, H, Dh), 2, 0, 3, 1, 4)
        q, k, v = qkv[0], qkv[1], qkv[2]
        scale = Dh ** -0.5
        pos = torch.arange(S)
        off = torch.arange(W) * dil
        idx = pos[:, None] - off[None, :]
        mask = idx >= 0
        idx_c = torch.where(mask, idx, 0).reshape(-1)
        kg = k[:, :, idx_c, :].reshape(B, H, S, W, Dh)
        vg = v[:, :, idx_c, :].reshape(B, H, S, W, Dh)
        logits = torch.einsum("bhsd,bhswd->bhsw", q, kg) * scale
        logits = torch.where(mask[None, None, :, :], logits, -1e9)
        attn = _softmax(logits, axis=-1)
        o = torch.einsum("bhsw,bhswd->bhsd", attn, vg)
        return (lambda x, *d: x.permute(*d))(o, 0, 2, 1, 3).reshape(B, S, D) @ wo

    def _B_ref(x, w_gate, w_up, w_down):
        return (_gelu(x @ w_gate) * (x @ w_up)) @ w_down

    x = A_x
    x = x + _A_ref(_layernorm(x, axis=-1), A_wqkv, A_wo)
    x = x + _B_ref(_layernorm(x, axis=-1), B_w_gate, B_w_up, B_w_down)
    x = x + _A_ref(_layernorm(x, axis=-1), A_wqkv, A_wo)
    x = x + _B_ref(_layernorm(x, axis=-1), B_w_gate, B_w_up, B_w_down)
    return x
```

```python
import re

REG_RE = re.compile(r'\b([vas])\[(\d+):(\d+)\]|\b([vas])(\d+)\b|\b(vcc|exec|m0|scc)\b')

def regs_of(opnd):
    out = []
    for m in REG_RE.finditer(opnd):
        if m.group(1):
            out += [f"{m.group(1)}{i}" for i in range(int(m.group(2)), int(m.group(3)) + 1)]
        elif m.group(4):
            out.append(f"{m.group(4)}{m.group(5)}")
        else:
            out.append(m.group(6))
    return out

def split_ops(s):
    out, depth, cur = [], 0, ''
    for ch in s:
        if ch in '[(':
            depth += 1
        if ch in '])':
            depth -= 1
        if ch == ',' and depth == 0:
            out.append(cur.strip()); cur = ''
        else:
            cur += ch
    if cur.strip():
        out.append(cur.strip())
    return out

TRANS = ('v_exp_f32', 'v_log_f32', 'v_rcp_f32', 'v_rsq_f32', 'v_sqrt_f32', 'v_sin_f32', 'v_cos_f32')

class Ins:
    __slots__ = ('text', 'mn', 'rd', 'wr', 'kind', 'passes', 'srcc', 'ab', 'comment')

def classify(text):
    t = text.split(';')[0].strip()
    parts = t.split(None, 1)
    mn = parts[0]
    rest = parts[1] if len(parts) > 1 else ''
    ops = split_ops(rest)
    ins = Ins(); ins.text = text; ins.mn = mn; ins.rd = set(); ins.wr = set(); ins.kind = 'other'; ins.passes = 0
    ins.srcc = set(); ins.ab = set()
    def R(i):
        return set(regs_of(ops[i])) if i < len(ops) else set()
    if mn.startswith('v_mfma'):
        ins.kind = 'mfma'
        ins.passes = 8 if '32x32' in mn else 4
        ins.wr = R(0); ins.ab = R(1) | R(2); ins.srcc = R(3); ins.rd = ins.ab | ins.srcc
    elif mn.startswith('v_cmp'):
        ins.kind = 'valu'
        ins.wr = R(0); ins.rd = R(1) | R(2)
    elif mn.startswith('v_readfirstlane') or mn.startswith('v_readlane'):
        ins.kind = 'valu'; ins.wr = R(0); ins.rd = R(1) | R(2)
    elif mn.startswith('v_permlane'):
        ins.kind = 'valu'; ins.wr = R(0) | R(1); ins.rd = R(0) | R(1)
    elif mn.startswith('v_'):
        ins.kind = 'valu'
        ins.wr = R(0)
        for i in range(1, len(ops)):
            ins.rd |= R(i)
        if mn.startswith('v_dot2c') or mn.startswith('v_fmac') or mn.startswith('v_pk_fmac') or 'dpp' in text or mn.endswith('_dpp'):
            ins.rd |= R(0)
        if mn.startswith('v_cndmask') and len(ops) == 3:
            ins.rd.add('vcc')
        if mn.startswith('v_add_co') or mn.startswith('v_addc_co'):
            ins.wr |= R(1)
    elif mn.startswith('ds_read') or mn.startswith('ds_bpermute') or mn.startswith('ds_swizzle'):
        ins.kind = 'ds'; ins.wr = R(0)
        for i in range(1, len(ops)):
            ins.rd |= R(i)
    elif mn.startswith('ds_write'):
        ins.kind = 'ds'
        for i in range(len(ops)):
            ins.rd |= R(i)
    elif mn.startswith('buffer_load'):
        ins.kind = 'vmem'
        if re.search(r'\blds\b', rest):
            for i in range(len(ops)):
                ins.rd |= R(i)
            ins.rd.add('m0'); ins.kind = 'vmem_lds'
        else:
            ins.wr = R(0)
            for i in range(1, len(ops)):
                ins.rd |= R(i)
    elif mn.startswith('buffer_store') or mn.startswith('buffer_atomic'):
        ins.kind = 'vmem_st'
        for i in range(len(ops)):
            ins.rd |= R(i)
        if 'x4' in mn or 'x3' in mn:
            ins.srcc = R(0)
    elif mn.startswith('s_load') or mn.startswith('s_memrealtime') or mn.startswith('s_memtime'):
        ins.kind = 'smem'; ins.wr = R(0)
        for i in range(1, len(ops)):
            ins.rd |= R(i)
    elif mn.startswith('s_cmp') or mn.startswith('s_cbranch') or mn in ('s_branch', 's_barrier', 's_endpgm', 's_sleep', 's_setprio', 's_nop', 's_waitcnt', 's_bitcmp1_b32', 's_bitcmp0_b32'):
        ins.kind = 'salu'
        for i in range(len(ops)):
            ins.rd |= R(i)
    elif mn.startswith('s_'):
        ins.kind = 'salu'; ins.wr = R(0)
        for i in range(1, len(ops)):
            ins.rd |= R(i)
        if 'saveexec' in mn:
            ins.wr.add('exec')
    else:
        raise ValueError("unknown instr " + text)
    return ins

class Prog:
    def __init__(self):
        self.out = []
        self.hist = []
        self.pos = 0
        self.vmq = []
        self.lgq = []
        self.optional = 0
        self.nops = 0
        self.ninstr = 0
        self.smem_pending = set()

    def raw(self, s):
        self.out.append(s)

    def comment(self, s):
        self.out.append("    ; " + s)

    def label(self, name):
        self.out.append(name + ":")

    def _emit_plain(self, text, states=1):
        self.out.append("    " + text)
        self.pos += states
        self.ninstr += 1

    def _wait_vm(self, n):
        n = min(n, 63)
        self._emit_plain(f"s_waitcnt vmcnt({n})")
        keep = []
        cnt = 0
        for e in reversed(self.vmq):
            if cnt < n:
                keep.append(e)
                if e['definite']:
                    cnt += 1
            else:
                break
        self.vmq = list(reversed(keep))

    def _wait_lg(self, n):
        n = min(n, 15)
        self._emit_plain(f"s_waitcnt lgkmcnt({n})")
        self.lgq = self.lgq[len(self.lgq) - n:] if n > 0 else []
        if n == 0:
            self.smem_pending = set()

    def _younger_definite(self, q, idx):
        return sum(1 for e in q[idx + 1:] if e['definite'])

    def wait_vm_tag(self, pred):
        idxs = [i for i, e in enumerate(self.vmq) if e['tag'] is not None and pred(e['tag'])]
        if not idxs:
            return
        n = self._younger_definite(self.vmq, idxs[-1])
        if n >= 63:
            n = 62
        self._wait_vm(n)

    def wait_vm_all(self):
        self._emit_plain("s_waitcnt vmcnt(0)")
        self.vmq = []

    def wait_lg_all(self):
        self._emit_plain("s_waitcnt lgkmcnt(0)")
        self.lgq = []
        self.smem_pending = set()

    def forget_vm(self):
        self.vmq = []

    def I(self, text, tag=None):
        ins = classify(text)
        touched = ins.rd | ins.wr
        if self.smem_pending & touched:
            self.wait_lg_all()
        need = None
        for i, e in enumerate(self.vmq):
            if e['regs'] & touched:
                need = i
        if need is not None:
            self._wait_vm(self._younger_definite(self.vmq, need))
        need = None
        for i, e in enumerate(self.lgq):
            if e['regs'] & touched:
                need = i
        if need is not None:
            if self.smem_pending:
                self.wait_lg_all()
            else:
                self._wait_lg(len(self.lgq) - 1 - need)
        req = 0
        for (p, ppos) in self.hist:
            dist = self.pos - ppos - 1
            r = self._hazard(p, ins)
            if r > dist:
                req = max(req, r - dist)
        while req > 0:
            k = min(req, 16)
            self._emit_plain(f"s_nop {k - 1}", states=k)
            self.nops += 1
            req -= k
        self.out.append("    " + text)
        self.ninstr += 1
        self.hist.append((ins, self.pos))
        self.pos += 1
        if ins.mn == 's_nop':
            self.pos += int(text.split()[1])
        self.hist = [(p, pp) for (p, pp) in self.hist if self.pos - pp <= 24]
        if ins.kind in ('vmem', 'vmem_lds', 'vmem_st'):
            self.vmq.append({'regs': set(ins.wr), 'tag': tag, 'definite': self.optional == 0})
        elif ins.kind == 'ds':
            self.lgq.append({'regs': set(ins.wr), 'tag': tag, 'definite': True})
            if len(self.lgq) > 15:
                pass
        elif ins.kind == 'smem':
            self.smem_pending |= ins.wr
        if ins.mn == 's_waitcnt':
            raise ValueError("use wait helpers")
        return ins

    def _hazard(self, p, c):
        r = 0
        cv = c.rd | c.wr
        if p.kind == 'valu' and p.mn.startswith('v_dot'):
            if p.wr & cv:
                same_acc = (c.mn == p.mn and (p.wr & c.wr) and not (p.wr & (c.rd - c.wr)))
                if not same_acc:
                    r = max(r, 3)
        if p.kind == 'valu':
            pw = p.wr
            vw = {x for x in pw if x[0] in 'va' and x not in ('vcc',)}
            sw = {x for x in pw if (x[0] == 's' and x != 'scc') or x == 'vcc'}
            if c.kind == 'mfma' and (vw & c.rd):
                r = max(r, 2)
            if c.kind == 'valu':
                if (c.mn.startswith('v_permlane') or 'dpp' in c.text) and (vw & c.rd):
                    r = max(r, 2)
                if (c.mn.startswith('v_readfirstlane') or c.mn.startswith('v_readlane')) and (vw & c.rd):
                    r = max(r, 1)
                if sw & c.rd:
                    r = max(r, 2)
                    if c.mn.startswith('v_readlane') or c.mn.startswith('v_writelane'):
                        r = max(r, 4)
                if p.mn.replace('_e32', '').replace('_e64', '') in TRANS and (vw & c.rd):
                    r = max(r, 1)
                if 'op_sel' in p.text and not p.mn.startswith('v_pk') and (vw & cv):
                    r = max(r, 1)
            if c.kind in ('vmem', 'vmem_lds', 'vmem_st') and (sw & c.rd):
                r = max(r, 5)
            if c.kind in ('salu', 'smem') and (sw & c.rd):
                r = max(r, 4)
            if 'exec' in pw:
                if c.kind == 'mfma':
                    r = max(r, 4)
                if c.kind == 'valu':
                    r = max(r, 5)
        if p.kind == 'mfma':
            big = p.passes == 8
            if c.kind == 'mfma':
                if p.wr & c.ab:
                    r = max(r, 12 if big else 8)
                if p.wr & c.srcc:
                    if not (p.wr == c.srcc and p.passes == c.passes):
                        r = max(r, 10 if big else 6)
                if (p.wr & c.wr) and not (p.wr & c.srcc):
                    r = max(r, 12 if big else 8)
            else:
                if p.wr & cv:
                    r = max(r, 12 if big else 8)
                if c.kind == 'valu' and (p.srcc & c.wr):
                    r = max(r, 7 if big else 3)
        if p.kind == 'vmem_st' and p.srcc:
            if p.srcc & c.wr:
                r = max(r, 2)
        if p.kind == 'salu' and 'm0' in p.wr and c.kind == 'vmem_lds':
            r = max(r, 1)
        if p.kind == 'salu' and 'exec' in p.wr and c.kind == 'mfma':
            r = max(r, 4)
        return r

    def barrier(self):
        self._emit_plain("s_barrier")

    def fence_hazards(self, n=16):
        self._emit_plain(f"s_nop {n - 1}", states=n)

    def text(self):
        return "\n".join(self.out) + "\n"
```

```python
import sys, struct
from asmlib import Prog

NAME = "interleave_layers__sliding_local_dilated__geglu_ffn__prompt"

def f2u(x):
    return struct.unpack('<I', struct.pack('<f', x))[0]

XIN   = 0x000000
XMID  = 0x400000
OBUF  = 0x800000
HBUF  = 0xC00000
STIN  = 0x1800000
STMID = 0x1840000
FLAGS = 0x1900000
TSBUF = 0x1A00000
WS_SIZE = 0x2000000

S_WS, S_X0, S_WQKV, S_WO, S_W3, S_WD, S_OUT, S_DBG = 8, 12, 16, 20, 24, 32, 36, 40
sRB, sC, sW, sNONCE, sLAYER = 44, 45, 46, 47, 48
sL2M, sLH, sLST, sLFL = 49, 50, 51, 52
sT0, sT1, sT2, sT3, sT4, sT5 = 53, 54, 55, 56, 57, 58
sW3072, sW1024, sW5120, sONES = 59, 60, 61, 62
sRT = 63
sMCUR = 64
sM01, sM23, sMI0, sMLO16 = 72, 74, 76, 78
sP0, sNP, sR32, sCNT = 80, 81, 82, 83
sK3 = 84
sONEF = 86
sTS = 88
sXT0 = 90
sEXEC = 92
def srd(b): return f"s[{b}:{b+3}]"
def sp(b): return f"s[{b}:{b+1}]"

vTID = 0
vL16 = 1
vRES = 2
vW1OFF, vW2OFF = 10, 11
vW3OFF = 12
vLANE = 15
VBASE = 16

def V(b, n=1):
    return f"v{b}" if n == 1 else f"v[{b}:{b+n-1}]"
def A(b, n=1):
    return f"a{b}" if n == 1 else f"a[{b}:{b+n-1}]"

PAGE = 4096
XB = 18 * PAGE
MISC = 38 * PAGE
LDS_BYTES = 40 * PAGE

class Gen:
    def __init__(self, profile=False, stop_after=None):
        self.P = Prog()
        self.profile = profile
        self.stop_after = stop_after
        self.lab = 0
        self.ts_idx = 0

    def newlab(self, s):
        self.lab += 1
        return f"L_{s}_{self.lab}"

    def w1_page(self, ks): return (ks % 6) * 3
    W2_PAGES = [12, 13, 14, 15, 16, 17, 0, 1, 2, 3, 4, 5, 6, 7, 8, 9]
    def w3_page(self, u):
        if u < 6: return 18 + 3 * u
        if u < 12: return 3 * (u - 6)
        return 18 + 3 * (u - 12)
    def w4_page(self, k):
        if k < 2: return 36 + k
        if k < 8: return 30 + (k - 2)
        if k < 26: return k - 8
        if k < 38: return 18 + (k - 26)
        return [36, 37, 30, 31, 32][k - 38]

    def issue_w1(self, ks):
        P = self.P
        P.I(f"s_mov_b32 s{sT0}, {ks * 98304}")
        P.I(f"s_add_u32 m0, s{sW3072}, {self.w1_page(ks) * PAGE}")
        for mat in range(3):
            off = f" offset:{mat*1024}" if mat else ""
            P.I(f"buffer_load_dwordx4 v{vW1OFF}, {srd(S_WQKV)}, s{sT0} offen{off} lds", tag=('W1', ks))
    def issue_w2(self, ks):
        P = self.P
        P.I(f"s_mov_b32 s{sT0}, {ks * 32768}")
        P.I(f"s_add_u32 m0, s{sW1024}, {self.W2_PAGES[ks] * PAGE}")
        P.I(f"buffer_load_dwordx4 v{vW2OFF}, {srd(S_WO)}, s{sT0} offen lds", tag=('W2', ks))
    def issue_w3(self, u):
        P = self.P
        P.I(f"s_mov_b32 s{sT0}, {u * 88064}")
        P.I(f"s_add_u32 m0, s{sW3072}, {self.w3_page(u) * PAGE}")
        for e in range(3):
            off = f" offset:{e*1024}" if e else ""
            P.I(f"buffer_load_dwordx4 v{vW3OFF+e}, {srd(S_W3)}, s{sT0} offen{off} lds", tag=('W3', u))
    def issue_w4(self, k):
        P = self.P
        P.I(f"s_mov_b32 s{sT0}, {k * 32768}")
        P.I(f"s_add_u32 m0, s{sW1024}, {self.w4_page(k) * PAGE}")
        P.I(f"buffer_load_dwordx4 v{vW2OFF}, {srd(S_WD)}, s{sT0} offen lds", tag=('W4', k))

    def wait_units(self, name, upto):
        self.P.wait_vm_tag(lambda t: t[0] == name and t[1] <= upto)

    def ts(self, idx):
        if not self.profile:
            return
        P = self.P
        l = self.newlab("ts")
        P.I(f"s_cmp_lg_u32 s{sW}, 0")
        P.I(f"s_cbranch_scc1 {l}")
        P.optional += 1
        P.I(f"s_memrealtime {sp(sTS)}")
        P.raw("    s_waitcnt lgkmcnt(0)")
        P.I(f"s_mov_b64 {sp(sEXEC)}, exec")
        P.I(f"s_mov_b64 exec, 1")
        P.I(f"v_mov_b32 v254, s{sTS}")
        P.I(f"v_mov_b32 v255, s{sTS+1}")
        P.I(f"s_lshl_b32 s95, s2, 8")
        P.I(f"s_lshl_b32 s94, s{sLAYER}, 7")
        P.I(f"s_add_u32 s95, s95, s94")
        P.I(f"s_add_u32 s95, s95, {TSBUF + idx * 8}")
        P.I(f"v_mov_b32 v253, 0")
        P.I(f"buffer_store_dwordx2 v[254:255], v253, {srd(S_WS)}, s95 offen")
        P.I(f"s_mov_b64 exec, {sp(sEXEC)}")
        P.optional -= 1
        P.label(l)
        P.fence_hazards(2)

    def reduce_g(self, x, t, op):
        P = self.P
        P.I(f"v_mov_b32 v{t}, v{x}")
        P.I(f"v_permlane16_swap_b32 v{x}, v{t}")
        P.I(f"{op} v{x}, v{x}, v{t}")
        P.I(f"v_mov_b32 v{t}, v{x}")
        P.I(f"v_permlane32_swap_b32 v{x}, v{t}")
        P.I(f"{op} v{x}, v{x}, v{t}")

    def signal_and_poll(self, flag_phase_expr, poll_phase, poll_off_v, first=False, do_signal=True, do_poll=True):
        P = self.P
        l = self.newlab("w0skip")
        P.I(f"s_cmp_lg_u32 s{sW}, 0")
        P.I(f"s_cbranch_scc1 {l}")
        P.optional += 1
        if first:
            lp = self.newlab("npoll"); ld = self.newlab("ndone")
            P.I(f"s_mov_b32 s{sCNT}, 0")
            P.label(lp)
            P.I(f"v_mov_b32 v252, 0")
            P.I(f"buffer_load_dword v253, v252, {srd(S_DBG)}, 0 offen sc1")
            P.raw("    s_waitcnt vmcnt(0)")
            P.I(f"v_readfirstlane_b32 s{sNONCE}, v253")
            P.I(f"s_cmp_lg_u32 s{sNONCE}, 0")
            P.I(f"s_cbranch_scc1 {ld}")
            P.I(f"s_sleep 1")
            P.I(f"s_add_u32 s{sCNT}, s{sCNT}, 1")
            P.I(f"s_cmp_lt_u32 s{sCNT}, 100000")
            P.I(f"s_cbranch_scc1 {lp}")
            P.label(ld)
        if do_signal:
            P.I(f"s_lshl_b32 s{sT1}, s{sRB}, 3")
            P.I(f"s_add_u32 s{sT1}, s{sT1}, s{sC}")
            P.I(f"s_lshl_b32 s{sT1}, s{sT1}, 2")
            P.I(f"s_add_u32 s{sT1}, s{sT1}, s{sLFL}")
            P.I(f"s_add_u32 s{sT1}, s{sT1}, {FLAGS + flag_phase_expr * 0x400}")
            P.I(f"s_mov_b64 {sp(sEXEC)}, exec")
            P.I(f"s_mov_b64 exec, 1")
            P.I(f"v_mov_b32 v252, 0")
            P.I(f"v_mov_b32 v253, s{sNONCE}")
            P.I(f"buffer_store_dword v253, v252, {srd(S_WS)}, s{sT1} offen sc1")
            P.I(f"s_mov_b64 exec, {sp(sEXEC)}")
        if do_poll:
            lp = self.newlab("poll"); ld = self.newlab("pdone")
            P.I(f"s_add_u32 s{sT1}, s{sLFL}, {FLAGS + poll_phase * 0x400}")
            P.I(f"s_mov_b32 s{sCNT}, 0")
            P.label(lp)
            P.I(f"buffer_load_dword v253, v{poll_off_v}, {srd(S_WS)}, s{sT1} offen sc1")
            P.raw("    s_waitcnt vmcnt(0)")
            P.I(f"v_cmp_ne_u32 vcc, s{sNONCE}, v253")
            P.I(f"s_cmp_eq_u64 vcc, 0")
            P.I(f"s_cbranch_scc1 {ld}")
            P.I(f"s_sleep 1")
            P.I(f"s_add_u32 s{sCNT}, s{sCNT}, 1")
            P.I(f"s_cmp_lt_u32 s{sCNT}, 100000")
            P.I(f"s_cbranch_scc1 {lp}")
            P.label(ld)
        P.optional -= 1
        P.label(l)
        P.fence_hazards(4)

    def prologue(self):
        P = self.P
        P.I("s_cmp_ge_u32 s2, 256")
        P.I("s_cbranch_scc1 L_end")
        P.I("s_load_dwordx16 s[64:79], s[0:1], 0")
        P.I("s_load_dwordx4 s[84:87], s[0:1], 64")
        P.I(f"s_and_b32 s{sT0}, s2, 7")
        P.I(f"s_lshr_b32 s{sT1}, s2, 3")
        P.I(f"s_lshl_b32 s{sRB}, s{sT0}, 2")
        P.I(f"s_lshr_b32 s{sT2}, s{sT1}, 3")
        P.I(f"s_add_u32 s{sRB}, s{sRB}, s{sT2}")
        P.I(f"s_and_b32 s{sC}, s{sT1}, 7")
        P.I(f"v_lshrrev_b32 v1, 6, v0")
        P.I(f"v_and_b32 v{vLANE}, 63, v0")
        P.I(f"v_readfirstlane_b32 s{sW}, v1")
        P.I(f"v_lshlrev_b32 v{vL16}, 4, v{vLANE}")
        P.wait_lg_all()
        def mk(b, ptr, size):
            P.I(f"s_mov_b32 s{b}, s{ptr}")
            P.I(f"s_and_b32 s{b+1}, s{ptr+1}, 0xffff")
            P.I(f"s_mov_b32 s{b+2}, {size}")
            P.I(f"s_mov_b32 s{b+3}, 0x20000")
        mk(S_X0, 64, 2048 * 512 * 2)
        mk(S_WQKV, 66, 512 * 1536 * 2)
        mk(S_WO, 68, 512 * 512 * 2)
        mk(S_WD, 76, 1376 * 512 * 2)
        mk(S_OUT, 78, 2048 * 512 * 2)
        mk(S_DBG, 84, 256)
        mk(S_WS, 86, WS_SIZE)
        P.I(f"s_cmp_lt_u32 s{sW}, 2")
        P.I(f"s_cselect_b32 s{S_W3}, s72, s74")
        P.I(f"s_cselect_b32 s{sT0}, s73, s75")
        P.I(f"s_and_b32 s{S_W3+1}, s{sT0}, 0xffff")
        P.I(f"s_mov_b32 s{S_W3+2}, {512 * 1376 * 2}")
        P.I(f"s_mov_b32 s{S_W3+3}, 0x20000")
        P.I(f"s_mul_i32 s{sW3072}, s{sW}, 3072")
        P.I(f"s_lshl_b32 s{sW1024}, s{sW}, 10")
        P.I(f"s_mul_i32 s{sW5120}, s{sW}, 5120")
        P.I(f"s_mov_b32 s{sONES}, 0x3f803f80")
        P.I(f"s_lshl_b32 s{sRT}, s{sRB}, 2")
        P.I(f"s_add_u32 s{sRT}, s{sRT}, s{sW}")
        P.I(f"s_mov_b32 s{sLAYER}, 0")
        P.I(f"s_mov_b32 s{sL2M}, 0")
        P.I(f"s_mov_b32 s{sLH}, 0")
        P.I(f"s_mov_b32 s{sLST}, 0")
        P.I(f"s_mov_b32 s{sLFL}, 0")
        P.I(f"s_and_b32 s{sT0}, s{sRB}, 1")
        P.I(f"s_lshl_b32 s{sT0}, s{sT0}, 3")
        P.I(f"s_add_u32 s{sT0}, s{sT0}, s{sC}")
        P.I(f"s_mul_i32 s{sT1}, s{sT0}, 3")
        P.I(f"s_lshl_b32 s{sT2}, s{sT0}, 1")
        P.I(f"s_add_u32 s{sT2}, s{sT2}, 11")
        P.I(f"s_cmp_le_u32 s{sT0}, 10")
        P.I(f"s_cselect_b32 s{sP0}, s{sT1}, s{sT2}")
        P.I(f"s_cselect_b32 s{sNP}, 3, 2")
        P.I(f"s_lshr_b32 s{sT0}, s{sRB}, 1")
        P.I(f"s_lshl_b32 s{sT0}, s{sT0}, 2")
        P.I(f"s_add_u32 s{sR32}, s{sT0}, s{sW}")
        l = self.newlab("nonce")
        P.I(f"s_or_b32 s{sT0}, s2, s{sW}")
        P.I(f"s_cmp_lg_u32 s{sT0}, 0")
        P.I(f"s_cbranch_scc1 {l}")
        P.optional += 1
        P.I(f"s_memrealtime {sp(sTS)}")
        P.raw("    s_waitcnt lgkmcnt(0)")
        P.I(f"s_or_b32 s{sT1}, s{sTS}, 1")
        P.I(f"v_mov_b32 v20, s{sT1}")
        P.I(f"v_mov_b32 v21, 0")
        P.I(f"s_mov_b64 exec, 1")
        P.I(f"buffer_store_dword v20, v21, {srd(S_DBG)}, 0 offen sc1")
        P.I(f"s_mov_b64 exec, -1")
        P.optional -= 1
        P.label(l)
        P.fence_hazards(2)
        a, b, c_, d = 20, 21, 22, 23
        P.I(f"v_lshrrev_b32 v{a}, 3, v{vLANE}")
        P.I(f"v_and_b32 v{b}, 6, v{a}")
        P.I(f"v_and_b32 v{c_}, 7, v{vLANE}")
        P.I(f"v_xor_b32 v{c_}, v{c_}, v{b}")
        P.I(f"v_lshlrev_b32 v{c_}, 4, v{c_}")
        P.I(f"s_lshl_b32 s{sT0}, s{sC}, 7")
        P.I(f"v_add_u32 v{c_}, s{sT0}, v{c_}")
        P.I(f"s_lshl_b32 s{sT1}, s{sW}, 3")
        P.I(f"v_add_u32 v{a}, s{sT1}, v{a}")
        P.I(f"v_mul_u32_u24 v{b}, 3072, v{a}")
        P.I(f"v_add_u32 v{vW1OFF}, v{b}, v{c_}")
        P.I(f"v_lshlrev_b32 v{b}, 10, v{a}")
        P.I(f"v_add_u32 v{vW2OFF}, v{b}, v{c_}")
        P.I(f"s_and_b32 s{sT0}, s{sW}, 1")
        P.I(f"s_mul_i32 s{sT0}, s{sT0}, {16 * 2752}")
        P.I(f"s_lshl_b32 s{sT1}, s{sP0}, 6")
        P.I(f"s_add_u32 s{sT0}, s{sT0}, s{sT1}")
        for e in range(3):
            P.I(f"v_add_u32 v{a}, {64 * e}, v{vLANE}")
            P.I(f"v_mul_u32_u24 v{b}, 43691, v{a}")
            P.I(f"v_lshrrev_b32 v{b}, 19, v{b}")
            P.I(f"v_mul_u32_u24 v{c_}, 12, v{b}")
            P.I(f"v_sub_u32 v{c_}, v{a}, v{c_}")
            P.I(f"v_mul_u32_u24 v{b}, 2752, v{b}")
            P.I(f"v_lshlrev_b32 v{c_}, 4, v{c_}")
            P.I(f"v_add_u32 v{b}, v{b}, v{c_}")
            P.I(f"v_add_u32 v{b}, s{sT0}, v{b}")
            if e:
                P.I(f"v_subrev_u32 v{vW3OFF+e}, {1024 * e}, v{b}")
            else:
                P.I(f"v_mov_b32 v{vW3OFF}, v{b}")
        P.I(f"v_and_b32 v{a}, 15, v{vLANE}")
        P.I(f"v_lshlrev_b32 v{a}, 10, v{a}")
        P.I(f"v_lshrrev_b32 v{b}, 4, v{vLANE}")
        P.I(f"v_lshlrev_b32 v{b}, 3, v{b}")
        P.I(f"v_add_u32 v{a}, v{a}, v{b}")
        P.I(f"s_lshl_b32 s{sT0}, s{sRT}, 14")
        P.I(f"s_lshl_b32 s{sT1}, s{sC}, 7")
        P.I(f"s_add_u32 s{sT0}, s{sT0}, s{sT1}")
        for T in range(4):
            P.I(f"buffer_load_dwordx2 {V(vRES + 2 * T, 2)}, v{a}, {srd(S_X0)}, s{sT0} offen offset:{T * 32}")
        for ks in range(6):
            self.issue_w1(ks)
        P.I(f"v_and_b32 v{a}, 15, v{vLANE}")
        P.I(f"v_lshrrev_b32 v{b}, 4, v{vLANE}")
        P.I(f"v_lshlrev_b32 v{b}, 2, v{b}")
        for r in range(4):
            P.I(f"v_add_u32 v{c_}, {r}, v{b}")
            P.I(f"v_cmp_ge_u32 {sp(sMCUR + 2 * r)}, v{a}, v{c_}")
        P.I(f"v_and_b32 v{d}, 1, v{a}")
        P.I(f"v_add_u32 v{c_}, v{b}, v{d}")
        P.I(f"v_cmp_ge_u32 {sp(sM01)}, v{a}, v{c_}")
        P.I(f"v_add_u32 v{c_}, 2, v{c_}")
        P.I(f"v_cmp_ge_u32 {sp(sM23)}, v{a}, v{c_}")
        P.I(f"v_cmp_eq_u32 {sp(sMI0)}, 0, v{a}")
        P.I(f"s_mov_b64 {sp(sMLO16)}, 0xffff")
        P.I(f"s_mov_b32 s{sK3}, {hex(f2u(-2.0 * 0.7978845608028654 * 1.4426950408889634 * 0.044715))}")
        P.I(f"s_mov_b32 s{sK3+1}, {hex(f2u(-2.0 * 0.7978845608028654 * 1.4426950408889634 * 0.044715))}")
        P.I(f"s_mov_b32 s{sONEF}, 1.0")
        P.I(f"s_mov_b32 s{sONEF+1}, 1.0")

    def emit_x(self, layout32, xbase_s, stbase_s):
        P = self.P
        a, b, t = 240, 241, 242
        s1, s1b, s2, s2b = 244, 245, 246, 247
        if not layout32:
            P.I(f"s_lshl_b32 s{sT1}, s{sRT}, 14")
            P.I(f"s_lshl_b32 s{sT2}, s{sC}, 11")
            P.I(f"s_add_u32 s{sT1}, s{sT1}, s{sT2}")
            P.I(f"s_add_u32 s{sT1}, s{sT1}, s{xbase_s}")
            for u in range(2):
                off = f" offset:{u * 1024}" if u else ""
                P.I(f"buffer_store_dwordx4 {V(vRES + 4 * u, 4)}, v{vL16}, {srd(S_WS)}, s{sT1} offen{off} sc1", tag=('ST', 0))
        else:
            P.I(f"v_lshrrev_b32 v{a}, 4, v{vLANE}")
            P.I(f"v_lshlrev_b32 v{a}, 9, v{a}")
            P.I(f"v_and_b32 v{b}, 15, v{vLANE}")
            P.I(f"v_lshlrev_b32 v{b}, 4, v{b}")
            P.I(f"v_add_u32 v{a}, v{a}, v{b}")
            P.I(f"s_lshr_b32 s{sT1}, s{sRT}, 1")
            P.I(f"s_lshl_b32 s{sT1}, s{sT1}, 15")
            P.I(f"s_lshl_b32 s{sT2}, s{sC}, 12")
            P.I(f"s_add_u32 s{sT1}, s{sT1}, s{sT2}")
            P.I(f"s_and_b32 s{sT2}, s{sRT}, 1")
            P.I(f"s_lshl_b32 s{sT2}, s{sT2}, 8")
            P.I(f"s_add_u32 s{sT1}, s{sT1}, s{sT2}")
            P.I(f"s_add_u32 s{sT1}, s{sT1}, s{xbase_s}")
            for u in range(2):
                off = f" offset:{u * 2048}" if u else ""
                P.I(f"buffer_store_dwordx4 {V(vRES + 4 * u, 4)}, v{a}, {srd(S_WS)}, s{sT1} offen{off} sc1", tag=('ST', 0))
        for x in (s1, s1b, s2, s2b):
            P.I(f"v_mov_b32 v{x}, 0")
        for j in range(8):
            P.I(f"v_dot2c_f32_bf16 v{s1 if j % 2 == 0 else s1b}, s{sONES}, v{vRES + j}")
            P.I(f"v_dot2c_f32_bf16 v{s2 if j % 2 == 0 else s2b}, v{vRES + j}, v{vRES + j}")
        P.I(f"v_add_f32 v{s1}, v{s1}, v{s1b}")
        P.I(f"v_add_f32 v{s1b}, v{s2}, v{s2b}")
        self.reduce_g(s1, t, "v_add_f32")
        self.reduce_g(s1b, t + 1, "v_add_f32")
        P.I(f"v_lshlrev_b32 v{a}, 6, v{vLANE}")
        P.I(f"s_lshl_b32 s{sT1}, s{sRT}, 10")
        P.I(f"s_lshl_b32 s{sT2}, s{sC}, 3")
        P.I(f"s_add_u32 s{sT1}, s{sT1}, s{sT2}")
        P.I(f"s_add_u32 s{sT1}, s{sT1}, s{stbase_s}")
        P.I(f"s_mov_b64 exec, {sp(sMLO16)}")
        P.I(f"buffer_store_dwordx2 {V(s1, 2)}, v{a}, {srd(S_WS)}, s{sT1} offen sc1", tag=('ST', 0))
        P.I(f"s_mov_b64 exec, -1")

    def finish_phase(self, flag_phase, poll_phase, poll_setup, pre, first=False, do_poll=True):
        P = self.P
        pre()
        pv = poll_setup()
        P.wait_vm_tag(lambda t: t[0] == 'ST')
        P.barrier()
        self.signal_and_poll(flag_phase, poll_phase, pv, first=first, do_poll=do_poll)

    def poll_rb_prev(self):
        P = self.P
        P.I(f"v_and_b32 v251, 15, v{vLANE}")
        P.I(f"s_lshl_b32 s{sT1}, s{sRB}, 3")
        P.I(f"s_sub_u32 s{sT1}, s{sT1}, 8")
        P.I(f"s_cmp_eq_u32 s{sRB}, 0")
        P.I(f"s_cselect_b32 s{sT1}, 0, s{sT1}")
        P.I(f"s_cselect_b32 s{sT2}, 7, 15")
        P.I(f"v_and_b32 v251, s{sT2}, v251")
        P.I(f"v_add_u32 v251, s{sT1}, v251")
        P.I(f"v_lshlrev_b32 v251, 2, v251")
        return 251
    def poll_rb(self):
        P = self.P
        P.I(f"v_and_b32 v251, 7, v{vLANE}")
        P.I(f"s_lshl_b32 s{sT1}, s{sRB}, 3")
        P.I(f"v_add_u32 v251, s{sT1}, v251")
        P.I(f"v_lshlrev_b32 v251, 2, v251")
        return 251
    def poll_pair(self):
        P = self.P
        P.I(f"v_and_b32 v251, 15, v{vLANE}")
        P.I(f"s_lshr_b32 s{sT1}, s{sRB}, 1")
        P.I(f"s_lshl_b32 s{sT1}, s{sT1}, 4")
        P.I(f"v_add_u32 v251, s{sT1}, v251")
        P.I(f"v_lshlrev_b32 v251, 2, v251")
        return 251

    def stats_finish(self, s1, s2, mean, rstd, t):
        P = self.P
        P.I(f"v_mul_f32 v{mean}, {hex(f2u(1.0/512))}, v{s1}")
        P.I(f"v_mul_f32 v{t}, {hex(f2u(1.0/512))}, v{s2}")
        P.I(f"v_fma_f32 v{t}, -v{mean}, v{mean}, v{t}")
        P.I(f"v_max_f32 v{t}, 0, v{t}")
        P.I(f"v_add_f32 v{t}, {hex(f2u(1e-5))}, v{t}")
        P.I(f"v_rsq_f32 v{rstd}, v{t}")

    def phase1(self, part):
        P = self.P
        vB1, vB1h, vX, vXh = 16, 17, 18, 19
        vST = 20
        accQ, accK, accV = 40, 60, 80
        XF = [100, 120]
        WF = [140, 152]
        vONES = 164
        a, b, c_, d = 170, 171, 172, 173
        if part == 'pre':
            P.I(f"v_lshrrev_b32 v{a}, 4, v{vLANE}")
            P.I(f"v_bfe_u32 v{b}, v{vLANE}, 2, 2")
            P.I(f"v_and_b32 v{c_}, 1, v{a}")
            P.I(f"v_lshl_add_u32 v{c_}, v{c_}, 2, v{b}")
            P.I(f"v_and_b32 v{d}, 6, v{c_}")
            P.I(f"s_lshl_b32 s{sT1}, s{sW}, 1")
            P.I(f"v_xor_b32 v{d}, s{sT1}, v{d}")
            P.I(f"v_bfe_u32 v{b}, v{vLANE}, 1, 1")
            P.I(f"v_or_b32 v{d}, v{d}, v{b}")
            P.I(f"v_lshlrev_b32 v{d}, 4, v{d}")
            P.I(f"v_lshlrev_b32 v{c_}, 7, v{c_}")
            P.I(f"v_add_u32 v{d}, v{d}, v{c_}")
            P.I(f"v_lshrrev_b32 v{a}, 1, v{a}")
            P.I(f"v_mul_u32_u24 v{a}, 3072, v{a}")
            P.I(f"v_add_u32 v{d}, v{d}, v{a}")
            P.I(f"v_and_b32 v{b}, 1, v{vLANE}")
            P.I(f"v_lshlrev_b32 v{b}, 3, v{b}")
            P.I(f"v_add_u32 v{vB1}, v{d}, v{b}")
            P.I(f"v_add_u32 v{vB1h}, 0x10000, v{vB1}")
            P.I(f"v_add_u32 v{vX}, {XB}, v{vL16}")
            P.I(f"v_add_u32 v{vXh}, {XB + 0x10000}, v{vL16}")
            P.I(f"v_mov_b32 v{vONES}, 0x3f803f80")
            for r in range(60):
                P.I(f"v_mov_b32 v{accQ + r}, 0")
            P.I(f"s_lshl_b32 s{sT1}, s{sRB}, 2")
            P.I(f"s_sub_u32 s{sT2}, s{sT1}, 1")
            P.I(f"s_max_i32 s{sXT0}, s{sT2}, 0")
            P.I(f"v_and_b32 v{a}, 15, v{vLANE}")
            P.I(f"v_lshlrev_b32 v{a}, 6, v{a}")
            P.I(f"v_lshrrev_b32 v{b}, 4, v{vLANE}")
            P.I(f"v_lshl_add_u32 v{a}, v{b}, 4, v{a}")
            P.I(f"v_add_u32 v{b}, s{sW1024}, v{vL16}")
            return
        P.I(f"s_lshl_b32 s{sT3}, s{sXT0}, 14")
        P.I(f"s_add_u32 s{sT3}, s{sT3}, s{sL2M}")
        P.I(f"s_lshl_b32 s{sT4}, s{sRB}, 16")
        P.I(f"s_add_u32 s{sT4}, s{sT4}, s{sL2M}")
        if XIN:
            P.I(f"s_add_u32 s{sT3}, s{sT3}, {XIN}")
            P.I(f"s_add_u32 s{sT4}, s{sT4}, {XIN}")
        for m in range(4):
            for t in range(5):
                if t == 0:
                    P.I(f"s_add_u32 s{sT0}, s{sT3}, {m * 4096}")
                else:
                    P.I(f"s_add_u32 s{sT0}, s{sT4}, {(t - 1) * 16384 + m * 4096}")
                P.I(f"s_add_u32 m0, s{sW5120}, {XB + m * 20480 + t * 1024}")
                P.I(f"buffer_load_dwordx4 v{b}, {srd(S_WS)}, s{sT0} offen sc1 lds", tag=('X1', m))
            if m == 0:
                P.I(f"s_lshl_b32 s{sT1}, s{sXT0}, 10")
                P.I(f"s_add_u32 s{sT1}, s{sT1}, s{sLST}")
                P.I(f"s_add_u32 s{sT1}, s{sT1}, {STIN}")
                P.I(f"buffer_load_dwordx4 {V(vST, 4)}, v{a}, {srd(S_WS)}, s{sT1} offen sc1")
                P.I(f"s_lshl_b32 s{sT1}, s{sRB}, 12")
                P.I(f"s_add_u32 s{sT1}, s{sT1}, s{sLST}")
                P.I(f"s_add_u32 s{sT1}, s{sT1}, {STIN}")
                for t in range(1, 5):
                    P.I(f"buffer_load_dwordx4 {V(vST + 4 * t, 4)}, v{a}, {srd(S_WS)}, s{sT1} offen offset:{(t - 1) * 1024} sc1")

        def loads(ks):
            bf = ks & 1
            L = []
            def wread(mat):
                base = self.w1_page(ks) * PAGE + mat * 1024
                for half in range(2):
                    off = base + half * 6144
                    reg = vB1 if off < 65536 else vB1h
                    L.append(f"ds_read_b64_tr_b16 {V(WF[bf] + 4 * mat + 2 * half, 2)}, v{reg} offset:{off & 0xffff}")
            def xread(t):
                off = (ks * 5 + t) * 1024
                reg = vX if off < 65536 else vXh
                L.append(f"ds_read_b128 {V(XF[bf] + 4 * t, 4)}, v{reg} offset:{off & 0xffff}")
            wread(1); xread(1); wread(2); wread(0); xread(2); xread(3); xread(4); xread(0)
            return L
        def mfmas(ks):
            bf = ks & 1
            M = []
            for t in (1, 2, 3, 4, 0):
                x = V(XF[bf] + 4 * t, 4)
                M.append(f"v_mfma_f32_16x16x32_bf16 {V(accK + 4 * t, 4)}, {V(WF[bf] + 4, 4)}, {x}, {V(accK + 4 * t, 4)}")
                M.append(f"v_mfma_f32_16x16x32_bf16 {V(accV + 4 * t, 4)}, {x}, {V(WF[bf] + 8, 4)}, {V(accV + 4 * t, 4)}")
                M.append(f"v_mfma_f32_16x16x32_bf16 {V(accQ + 4 * t, 4)}, {V(WF[bf], 4)}, {x}, {V(accQ + 4 * t, 4)}")
            return M
        def pre_barrier(s):
            self.wait_units('W1', s)
            P.wait_vm_tag(lambda t: t[0] == 'X1' and t[1] <= (s >> 2))
            P.barrier()
        def post_barrier(s):
            if 2 <= s <= 11:
                self.issue_w1(s + 4)
            elif s >= 12:
                for j in range(3):
                    self.issue_w2(3 * (s - 12) + j)
        pre_barrier(0)
        for x in loads(0):
            P.I(x)
        for ks in range(16):
            M = mfmas(ks)
            nxt = []
            if ks + 1 < 16:
                pre_barrier(ks + 1)
                post_barrier(ks + 1)
                nxt = loads(ks + 1)
            bf = ks & 1
            for n, m in enumerate(M):
                if n == 8:
                    for j in range(4):
                        P.I(f"v_cndmask_b32 v{XF[bf] + j}, v{XF[bf] + j}, v{vONES}, {sp(sMI0)}")
                P.I(m)
                if nxt:
                    P.I(nxt.pop(0))
            while nxt:
                P.I(nxt.pop(0))
        P.wait_lg_all()
        P.barrier()
        for k in range(12, 16):
            self.issue_w2(k)
        for u in range(3):
            self.issue_w3(u)
        self.ts(2)
        meanI, rstdI = 100, 105
        tmp = 110
        for t in range(5):
            s = vST + 4 * t
            P.I(f"v_add_f32 v{s}, v{s}, v{s + 2}")
            P.I(f"v_add_f32 v{s + 1}, v{s + 1}, v{s + 3}")
        for t in range(5):
            s = vST + 4 * t
            self.reduce_g(s, s + 2, "v_add_f32")
            self.reduce_g(s + 1, s + 3, "v_add_f32")
        for t in range(5):
            s = vST + 4 * t
            self.stats_finish(s, s + 1, meanI + t, rstdI + t, s + 2)
        P.I(f"v_and_b32 v{tmp}, 15, v{vLANE}")
        P.I(f"v_lshlrev_b32 v{tmp}, 2, v{tmp}")
        P.I(f"s_add_u32 s{sT1}, s{sW1024}, {MISC}")
        P.I(f"v_add_u32 v{tmp}, s{sT1}, v{tmp}")
        for t in range(5):
            P.I(f"ds_write_b32 v{tmp}, v{meanI + t} offset:{t * 64}")
            P.I(f"ds_write_b32 v{tmp}, v{rstdI + t} offset:{512 + t * 64}")
        P.I(f"v_lshrrev_b32 v{tmp + 1}, 4, v{vLANE}")
        P.I(f"v_lshlrev_b32 v{tmp + 1}, 4, v{tmp + 1}")
        P.I(f"v_add_u32 v{tmp + 1}, s{sT1}, v{tmp + 1}")
        meanJ, rstdJ = 120, 140
        for t in range(5):
            P.I(f"ds_read_b128 {V(meanJ + 4 * t, 4)}, v{tmp + 1} offset:{t * 64}")
            P.I(f"ds_read_b128 {V(rstdJ + 4 * t, 4)}, v{tmp + 1} offset:{512 + t * 64}")
        csQ, csK, csV = 112, 116, 160
        for r in range(4):
            P.I(f"v_mov_b32_dpp v{csQ + r}, v{accQ + r} row_newbcast:0 row_mask:0xf bank_mask:0xf")
            P.I(f"v_mov_b32_dpp v{csK + r}, v{accK + r} row_newbcast:0 row_mask:0xf bank_mask:0xf")
        P.I(f"v_mov_b32 v{csV}, v{accV}")
        P.I(f"v_mov_b32 v{csV + 1}, v{accV}")
        P.I(f"v_permlane16_swap_b32 v{csV}, v{csV + 1}")
        P.I(f"v_mov_b32 v{csV + 1}, v{csV}")
        P.I(f"v_permlane32_swap_b32 v{csV}, v{csV + 1}")
        Qp, Kp, Vp = 20, 30, 164
        nm = 162
        for t in range(5):
            P.I(f"v_sub_f32 v{nm}, 0, v{meanI + t}")
            for r in range(4):
                if t >= 1:
                    P.I(f"v_fma_f32 v{accQ + 4 * t + r}, v{nm}, v{csQ + r}, v{accQ + 4 * t + r}")
                P.I(f"v_fma_f32 v{accK + 4 * t + r}, v{nm}, v{csK + r}, v{accK + 4 * t + r}")
            for r in range(4):
                P.I(f"v_mul_f32 v{accK + 4 * t + r}, v{rstdI + t}, v{accK + 4 * t + r}")
            for r in range(4):
                P.I(f"v_fma_f32 v{accV + 4 * t + r}, -v{meanJ + 4 * t + r}, v{csV}, v{accV + 4 * t + r}")
            for r in range(4):
                P.I(f"v_mul_f32 v{accV + 4 * t + r}, v{rstdJ + 4 * t + r}, v{accV + 4 * t + r}")
            for j in range(2):
                if t >= 1:
                    P.I(f"v_cvt_pk_bf16_f32 v{Qp + 2 * (t - 1) + j}, v{accQ + 4 * t + 2 * j}, v{accQ + 4 * t + 2 * j + 1}")
                P.I(f"v_cvt_pk_bf16_f32 v{Kp + 2 * t + j}, v{accK + 4 * t + 2 * j}, v{accK + 4 * t + 2 * j + 1}")
                P.I(f"v_cvt_pk_bf16_f32 v{Vp + 2 * t + j}, v{accV + 4 * t + 2 * j}, v{accV + 4 * t + 2 * j + 1}")
        PM, PMf = 112, 116
        NEG = hex(f2u(-3.0e38))
        P.I(f"v_and_b32 v{nm}, 1, v{vLANE}")
        P.I(f"v_cmp_eq_u32 vcc, 0, v{nm}")
        P.I(f"v_mov_b32 v{nm + 1}, {NEG}")
        P.I(f"v_cndmask_b32 v{PM}, v{nm + 1}, 0, vcc")
        P.I(f"v_cndmask_b32 v{PM + 1}, 0, v{nm + 1}, vcc")
        P.I(f"v_mov_b32 v{PM + 2}, v{PM}")
        P.I(f"v_mov_b32 v{PM + 3}, v{PM + 1}")
        P.I(f"s_cmp_eq_u32 s{sRB}, 0")
        P.I(f"s_cselect_b32 s{sT1}, {NEG}, 0")
        for r in range(4):
            P.I(f"v_mov_b32 v{nm}, s{sT1}")
            P.I(f"v_cndmask_b32 v{nm}, v{nm}, 0, {sp(sMCUR + 2 * r)}")
            P.I(f"v_min_f32 v{PMf + r}, v{nm}, v{PM + r}")
        SP, SC = 40, 60
        for t in range(1, 5):
            q = V(Qp + 2 * (t - 1), 2)
            P.I(f"v_mfma_f32_16x16x16_bf16 {V(SP + 4 * t, 4)}, {V(Kp + 2 * (t - 1), 2)}, {q}, 0")
            P.I(f"v_mfma_f32_16x16x16_bf16 {V(SC + 4 * t, 4)}, {V(Kp + 2 * t, 2)}, {q}, 0")
        cI = 100
        for t in range(1, 5):
            P.I(f"v_mul_f32 v{cI + t}, {hex(f2u(0.25 * 1.4426950408889634))}, v{rstdI + t}")
        Z = 80
        mx = 120
        for t in range(1, 5):
            pm = PMf if t == 1 else PM
            for r in range(4):
                P.I(f"v_cndmask_b32 v{Z + 4 * t + r}, v{SP + 4 * t + r}, v{SC + 4 * t + r}, {sp(sMCUR + 2 * r)}")
            for r in range(4):
                P.I(f"v_fma_f32 v{Z + 4 * t + r}, v{Z + 4 * t + r}, v{cI + t}, v{pm + r}")
            P.I(f"v_max3_f32 v{mx + t}, v{Z + 4 * t}, v{Z + 4 * t + 1}, v{Z + 4 * t + 2}")
            P.I(f"v_max_f32 v{mx + t}, v{mx + t}, v{Z + 4 * t + 3}")
        tm = 125
        for step in ("16", "32"):
            for t in range(1, 5):
                P.I(f"v_mov_b32 v{tm + t}, v{mx + t}")
            for t in range(1, 5):
                P.I(f"v_permlane{step}_swap_b32 v{mx + t}, v{tm + t}")
            for t in range(1, 5):
                P.I(f"v_max_f32 v{mx + t}, v{mx + t}, v{tm + t}")
        sm = 130
        for t in range(1, 5):
            for r in range(4):
                P.I(f"v_sub_f32 v{Z + 4 * t + r}, v{Z + 4 * t + r}, v{mx + t}")
            for r in range(4):
                P.I(f"v_exp_f32 v{Z + 4 * t + r}, v{Z + 4 * t + r}")
        for t in range(1, 5):
            P.I(f"v_add_f32 v{sm + t}, v{Z + 4 * t}, v{Z + 4 * t + 1}")
            P.I(f"v_add_f32 v{tm + t}, v{Z + 4 * t + 2}, v{Z + 4 * t + 3}")
            P.I(f"v_add_f32 v{sm + t}, v{sm + t}, v{tm + t}")
        for step in ("16", "32"):
            for t in range(1, 5):
                P.I(f"v_mov_b32 v{tm + t}, v{sm + t}")
            for t in range(1, 5):
                P.I(f"v_permlane{step}_swap_b32 v{sm + t}, v{tm + t}")
            for t in range(1, 5):
                P.I(f"v_add_f32 v{sm + t}, v{sm + t}, v{tm + t}")
        PB = 140
        pk = 136
        for t in range(1, 5):
            P.I(f"v_cvt_pk_bf16_f32 v{pk}, v{Z + 4 * t}, v{Z + 4 * t + 1}")
            P.I(f"v_cvt_pk_bf16_f32 v{pk + 1}, v{Z + 4 * t + 2}, v{Z + 4 * t + 3}")
            P.I(f"v_cndmask_b32 v{PB + 4 * t + 0}, v{pk}, 0, {sp(sM01)}")
            P.I(f"v_cndmask_b32 v{PB + 4 * t + 1}, v{pk + 1}, 0, {sp(sM23)}")
            P.I(f"v_cndmask_b32 v{PB + 4 * t + 2}, 0, v{pk}, {sp(sM01)}")
            P.I(f"v_cndmask_b32 v{PB + 4 * t + 3}, 0, v{pk + 1}, {sp(sM23)}")
            P.I(f"v_rcp_f32 v{sm + t}, v{sm + t}")
        O = 40
        for t in range(1, 5):
            P.I(f"v_mfma_f32_16x16x32_bf16 {V(O + 4 * t, 4)}, {V(Vp + 2 * (t - 1), 4)}, {V(PB + 4 * t, 4)}, 0")
        P.I(f"s_and_b32 s{sT1}, s{sW}, 1")
        P.I(f"s_lshl_b32 s{sT1}, s{sT1}, 3")
        P.I(f"v_add_u32 v{tmp}, s{sT1}, v{vL16}")
        P.I(f"s_lshl_b32 s{sT1}, s{sRB}, 16")
        P.I(f"s_lshl_b32 s{sT2}, s{sC}, 11")
        P.I(f"s_add_u32 s{sT1}, s{sT1}, s{sT2}")
        P.I(f"s_lshr_b32 s{sT2}, s{sW}, 1")
        P.I(f"s_lshl_b32 s{sT2}, s{sT2}, 10")
        P.I(f"s_add_u32 s{sT1}, s{sT1}, s{sT2}")
        P.I(f"s_add_u32 s{sT1}, s{sT1}, s{sL2M}")
        P.I(f"s_add_u32 s{sT1}, s{sT1}, {OBUF}")
        Op = 60
        for t in range(1, 5):
            for r in range(4):
                P.I(f"v_mul_f32 v{O + 4 * t + r}, v{sm + t}, v{O + 4 * t + r}")
            P.I(f"v_cvt_pk_bf16_f32 v{Op + 2 * t}, v{O + 4 * t}, v{O + 4 * t + 1}")
            P.I(f"v_cvt_pk_bf16_f32 v{Op + 2 * t + 1}, v{O + 4 * t + 2}, v{O + 4 * t + 3}")
            if t > 1:
                P.I(f"s_add_u32 s{sT1}, s{sT1}, 16384")
            P.I(f"buffer_store_dwordx2 {V(Op + 2 * t, 2)}, v{tmp}, {srd(S_WS)}, s{sT1} offen sc1", tag=('ST', 0))
        for u in range(3, 6):
            self.issue_w3(u)
        for k in range(2):
            self.issue_w4(k)

    def gemm_res(self, which, part):
        P = self.P
        nks = 16 if which == 2 else 43
        name = 'W2' if which == 2 else 'W4'
        page = (lambda k: self.W2_PAGES[k]) if which == 2 else self.w4_page
        vB = 16
        acc = 32
        WR = 48
        NR = 8
        LA = 6
        a, b, c_, d, e_ = 80, 81, 82, 83, 84
        if part == 'pre':
            P.I(f"v_lshrrev_b32 v{a}, 4, v{vLANE}")
            P.I(f"v_bfe_u32 v{b}, v{vLANE}, 2, 2")
            P.I(f"v_and_b32 v{c_}, 1, v{a}")
            P.I(f"v_lshl_add_u32 v{c_}, v{c_}, 2, v{b}")
            P.I(f"v_and_b32 v{d}, 6, v{c_}")
            P.I(f"v_lshlrev_b32 v{c_}, 7, v{c_}")
            P.I(f"v_lshrrev_b32 v{a}, 1, v{a}")
            P.I(f"v_lshlrev_b32 v{a}, {10 if which == 2 else 11}, v{a}")
            P.I(f"v_add_u32 v{c_}, v{c_}, v{a}")
            P.I(f"v_and_b32 v{b}, 1, v{vLANE}")
            P.I(f"v_lshl_add_u32 v{c_}, v{b}, 3, v{c_}")
            P.I(f"v_bfe_u32 v{b}, v{vLANE}, 1, 1")
            for T in range(4):
                P.I(f"v_xor_b32 v{e_}, {2 * T}, v{d}")
                P.I(f"v_or_b32 v{e_}, v{e_}, v{b}")
                P.I(f"v_lshl_add_u32 v{vB + 3 * T}, v{e_}, 4, v{c_}")
                P.I(f"v_add_u32 v{vB + 3 * T + 1}, 0x10000, v{vB + 3 * T}")
                P.I(f"v_add_u32 v{vB + 3 * T + 2}, 0x20000, v{vB + 3 * T}")
            for r in range(16):
                P.I(f"v_mov_b32 v{acc + r}, 0")
            return
        if which == 2:
            P.I(f"s_lshl_b32 s{sT1}, s{sRT}, 14")
            P.I(f"s_add_u32 s{sT1}, s{sT1}, s{sL2M}")
            P.I(f"s_add_u32 s{sT1}, s{sT1}, {OBUF}")
        else:
            P.I(f"s_mul_i32 s{sT1}, s{sRT}, {43 * 1024}")
            P.I(f"s_add_u32 s{sT1}, s{sT1}, s{sLH}")
            P.I(f"s_add_u32 s{sT1}, s{sT1}, {HBUF}")
        P.I(f"s_mov_b32 s{sT5}, s{sT1}")
        def xloads(k0, k1):
            for k in range(k0, k1):
                if k % 4 == 0 or k == k0:
                    P.I(f"s_add_u32 s{sT1}, s{sT5}, {(k // 4) * 4096}")
                off = f" offset:{(k % 4) * 1024}" if k % 4 else ""
                P.I(f"buffer_load_dwordx4 {A(4 * k, 4)}, v{vL16}, {srd(S_WS)}, s{sT1} offen{off} sc1")
        xloads(0, min(nks, 28))
        half_off = 2048 if which == 2 else 1024
        frags = [(k, T) for k in range(nks) for T in range(4)]
        def reads(n):
            k, T = frags[n]
            L = []
            for half in range(2):
                off = page(k) * PAGE + half * half_off
                L.append(f"ds_read_b64_tr_b16 {V(WR + 4 * (n % NR) + 2 * half, 2)}, v{vB + 3 * T + (off >> 16)} offset:{off & 0xffff}")
            return L
        def hook(k):
            if which == 4:
                if k == 8:
                    P.barrier()
                    for kk in range(38, 43):
                        self.issue_w4(kk)
                    xloads(28, 43)
                if k == 28:
                    self.wait_units('W4', 42)
                    P.barrier()
                    for ks in range(6):
                        self.issue_w1(ks)
        for n in range(min(LA, len(frags))):
            if frags[n][1] == 0:
                hook(frags[n][0])
            for x in reads(n):
                P.I(x)
        for n, (k, T) in enumerate(frags):
            if n + LA < len(frags):
                if frags[n + LA][1] == 0:
                    hook(frags[n + LA][0])
                rd = reads(n + LA)
            else:
                rd = []
            P.I(f"v_mfma_f32_16x16x32_bf16 {V(acc + 4 * T, 4)}, {V(WR + 4 * (n % NR), 4)}, {A(4 * k, 4)}, {V(acc + 4 * T, 4)}")
            for x in rd:
                P.I(x)
        P.wait_lg_all()
        P.barrier()
        if which == 2:
            for u in range(6, 8):
                self.issue_w3(u)
        self.ts(4 if which == 2 else 8)
        t0, t1 = 80, 81
        for T in range(4):
            for j in range(2):
                rr = vRES + 2 * T + j
                P.I(f"v_lshlrev_b32 v{t0}, 16, v{rr}")
                P.I(f"v_and_b32 v{t1}, 0xffff0000, v{rr}")
                P.I(f"v_add_f32 v{t0}, v{t0}, v{acc + 4 * T + 2 * j}")
                P.I(f"v_add_f32 v{t1}, v{t1}, v{acc + 4 * T + 2 * j + 1}")
                P.I(f"v_cvt_pk_bf16_f32 v{rr}, v{t0}, v{t1}")
        if which == 2:
            P.I(f"s_add_u32 s{sT3}, s{sL2M}, {XMID}")
            P.I(f"s_add_u32 s{sT4}, s{sLST}, {STMID}")
            self.emit_x(True, sT3, sT4)
            for u in range(8, 12):
                self.issue_w3(u)
        else:
            lfin = self.newlab("final")
            P.I(f"s_cmp_lg_u32 s{sLAYER}, 0")
            P.I(f"s_cbranch_scc1 {lfin}")
            P.I(f"s_add_u32 s{sT3}, s{sL2M}, {XIN + 0x200000}")
            P.I(f"s_add_u32 s{sT4}, s{sLST}, {STIN + 0x20000}")
            self.emit_x(False, sT3, sT4)
            self.lfin = lfin

    def final_store(self):
        P = self.P
        P.label(self.lfin)
        P.fence_hazards(4)
        a, b = 80, 81
        P.I(f"v_and_b32 v{a}, 15, v{vLANE}")
        P.I(f"v_lshlrev_b32 v{a}, 10, v{a}")
        P.I(f"v_lshrrev_b32 v{b}, 4, v{vLANE}")
        P.I(f"v_lshlrev_b32 v{b}, 3, v{b}")
        P.I(f"v_add_u32 v{a}, v{a}, v{b}")
        P.I(f"s_lshl_b32 s{sT0}, s{sRT}, 14")
        P.I(f"s_lshl_b32 s{sT1}, s{sC}, 7")
        P.I(f"s_add_u32 s{sT0}, s{sT0}, s{sT1}")
        for T in range(4):
            P.I(f"buffer_store_dwordx2 {V(vRES + 2 * T, 2)}, v{a}, {srd(S_OUT)}, s{sT0} offen offset:{T * 32}")
        self.ts(9)

    def phase3(self, part):
        P = self.P
        vB3 = 16
        vRS, vNMR = 20, 21
        vST = 24
        tmps = 32
        WR = 40
        XR = 88
        acc = 152
        a, b, c_ = 32, 33, 34
        if part == 'pre':
            P.I(f"v_lshrrev_b32 v{a}, 5, v{vLANE}")
            P.I(f"v_bfe_u32 v{b}, v{vLANE}, 2, 2")
            P.I(f"v_lshl_add_u32 v{a}, v{a}, 2, v{b}")
            P.I(f"v_mul_u32_u24 v{a}, 192, v{a}")
            P.I(f"v_bfe_u32 v{b}, v{vLANE}, 4, 1")
            P.I(f"v_lshl_add_u32 v{a}, v{b}, 5, v{a}")
            P.I(f"v_and_b32 v{b}, 3, v{vLANE}")
            P.I(f"v_lshl_add_u32 v{vB3}, v{b}, 3, v{a}")
            P.I(f"v_add_u32 v{vB3 + 1}, 0x10000, v{vB3}")
            P.I(f"v_add_u32 v{vB3 + 2}, 0x20000, v{vB3}")
            for r in range(96):
                P.I(f"v_mov_b32 v{acc + r}, 0")
            P.I(f"v_and_b32 v{a}, 31, v{vLANE}")
            P.I(f"v_lshlrev_b32 v{a}, 6, v{a}")
            P.I(f"v_lshrrev_b32 v{b}, 5, v{vLANE}")
            P.I(f"v_lshl_add_u32 v{a}, v{b}, 5, v{a}")
            return
        P.I(f"s_lshl_b32 s{sT1}, s{sR32}, 11")
        P.I(f"s_add_u32 s{sT1}, s{sT1}, s{sLST}")
        P.I(f"s_add_u32 s{sT1}, s{sT1}, {STMID}")
        P.I(f"buffer_load_dwordx4 {V(vST, 4)}, v{a}, {srd(S_WS)}, s{sT1} offen sc1")
        P.I(f"buffer_load_dwordx4 {V(vST + 4, 4)}, v{a}, {srd(S_WS)}, s{sT1} offen offset:16 sc1")
        P.I(f"s_lshl_b32 s{sT2}, s{sR32}, 15")
        P.I(f"s_add_u32 s{sT2}, s{sT2}, s{sL2M}")
        P.I(f"s_add_u32 s{sT2}, s{sT2}, {XMID}")
        def xload(n):
            L = []
            if n % 4 == 0:
                L.append(f"s_add_u32 s{sT3}, s{sT2}, {(n // 4) * 4096}")
            off = f" offset:{(n % 4) * 1024}" if n % 4 else ""
            L.append(f"buffer_load_dwordx4 {V(XR + 4 * (n % 16), 4)}, v{vL16}, {srd(S_WS)}, s{sT3} offen{off} sc1")
            return L
        for n in range(16):
            for x in xload(n):
                P.I(x)
        for j in (2, 4, 6):
            P.I(f"v_add_f32 v{vST}, v{vST}, v{vST + j}")
            P.I(f"v_add_f32 v{vST + 1}, v{vST + 1}, v{vST + j + 1}")
        for x in (vST, vST + 1):
            P.I(f"v_mov_b32 v{a}, v{x}")
            P.I(f"v_permlane32_swap_b32 v{x}, v{a}")
            P.I(f"v_add_f32 v{x}, v{x}, v{a}")
        self.stats_finish(vST, vST + 1, vST + 2, vRS, a)
        P.I(f"v_mul_f32 v{vNMR}, v{vST + 2}, v{vRS}")
        P.I(f"v_sub_f32 v{vNMR}, 0, v{vNMR}")

        def norm(n):
            L = []
            base = XR + 4 * (n % 16)
            for j in range(4):
                t = tmps + 2 * (j % 4)
                L.append(f"v_lshlrev_b32 v{t}, 16, v{base + j}")
                L.append(f"v_and_b32 v{t + 1}, 0xffff0000, v{base + j}")
                L.append(f"v_pk_fma_f32 {V(t, 2)}, {V(t, 2)}, {V(vRS, 2)}, {V(vRS, 2)} op_sel:[0,0,1] op_sel_hi:[1,0,1]")
                L.append(f"v_cvt_pk_bf16_f32 v{base + j}, v{t}, v{t + 1}")
            return L
        def wreads(n):
            p, u = n >> 1, n & 1
            L = []
            for F in range(3):
                for mat in range(2):
                    fr = WR + 24 * (n & 1) + 4 * (2 * F + mat)
                    for half in range(2):
                        off = self.w3_page(p) * PAGE + mat * 6144 + u * 1536 + half * 3072 + F * 64
                        L.append(f"ds_read_b64_tr_b16 {V(fr + 2 * half, 2)}, v{vB3 + (off >> 16)} offset:{off & 0xffff}")
            return L
        def mf(n):
            M = []
            for F in range(3):
                for mat in range(2):
                    fr = WR + 24 * (n & 1) + 4 * (2 * F + mat)
                    ac = acc + 16 * (2 * F + mat)
                    M.append(f"v_mfma_f32_32x32x16_bf16 {V(ac, 16)}, {V(fr, 4)}, {V(XR + 4 * (n % 16), 4)}, {V(ac, 16)}")
            return M
        def bar(p):
            if p >= 6:
                self.wait_units('W3', p)
            if p >= 2:
                P.barrier()
                if 2 <= p <= 5:
                    self.issue_w3(p + 10)
                elif p >= 6:
                    for j in range(3):
                        self.issue_w4(2 + 3 * (p - 6) + j)
        for x in wreads(0):
            P.I(x)
        for x in norm(0):
            P.I(x)
        for n in range(32):
            M = mf(n)
            fill = []
            if n + 1 < 32:
                if (n + 1) % 2 == 0:
                    bar((n + 1) >> 1)
                rd = wreads(n + 1)
                nr = norm(n + 1)
                while rd or nr:
                    if rd: fill.append(rd.pop(0))
                    if nr: fill.append(nr.pop(0))
                    if nr: fill.append(nr.pop(0)) if len(fill) % 3 == 2 and len(nr) > len(rd) else None
            per = (len(fill) + 5) // 6
            for m in M:
                P.I(m)
                for _ in range(per):
                    if fill: P.I(fill.pop(0))
            while fill:
                P.I(fill.pop(0))
            if n + 16 < 32:
                for x in xload(n + 16):
                    P.I(x)
        P.wait_lg_all()
        P.barrier()
        for k in range(32, 38):
            self.issue_w4(k)
        self.ts(6)
        vK1 = 20
        P.I(f"v_mov_b32 v{vK1}, {hex(f2u(-2.0 * 0.7978845608028654 * 1.4426950408889634))}")
        P.I(f"v_mov_b32 v{vK1 + 1}, v{vK1}")
        va = 22
        P.I(f"v_bfe_u32 v{a}, v{vLANE}, 4, 1")
        P.I(f"v_mul_u32_u24 v{a}, {43 * 1024}, v{a}")
        P.I(f"v_lshrrev_b32 v{b}, 5, v{vLANE}")
        P.I(f"v_lshl_add_u32 v{a}, v{b}, 8, v{a}")
        P.I(f"v_and_b32 v{b}, 15, v{vLANE}")
        P.I(f"v_lshl_add_u32 v{va}, v{b}, 4, v{a}")
        P.I(f"s_lshl_b32 s{sT1}, s{sR32}, 1")
        P.I(f"s_mul_i32 s{sT1}, s{sT1}, 43")
        P.I(f"s_add_u32 s{sT1}, s{sT1}, s{sP0}")
        P.I(f"s_lshl_b32 s{sT1}, s{sT1}, 10")
        P.I(f"s_add_u32 s{sT1}, s{sT1}, s{sLH}")
        P.I(f"s_add_u32 s{sT1}, s{sT1}, {HBUF}")
        HP = 40
        T0 = 88
        lskip = self.newlab("nof2")
        for F in range(3):
            if F == 2:
                P.I(f"s_cmp_lt_u32 s{sNP}, 3")
                P.I(f"s_cbranch_scc1 {lskip}")
                P.optional += 1
            G = acc + 16 * (2 * F); U = acc + 16 * (2 * F + 1)
            for grp in range(2):
                prs = [4 * grp + j for j in range(4)]
                def T(j, k): return T0 + 8 * j + 2 * k
                for j, pr in enumerate(prs):
                    P.I(f"v_pk_mul_f32 {V(T(j,0),2)}, {V(G + 2 * pr, 2)}, {V(G + 2 * pr, 2)}")
                for j, pr in enumerate(prs):
                    P.I(f"v_pk_fma_f32 {V(T(j,0),2)}, {V(T(j,0),2)}, {sp(sK3)}, {V(vK1, 2)}")
                for j, pr in enumerate(prs):
                    P.I(f"v_pk_mul_f32 {V(T(j,0),2)}, {V(T(j,0),2)}, {V(G + 2 * pr, 2)}")
                for j, pr in enumerate(prs):
                    P.I(f"v_exp_f32 v{T(j,0)}, v{T(j,0)}")
                    P.I(f"v_exp_f32 v{T(j,0)+1}, v{T(j,0)+1}")
                for j, pr in enumerate(prs):
                    P.I(f"v_pk_mul_f32 {V(T(j,1),2)}, {V(G + 2 * pr, 2)}, {V(U + 2 * pr, 2)}")
                for j, pr in enumerate(prs):
                    P.I(f"v_pk_add_f32 {V(T(j,0),2)}, {V(T(j,0),2)}, {sp(sONEF)}")
                for j, pr in enumerate(prs):
                    P.I(f"v_rcp_f32 v{T(j,0)}, v{T(j,0)}")
                    P.I(f"v_rcp_f32 v{T(j,0)+1}, v{T(j,0)+1}")
                for j, pr in enumerate(prs):
                    P.I(f"v_pk_mul_f32 {V(T(j,1),2)}, {V(T(j,1),2)}, {V(T(j,0),2)}")
                for j, pr in enumerate(prs):
                    P.I(f"v_cvt_pk_bf16_f32 v{HP + 8 * F + pr}, v{T(j,1)}, v{T(j,1)+1}")
            for AB in range(2):
                off = F * 1024 + AB * 512
                P.I(f"buffer_store_dwordx4 {V(HP + 8 * F + 4 * AB, 4)}, v{va}, {srd(S_WS)}, s{sT1} offen offset:{off} sc1", tag=('ST', 0))
            if F == 2:
                P.optional -= 1
                P.label(lskip)
                P.fence_hazards(2)

    def build(self):
        P = self.P
        self.prologue()
        P.I(f"s_mov_b32 s{sT3}, {XIN}")
        P.I(f"s_mov_b32 s{sT4}, {STIN}")
        self.ts(0)
        self.emit_x(False, sT3, sT4)
        def done(k):
            return self.stop_after is not None and self.stop_after == k
        self.finish_phase(0, 0, self.poll_rb_prev, lambda: self.phase1('pre'), first=True)
        P.label("L_layer")
        P.fence_hazards(4)
        P.barrier()
        self.ts(1)
        self.phase1('body')
        P.I(f"s_cmp_eq_u32 s{sLAYER}, 0")
        P.I(f"s_cselect_b32 s{S_WQKV + 2}, {512 * 1536 * 2}, 0")
        self.finish_phase(1, 1, self.poll_rb, lambda: self.gemm_res(2, 'pre'))
        self.wait_units('W2', 15)
        P.barrier()
        self.ts(3)
        if not done(1):
            self.gemm_res(2, 'body')
            self.finish_phase(2, 2, self.poll_pair, lambda: self.phase3('pre'))
            self.wait_units('W3', 5)
            P.barrier()
            self.ts(5)
            if not done(2):
                self.phase3('body')
                self.finish_phase(3, 3, self.poll_pair, lambda: self.gemm_res(4, 'pre'))
                self.wait_units('W4', 37)
                P.barrier()
                self.ts(7)
                if not done(3):
                    self.gemm_res(4, 'body')
                    self.finish_phase(4, 4, self.poll_rb_prev, lambda: self.phase1('pre'))
                    P.I(f"s_mov_b32 s{sLAYER}, 1")
                    P.I(f"s_mov_b32 s{sL2M}, 0x200000")
                    P.I(f"s_mov_b32 s{sLH}, 0x600000")
                    P.I(f"s_mov_b32 s{sLST}, 0x20000")
                    P.I(f"s_mov_b32 s{sLFL}, 0x1000")
                    if not done(4):
                        P.I("s_branch L_layer")
                    else:
                        P.I("s_branch L_end")
                    self.final_store()
        P.label("L_end")
        P.wait_vm_all()
        P.I("s_endpgm")

    def text(self):
        hdr = open('cdna_kernels/' + NAME + '.s.ref').read().split('\n')
        head = [l for l in hdr if l.startswith(';') and '@launch' not in l and 'Override' not in l and 'grid=ceil' not in l]
        s = "\n".join(head) + "\n"
        s += f"; @launch grid=(256,1,1) block=(256,1,1) lds={LDS_BYTES}\n"
        s += '.amdgcn_target "amdgcn-amd-amdhsa--gfx950"\n.text\n'
        s += f".globl {NAME}_kernel\n.p2align 8\n.type {NAME}_kernel,@function\n{NAME}_kernel:\n"
        s += self.P.text()
        s += f""".section .rodata,"a"
.p2align 6
.amdhsa_kernel {NAME}_kernel
  .amdhsa_next_free_vgpr 512
  .amdhsa_next_free_sgpr 102
  .amdhsa_accum_offset 256
  .amdhsa_group_segment_fixed_size 0
  .amdhsa_kernarg_size 80
  .amdhsa_user_sgpr_count 2
  .amdhsa_user_sgpr_kernarg_segment_ptr 1
  .amdhsa_system_sgpr_workgroup_id_x 1
.end_amdhsa_kernel
"""
        return s

if __name__ == "__main__":
    import argparse
    ap = argparse.ArgumentParser()
    ap.add_argument('-o', default='cdna_kernels/' + NAME + '.s')
    ap.add_argument('--profile', action='store_true')
    ap.add_argument('--stop', type=int, default=None)
    a = ap.parse_args()
    g = Gen(profile=a.profile, stop_after=a.stop)
    g.build()
    open(a.o, 'w').write(g.text())
    print("instructions:", g.P.ninstr, "nops:", g.P.nops)
```

```python
import re

REG_RE = re.compile(r'\b([vas])\[(\d+):(\d+)\]|\b([vas])(\d+)\b|\b(vcc|exec|m0|scc)\b')

def regs_of(opnd):
    out = []
    for m in REG_RE.finditer(opnd):
        if m.group(1):
            out += [f"{m.group(1)}{i}" for i in range(int(m.group(2)), int(m.group(3)) + 1)]
        elif m.group(4):
            out.append(f"{m.group(4)}{m.group(5)}")
        else:
            out.append(m.group(6))
    return out

def split_ops(s):
    out, depth, cur = [], 0, ''
    for ch in s:
        if ch in '[(':
            depth += 1
        if ch in '])':
            depth -= 1
        if ch == ',' and depth == 0:
            out.append(cur.strip()); cur = ''
        else:
            cur += ch
    if cur.strip():
        out.append(cur.strip())
    return out

TRANS = ('v_exp_f32', 'v_log_f32', 'v_rcp_f32', 'v_rsq_f32', 'v_sqrt_f32', 'v_sin_f32', 'v_cos_f32')

class Ins:
    __slots__ = ('text', 'mn', 'rd', 'wr', 'kind', 'passes', 'srcc', 'ab', 'comment')

def classify(text):
    t = text.split(';')[0].strip()
    parts = t.split(None, 1)
    mn = parts[0]
    rest = parts[1] if len(parts) > 1 else ''
    ops = split_ops(rest)
    ins = Ins(); ins.text = text; ins.mn = mn; ins.rd = set(); ins.wr = set(); ins.kind = 'other'; ins.passes = 0
    ins.srcc = set(); ins.ab = set()
    def R(i):
        return set(regs_of(ops[i])) if i < len(ops) else set()
    if mn.startswith('v_mfma'):
        ins.kind = 'mfma'
        ins.passes = 8 if '32x32' in mn else 4
        ins.wr = R(0); ins.ab = R(1) | R(2); ins.srcc = R(3); ins.rd = ins.ab | ins.srcc
    elif mn.startswith('v_cmp'):
        ins.kind = 'valu'
        ins.wr = R(0); ins.rd = R(1) | R(2)
    elif mn.startswith('v_readfirstlane') or mn.startswith('v_readlane'):
        ins.kind = 'valu'; ins.wr = R(0); ins.rd = R(1) | R(2)
    elif mn.startswith('v_permlane'):
        ins.kind = 'valu'; ins.wr = R(0) | R(1); ins.rd = R(0) | R(1)
    elif mn.startswith('v_'):
        ins.kind = 'valu'
        ins.wr = R(0)
        for i in range(1, len(ops)):
            ins.rd |= R(i)
        if mn.startswith('v_dot2c') or mn.startswith('v_fmac') or mn.startswith('v_pk_fmac') or 'dpp' in text or mn.endswith('_dpp'):
            ins.rd |= R(0)
        if mn.startswith('v_cndmask') and len(ops) == 3:
            ins.rd.add('vcc')
        if mn.startswith('v_add_co') or mn.startswith('v_addc_co'):
            ins.wr |= R(1)
    elif mn.startswith('ds_read') or mn.startswith('ds_bpermute') or mn.startswith('ds_swizzle'):
        ins.kind = 'ds'; ins.wr = R(0)
        for i in range(1, len(ops)):
            ins.rd |= R(i)
    elif mn.startswith('ds_write'):
        ins.kind = 'ds'
        for i in range(len(ops)):
            ins.rd |= R(i)
    elif mn.startswith('buffer_load'):
        ins.kind = 'vmem'
        if re.search(r'\blds\b', rest):
            for i in range(len(ops)):
                ins.rd |= R(i)
            ins.rd.add('m0'); ins.kind = 'vmem_lds'
        else:
            ins.wr = R(0)
            for i in range(1, len(ops)):
                ins.rd |= R(i)
    elif mn.startswith('buffer_store') or mn.startswith('buffer_atomic'):
        ins.kind = 'vmem_st'
        for i in range(len(ops)):
            ins.rd |= R(i)
        if 'x4' in mn or 'x3' in mn:
            ins.srcc = R(0)
    elif mn.startswith('s_load') or mn.startswith('s_memrealtime') or mn.startswith('s_memtime'):
        ins.kind = 'smem'; ins.wr = R(0)
        for i in range(1, len(ops)):
            ins.rd |= R(i)
    elif mn.startswith('s_cmp') or mn.startswith('s_cbranch') or mn in ('s_branch', 's_barrier', 's_endpgm', 's_sleep', 's_setprio', 's_nop', 's_waitcnt', 's_bitcmp1_b32', 's_bitcmp0_b32'):
        ins.kind = 'salu'
        for i in range(len(ops)):
            ins.rd |= R(i)
    elif mn.startswith('s_'):
        ins.kind = 'salu'; ins.wr = R(0)
        for i in range(1, len(ops)):
            ins.rd |= R(i)
        if 'saveexec' in mn:
            ins.wr.add('exec')
    else:
        raise ValueError("unknown instr " + text)
    return ins

class Prog:
    def __init__(self):
        self.out = []
        self.hist = []
        self.pos = 0
        self.vmq = []
        self.lgq = []
        self.optional = 0
        self.nops = 0
        self.ninstr = 0
        self.smem_pending = set()
        self.bg = []
        self.sprinkle = 0
        self._spr_cnt = 0
        self._in_bg = False
        self.scc_live = False

    def bg_push(self, fn):
        self.bg.append(fn)

    def bg_pop(self, n=1):
        if self._in_bg:
            return
        self._in_bg = True
        for _ in range(n):
            if self.bg:
                self.bg.pop(0)()
        self._in_bg = False

    def bg_flush(self):
        self.bg_pop(len(self.bg))

    def need(self, regs):
        touched = set(regs)
        need = None
        for i, e in enumerate(self.vmq):
            if e['regs'] & touched:
                need = i
        if need is not None:
            self._wait_vm(self._younger_definite(self.vmq, need))
        need = None
        for i, e in enumerate(self.lgq):
            if e['regs'] & touched:
                need = i
        if need is not None:
            self._wait_lg(len(self.lgq) - 1 - need)

    def raw(self, s):
        self.out.append(s)

    def comment(self, s):
        self.out.append("    ; " + s)

    def label(self, name):
        self.out.append(name + ":")

    def _emit_plain(self, text, states=1):
        self.out.append("    " + text)
        self.pos += states
        self.ninstr += 1

    def _wait_vm(self, n):
        n = min(n, 63)
        self._emit_plain(f"s_waitcnt vmcnt({n})")
        keep = []
        cnt = 0
        for e in reversed(self.vmq):
            if cnt < n:
                keep.append(e)
                if e['definite']:
                    cnt += 1
            else:
                break
        self.vmq = list(reversed(keep))

    def _wait_lg(self, n):
        n = min(n, 15)
        self._emit_plain(f"s_waitcnt lgkmcnt({n})")
        self.lgq = self.lgq[len(self.lgq) - n:] if n > 0 else []
        if n == 0:
            self.smem_pending = set()

    def _younger_definite(self, q, idx):
        return sum(1 for e in q[idx + 1:] if e['definite'])

    def wait_vm_tag(self, pred):
        idxs = [i for i, e in enumerate(self.vmq) if e['tag'] is not None and pred(e['tag'])]
        if not idxs:
            return
        n = self._younger_definite(self.vmq, idxs[-1])
        if n >= 63:
            n = 62
        self._wait_vm(n)

    def wait_vm_all(self):
        self._emit_plain("s_waitcnt vmcnt(0)")
        self.vmq = []

    def wait_lg_all(self):
        self._emit_plain("s_waitcnt lgkmcnt(0)")
        self.lgq = []
        self.smem_pending = set()

    def forget_vm(self):
        self.vmq = []

    def I(self, text, tag=None):
        if getattr(self, 'nomem', False) and text.startswith('buffer_load') and 'S_POLL' not in text and 'v253' not in text:
            return None
        if getattr(self, 'nobar', False) and text.startswith('ds_read'):
            return None
        if tag is not None and tag[0] in getattr(self, 'drop', ()):
            return None
        ins = classify(text)
        touched = ins.rd | ins.wr
        if self.smem_pending & touched:
            self.wait_lg_all()
        need = None
        for i, e in enumerate(self.vmq):
            if e['regs'] & touched:
                need = i
        if need is not None:
            self._wait_vm(self._younger_definite(self.vmq, need))
        need = None
        for i, e in enumerate(self.lgq):
            if e['regs'] & touched:
                need = i
        if need is not None:
            if self.smem_pending:
                self.wait_lg_all()
            else:
                self._wait_lg(len(self.lgq) - 1 - need)
        req = 0
        for (p, ppos) in self.hist:
            dist = self.pos - ppos - 1
            r = self._hazard(p, ins)
            if r > dist:
                req = max(req, r - dist)
        while req > 0:
            k = min(req, 16)
            self._emit_plain(f"s_nop {k - 1}", states=k)
            self.nops += 1
            req -= k
        self.out.append("    " + text)
        self.ninstr += 1
        self.hist.append((ins, self.pos))
        self.pos += 1
        if ins.mn == 's_nop':
            self.pos += int(text.split()[1])
        self.hist = [(p, pp) for (p, pp) in self.hist if self.pos - pp <= 24]
        if ins.kind in ('vmem', 'vmem_lds', 'vmem_st'):
            self.vmq.append({'regs': set(ins.wr), 'tag': tag, 'definite': self.optional == 0})
        elif ins.kind == 'ds':
            self.lgq.append({'regs': set(ins.wr), 'tag': tag, 'definite': True})
            if len(self.lgq) > 15:
                pass
        elif ins.kind == 'smem':
            self.smem_pending |= ins.wr
        if ins.mn == 's_waitcnt':
            raise ValueError("use wait helpers")
        if ins.mn.startswith('s_cmp') or ins.mn.startswith('s_bitcmp'):
            self.scc_live = True
        elif ins.mn.startswith('s_cbranch_scc'):
            self.scc_live = False
        elif ins.kind == 'valu' or ins.kind == 'mfma':
            if self.scc_live and self._in_bg is False:
                pass
        if self.sprinkle and ins.kind == 'valu' and not self._in_bg and self.optional == 0 and self.bg:
            self._spr_cnt += 1
            if self._spr_cnt >= self.sprinkle:
                self._spr_cnt = 0
                self.bg_pop(1)
        return ins

    def _hazard(self, p, c):
        r = 0
        cv = c.rd | c.wr
        if p.kind == 'valu' and p.mn.startswith('v_dot'):
            if p.wr & cv:
                same_acc = (c.mn == p.mn and (p.wr & c.wr) and not (p.wr & (c.rd - c.wr)))
                if not same_acc:
                    r = max(r, 3)
        if p.kind == 'valu':
            pw = p.wr
            vw = {x for x in pw if x[0] in 'va' and x not in ('vcc',)}
            sw = {x for x in pw if (x[0] == 's' and x != 'scc') or x == 'vcc'}
            if c.kind == 'mfma' and (vw & c.rd):
                r = max(r, 2)
            if c.kind == 'valu':
                if (c.mn.startswith('v_permlane') or 'dpp' in c.text) and (vw & c.rd):
                    r = max(r, 2)
                if (c.mn.startswith('v_readfirstlane') or c.mn.startswith('v_readlane')) and (vw & c.rd):
                    r = max(r, 1)
                if sw & c.rd:
                    r = max(r, 2)
                    if c.mn.startswith('v_readlane') or c.mn.startswith('v_writelane'):
                        r = max(r, 4)
                if p.mn.replace('_e32', '').replace('_e64', '') in TRANS and (vw & c.rd):
                    r = max(r, 1)
                if 'op_sel' in p.text and not p.mn.startswith('v_pk') and (vw & cv):
                    r = max(r, 1)
            if c.kind in ('vmem', 'vmem_lds', 'vmem_st') and (sw & c.rd):
                r = max(r, 5)
            if c.kind in ('salu', 'smem') and (sw & c.rd):
                r = max(r, 4)
            if 'exec' in pw:
                if c.kind == 'mfma':
                    r = max(r, 4)
                if c.kind == 'valu':
                    r = max(r, 5)
        if p.kind == 'mfma':
            big = p.passes == 8
            if c.kind == 'mfma':
                if p.wr & c.ab:
                    r = max(r, 12 if big else 8)
                if p.wr & c.srcc:
                    if not (p.wr == c.srcc and p.passes == c.passes):
                        r = max(r, 10 if big else 6)
                if (p.wr & c.wr) and not (p.wr & c.srcc):
                    r = max(r, 12 if big else 8)
            else:
                if p.wr & cv:
                    r = max(r, 12 if big else 8)
                if c.kind == 'valu' and (p.srcc & c.wr):
                    r = max(r, 7 if big else 3)
        if p.kind == 'vmem_st' and p.srcc:
            if p.srcc & c.wr:
                r = max(r, 2)
        if p.kind == 'salu' and 'm0' in p.wr and c.kind == 'vmem_lds':
            r = max(r, 1)
        if p.kind == 'salu' and 'exec' in p.wr and c.kind == 'mfma':
            r = max(r, 4)
        return r

    def barrier(self):
        self._emit_plain("s_barrier")

    def fence_hazards(self, n=16):
        self._emit_plain(f"s_nop {n - 1}", states=n)

    def text(self):
        return "\n".join(self.out) + "\n"
```

```python
import sys, struct
from asmlib import Prog

NAME = "interleave_layers__sliding_local_dilated__geglu_ffn__prompt"

def f2u(x):
    return struct.unpack('<I', struct.pack('<f', x))[0]

XIN   = 0x000000
XMID  = 0x400000
OBUF  = 0x800000
HBUF  = 0xC00000
STIN  = 0x1800000
STMID = 0x1840000
FLAGS = 0x1900000
FLAGS2 = FLAGS + 0x10000
XHALO = 0x1920000
STHALO = 0x1960000
TSBUF = 0x1A00000
WS_SIZE = 0x2000000

S_WS, S_X0, S_WQKV, S_WO, S_W3, S_WD, S_OUT, S_DBG = 8, 12, 16, 20, 24, 32, 36, 40
sRB, sC, sW, sNONCE, sLAYER = 44, 45, 46, 47, 48
sL2M, sLH, sLST, sLFL = 49, 50, 51, 52
sT0, sT1, sT2, sT3, sT4, sT5 = 53, 54, 55, 56, 57, 58
sW3072, sW1024, sW5120, sONES = 59, 60, 61, 62
sRT = 63
sMCUR = 64
sM01, sM23, sMI0, sMLO16 = 72, 74, 76, 78
sP0, sNP, sR32, sCNT = 80, 81, 82, 83
sK3 = 84
sONEF = 86
sTS = 88
sXT0 = 90
sISL = 91
sEXEC = 92
sBG = 96
sXB0, sXB1 = 97, 98
sFAST, sXCC, sHALO = 99, 100, 101
def srd(b): return f"s[{b}:{b+3}]"
def sp(b): return f"s[{b}:{b+1}]"

vL16 = 1
vRES = 2
vLANE = 15
vW1OFF, vW2OFF = 10, 11
vW3OFF = 12
vX1OFF = 16
vLONE = 50

def V(b, n=1):
    return f"v{b}" if n == 1 else f"v[{b}:{b+n-1}]"
def regs(base, n): return [f"v{base + i}" for i in range(n)]

PAGE = 4096
XB = 18 * PAGE
MISC = 38 * PAGE
LDS_BYTES = 40 * PAGE
NEG = hex(f2u(-3.0e38))
GC0 = -2.0 * 0.7978845608028654 * 1.4426950408889634


class Gen:
    def __init__(self, profile=0, drop=(), force_slow=False):
        self.force_slow = force_slow
        self.init24 = 10
        self.init3 = 8
        self.touch = True
        self.P = Prog()
        self.L = Prog()
        self.P.drop = set(drop); self.L.drop = set(drop)
        self.profile = profile
        self.lab = 0

    def newlab(self, s):
        self.lab += 1
        return f"L_{s}_{self.lab}"

    def bar(self):
        self.P.barrier()
        self.L.barrier()

    def w1_page(self, ks): return (ks % 6) * 3
    W2_PAGES = [12, 13, 14, 15, 16, 17, 0, 1, 2, 3, 4, 5, 6, 7, 8, 9]
    def w3_page(self, u):
        if u < 6: return 18 + 3 * u
        if u < 12: return 3 * (u - 6)
        return 18 + 3 * (u - 12)
    def w4_page(self, k):
        if k < 2: return 36 + k
        if k < 8: return 30 + (k - 2)
        if k < 26: return k - 8
        if k < 38: return 18 + (k - 26)
        return [36, 37, 30, 31, 32][k - 38]

    def dma_group(self, voffs, srd_b, soff_imm, m0_base_s, m0_imm, tag):
        L = self.L
        L.I(f"s_add_u32 m0, s{m0_base_s}, {m0_imm}")
        L.I(f"s_mov_b32 s{sBG}, {soff_imm}")
        for e, voff in enumerate(voffs):
            off = f" offset:{e * 1024}" if e else ""
            L.I(f"buffer_load_dwordx4 v{voff}, {srd(srd_b)}, s{sBG} offen{off} lds", tag=tag)
    def ld_w1(self, ks): self.dma_group([vW1OFF] * 3, S_WQKV, ks * 98304, sW3072, self.w1_page(ks) * PAGE, ('W1', ks))
    def ld_w2(self, ks): self.dma_group([vW2OFF], S_WO, ks * 32768, sW1024, self.W2_PAGES[ks] * PAGE, ('W2', ks))
    def ld_w3(self, u): self.dma_group([vW3OFF, vW3OFF + 1, vW3OFF + 2], S_W3, u * 88064, sW3072, self.w3_page(u) * PAGE, ('W3', u))
    def ld_w4(self, k): self.dma_group([vW2OFF], S_WD, k * 32768, sW1024, self.w4_page(k) * PAGE, ('W4', k))
    def wait_units(self, name, upto):
        self.L.wait_vm_tag(lambda t: t[0] == name and t[1] <= upto)

    def ts(self, idx, fine=False):
        if not self.profile:
            return
        if self.profile >= 3:
            keep = {3: (1, 2), 4: (3, 4), 5: (7, 8), 6: (5, 6)}[self.profile]
            if fine != self.profile and not (fine is False and idx in keep):
                return
        elif fine:
            return
        P = self.P
        l = self.newlab("ts")
        P.I(f"s_cmp_lg_u32 s{sW}, 0")
        P.I(f"s_cbranch_scc1 {l}")
        P.optional += 1
        P.I(f"{'s_memtime' if self.profile >= 2 else 's_memrealtime'} {sp(sTS)}")
        P.raw("    s_waitcnt lgkmcnt(0)")
        P.I(f"s_mov_b64 {sp(sEXEC)}, exec")
        P.I(f"s_mov_b64 exec, 1")
        P.I(f"v_mov_b32 v254, s{sTS}")
        P.I(f"v_mov_b32 v255, s{sTS+1}")
        P.I(f"s_lshl_b32 s95, s2, 8")
        P.I(f"s_lshl_b32 s94, s{sLAYER}, 7")
        P.I(f"s_add_u32 s95, s95, s94")
        P.I(f"s_add_u32 s95, s95, {TSBUF + idx * 8}")
        P.I(f"v_mov_b32 v253, 0")
        P.I(f"buffer_store_dwordx2 v[254:255], v253, {srd(S_WS)}, s95 offen")
        P.I(f"s_mov_b64 exec, {sp(sEXEC)}")
        P.optional -= 1
        P.label(l)
        P.fence_hazards(2)

    def stores(self, lines):
        P = self.P
        ls = self.newlab("slow"); lj = self.newlab("join")
        for t in lines:
            from asmlib import classify
            if t.startswith('buffer_store'):
                P.need(sorted(classify(t).rd))
        P.fence_hazards(8)
        P.I(f"s_cmp_eq_u32 s{sFAST}, 0")
        P.I(f"s_cbranch_scc1 {ls}")
        for t in lines:
            P.I(t, tag=('ST', 0) if t.startswith('buffer_store') else None)
        P.raw(f"    s_branch {lj}")
        P.label(ls)
        for t in lines:
            P.raw("    " + t + (" sc1" if t.startswith('buffer_store') else ""))
        P.label(lj)
        P.fence_hazards(2)

    def signal_and_poll(self, flag_phase, poll_phase, poll_off_v, first=False):
        P = self.P
        l = self.newlab("w0skip")
        P.I(f"s_cmp_lg_u32 s{sW}, 0")
        P.I(f"s_cbranch_scc1 {l}")
        P.optional += 1
        if first:
            lp = self.newlab("npoll"); ld = self.newlab("ndone")
            P.I(f"s_mov_b32 s{sCNT}, 0")
            P.label(lp)
            P.I(f"v_mov_b32 v252, 0")
            P.I(f"buffer_load_dword v253, v252, {srd(S_DBG)}, 0 offen sc1")
            P.raw("    s_waitcnt vmcnt(0)")
            P.I(f"v_readfirstlane_b32 s{sNONCE}, v253")
            P.I(f"s_cmp_lg_u32 s{sNONCE}, 0")
            P.I(f"s_cbranch_scc1 {ld}")
            P.I(f"s_sleep 1")
            P.I(f"s_add_u32 s{sCNT}, s{sCNT}, 1")
            P.I(f"s_cmp_lt_u32 s{sCNT}, 100000")
            P.I(f"s_cbranch_scc1 {lp}")
            P.label(ld)
        P.I(f"s_lshl_b32 s{sT1}, s{sRB}, 3")
        P.I(f"s_add_u32 s{sT1}, s{sT1}, s{sC}")
        P.I(f"s_lshl_b32 s{sT1}, s{sT1}, 2")
        P.I(f"s_add_u32 s{sT1}, s{sT1}, s{sLFL}")
        P.I(f"s_add_u32 s{sT1}, s{sT1}, {FLAGS + flag_phase * 0x400}")
        P.I(f"s_mov_b64 {sp(sEXEC)}, exec")
        P.I(f"s_mov_b64 exec, 1")
        P.I(f"v_mov_b32 v252, 0")
        if first:
            P.I(f"s_or_b32 s{sT2}, s{sNONCE}, s{sXCC}")
            P.I(f"v_mov_b32 v253, s{sT2}")
            P.I(f"buffer_store_dword v253, v252, {srd(S_WS)}, s{sT1} offen sc1")
        else:
            P.I(f"v_mov_b32 v253, s{sNONCE}")
            lsl = self.newlab("fslow"); lfj = self.newlab("fjoin")
            P.I(f"s_cmp_eq_u32 s{sFAST}, 0")
            P.I(f"s_cbranch_scc1 {lsl}")
            P.I(f"buffer_store_dword v253, v252, {srd(S_WS)}, s{sT1} offen")
            P.I(f"s_branch {lfj}")
            P.label(lsl)
            P.I(f"buffer_store_dword v253, v252, {srd(S_WS)}, s{sT1} offen sc1")
            P.label(lfj)
        P.I(f"s_mov_b64 exec, {sp(sEXEC)}")
        lp = self.newlab("poll"); ld = self.newlab("pdone")
        P.I(f"s_add_u32 s{sT1}, s{sLFL}, {FLAGS + poll_phase * 0x400}")
        P.I(f"s_mov_b32 s{sCNT}, 0")
        P.label(lp)
        P.I(f"buffer_load_dword v253, v{poll_off_v}, {srd(S_WS)}, s{sT1} offen sc1")
        P.raw("    s_waitcnt vmcnt(0)")
        P.I(f"v_and_b32 v252, -16, v253")
        P.I(f"v_cmp_ne_u32 vcc, s{sNONCE}, v252")
        P.I(f"s_cmp_eq_u64 vcc, 0")
        P.I(f"s_cbranch_scc1 {ld}")
        P.I(f"s_add_u32 s{sCNT}, s{sCNT}, 1")
        P.I(f"s_cmp_lt_u32 s{sCNT}, 200000")
        P.I(f"s_cbranch_scc1 {lp}")
        P.label(ld)
        if first:
            P.I(f"v_and_b32 v252, 15, v253")
            P.I(f"v_cmp_ne_u32 vcc, s{sXCC}, v252")
            P.I(f"s_cmp_eq_u32 vcc_lo, 0")
            P.I(f"s_cselect_b32 s{sT2}, {0 if self.force_slow else 1}, 0")
            P.I(f"v_mov_b32 v252, {MISC + 4096}")
            P.I(f"v_mov_b32 v253, s{sT2}")
            P.I(f"ds_write_b32 v252, v253")
            P.raw("    s_waitcnt lgkmcnt(0)")
        P.optional -= 1
        P.label(l)
        P.fence_hazards(4)

    def finish_phase(self, flag_phase, poll_phase, poll_setup, pre, first=False):
        P = self.P
        if flag_phase in (1, 2, 3): self.ts(10 + 2 * (flag_phase - 1))
        pre()
        pv = poll_setup()
        P.wait_vm_tag(lambda t: t[0] == 'ST')
        self.bar()
        if flag_phase in (1, 2, 3): self.ts(11 + 2 * (flag_phase - 1))
        if flag_phase in (0, 4):
            lh = self.newlab("nohalo")
            P.I(f"s_cmp_eq_u32 s{sHALO}, 0")
            P.I(f"s_cbranch_scc1 {lh}")
            P.optional += 1
            P.raw("    s_waitcnt vmcnt(0)")
            if first:
                lp = self.newlab("hn"); ld = self.newlab("hnd")
                P.I(f"s_mov_b32 s{sCNT}, 0")
                P.label(lp)
                P.I(f"v_mov_b32 v252, 0")
                P.I(f"buffer_load_dword v253, v252, {srd(S_DBG)}, 0 offen sc1")
                P.raw("    s_waitcnt vmcnt(0)")
                P.I(f"v_readfirstlane_b32 s{sNONCE}, v253")
                P.I(f"s_cmp_lg_u32 s{sNONCE}, 0")
                P.I(f"s_cbranch_scc1 {ld}")
                P.I(f"s_add_u32 s{sCNT}, s{sCNT}, 1")
                P.I(f"s_cmp_lt_u32 s{sCNT}, 200000")
                P.I(f"s_cbranch_scc1 {lp}")
                P.label(ld)
            P.I(f"s_lshr_b32 s{sT1}, s{sRB}, 2")
            P.I(f"s_lshl_b32 s{sT1}, s{sT1}, 3")
            P.I(f"s_add_u32 s{sT1}, s{sT1}, s{sC}")
            P.I(f"s_lshl_b32 s{sT1}, s{sT1}, 2")
            P.I(f"s_add_u32 s{sT1}, s{sT1}, s{sLFL}")
            P.I(f"s_add_u32 s{sT1}, s{sT1}, {FLAGS2 + flag_phase * 0x400}")
            P.I(f"s_mov_b64 {sp(sEXEC)}, exec")
            P.I(f"s_mov_b64 exec, 1")
            P.I(f"v_mov_b32 v252, 0")
            P.I(f"v_mov_b32 v253, s{sNONCE}")
            P.I(f"buffer_store_dword v253, v252, {srd(S_WS)}, s{sT1} offen sc1")
            P.I(f"s_mov_b64 exec, {sp(sEXEC)}")
            P.optional -= 1
            P.label(lh)
            P.fence_hazards(2)
        self.signal_and_poll(flag_phase, poll_phase, pv, first=first)

    def poll_rb_prev(self, first=False):
        P = self.P
        P.I(f"v_and_b32 v250, 7, v{vLANE}")
        P.I(f"s_lshr_b32 s{sT1}, s{sRB}, 2")
        P.I(f"s_lshl_b32 s{sT1}, s{sT1}, 3")
        P.I(f"s_add_u32 s{sT1}, s{sT1}, {0x4000 - 8}")
        P.I(f"s_lshl_b32 s{sT2}, s{sRB}, 3")
        P.I(f"s_sub_u32 s{sT3}, s{sT2}, 8")
        P.I(f"s_and_b32 s{sT4}, s{sRB}, 3")
        P.I(f"s_cmp_eq_u32 s{sT4}, 0")
        P.I(f"s_cselect_b32 s{sT3}, s{sT1}, s{sT3}")
        P.I(f"s_cmp_eq_u32 s{sRB}, 0")
        P.I(f"s_cselect_b32 s{sT3}, s{sT2}, s{sT3}")
        if not first:
            P.I(f"v_add_u32 v251, s{sT2}, v250")
            P.I(f"v_add_u32 v250, s{sT3}, v250")
            P.I(f"v_and_b32 v249, 8, v{vLANE}")
            P.I(f"v_cmp_eq_u32 vcc, 0, v249")
            P.I(f"v_cndmask_b32 v251, v250, v251, vcc")
        else:
            P.I(f"s_lshr_b32 s{sT1}, s{sRB}, 2")
            P.I(f"s_lshl_b32 s{sT1}, s{sT1}, 5")
            P.I(f"v_and_b32 v251, 31, v{vLANE}")
            P.I(f"v_add_u32 v251, s{sT1}, v251")
            P.I(f"v_add_u32 v250, s{sT3}, v250")
            P.I(f"v_cmp_gt_u32 vcc, 32, v{vLANE}")
            P.I(f"v_cndmask_b32 v251, v250, v251, vcc")
        P.I(f"v_lshlrev_b32 v251, 2, v251")
        return 251
    def poll_rb(self):
        P = self.P
        P.I(f"v_and_b32 v251, 7, v{vLANE}")
        P.I(f"s_lshl_b32 s{sT1}, s{sRB}, 3")
        P.I(f"v_add_u32 v251, s{sT1}, v251")
        P.I(f"v_lshlrev_b32 v251, 2, v251")
        return 251
    def poll_pair(self):
        P = self.P
        P.I(f"v_and_b32 v251, 15, v{vLANE}")
        P.I(f"s_lshr_b32 s{sT1}, s{sRB}, 1")
        P.I(f"s_lshl_b32 s{sT1}, s{sT1}, 4")
        P.I(f"v_add_u32 v251, s{sT1}, v251")
        P.I(f"v_lshlrev_b32 v251, 2, v251")
        return 251

    def touch16(self, S, va, vd, base_const, use_l2m=True, extra_l2m=0):
        S.I(f"v_lshrrev_b32 v{va}, 4, v{vLANE}")
        S.I(f"v_lshlrev_b32 v{va}, 14, v{va}")
        S.I(f"v_and_b32 v{vd}, 15, v{vLANE}")
        S.I(f"v_lshl_add_u32 v{va}, v{vd}, 7, v{va}")
        S.I(f"s_lshl_b32 s{sT1}, s{sRB}, 16")
        S.I(f"s_lshl_b32 s{sT2}, s{sC}, 11")
        S.I(f"s_add_u32 s{sT1}, s{sT1}, s{sT2}")
        S.I(f"s_add_u32 s{sT1}, s{sT1}, s{sL2M}")
        S.I(f"s_add_u32 s{sT1}, s{sT1}, {base_const}")
        S.I(f"buffer_load_dword v{vd}, v{va}, {srd(S_WS)}, s{sT1} offen")
    def touch32(self, S, va, vd):
        S.I(f"v_lshrrev_b32 v{va}, 5, v{vLANE}")
        S.I(f"v_lshlrev_b32 v{va}, 15, v{va}")
        S.I(f"v_and_b32 v{vd}, 31, v{vLANE}")
        S.I(f"v_lshl_add_u32 v{va}, v{vd}, 7, v{va}")
        S.I(f"s_lshl_b32 s{sT1}, s{sRB}, 16")
        S.I(f"s_lshl_b32 s{sT2}, s{sC}, 12")
        S.I(f"s_add_u32 s{sT1}, s{sT1}, s{sT2}")
        S.I(f"s_add_u32 s{sT1}, s{sT1}, s{sL2M}")
        S.I(f"s_add_u32 s{sT1}, s{sT1}, {XMID}")
        S.I(f"buffer_load_dword v{vd}, v{va}, {srd(S_WS)}, s{sT1} offen")
    def touch_stats(self, S, va, vd, base_const):
        S.I(f"v_and_b32 v{va}, 31, v{vLANE}")
        S.I(f"v_lshlrev_b32 v{va}, 7, v{va}")
        S.I(f"s_lshl_b32 s{sT1}, s{sRB}, 12")
        S.I(f"s_add_u32 s{sT1}, s{sT1}, s{sLST}")
        S.I(f"s_add_u32 s{sT1}, s{sT1}, {base_const}")
        S.I(f"buffer_load_dword v{vd}, v{va}, {srd(S_WS)}, s{sT1} offen")
    def touch_h(self, S, va, vb, vd):
        S.I(f"s_lshr_b32 s{sT1}, s{sRB}, 1")
        S.I(f"s_mul_i32 s{sT1}, s{sT1}, {8 * 43}")
        S.I(f"s_add_u32 s{sT1}, s{sT1}, s{sP0}")
        S.I(f"s_lshl_b32 s{sT1}, s{sT1}, 10")
        S.I(f"s_add_u32 s{sT1}, s{sT1}, s{sLH}")
        S.I(f"s_add_u32 s{sT1}, s{sT1}, {HBUF}")
        for e in range(3):
            S.I(f"v_add_u32 v{va}, {64 * e}, v{vLANE}")
            S.I(f"v_mul_u32_u24 v{vb}, 43691, v{va}")
            S.I(f"v_lshrrev_b32 v{vb}, 20, v{vb}")
            S.I(f"v_mul_u32_u24 v{vd + e}, 24, v{vb}")
            S.I(f"v_sub_u32 v{va}, v{va}, v{vd + e}")
            S.I(f"v_lshlrev_b32 v{va}, 7, v{va}")
            S.I(f"v_mul_u32_u24 v{vb}, {43 * 1024}, v{vb}")
            S.I(f"v_add_u32 v{va}, v{va}, v{vb}")
            S.I(f"buffer_load_dword v{vd + e}, v{va}, {srd(S_WS)}, s{sT1} offen")

    def prologue(self):
        P = self.P; L = self.L
        P.I("s_cmp_ge_u32 s2, 256")
        P.I("s_cbranch_scc1 L_end")
        P.I("s_load_dwordx16 s[64:79], s[0:1], 0")
        P.I("s_load_dwordx4 s[84:87], s[0:1], 64")
        P.I(f"s_and_b32 s{sT0}, s2, 7")
        P.I(f"s_lshr_b32 s{sT1}, s2, 3")
        P.I(f"s_lshl_b32 s{sRB}, s{sT0}, 2")
        P.I(f"s_lshr_b32 s{sT2}, s{sT1}, 3")
        P.I(f"s_add_u32 s{sRB}, s{sRB}, s{sT2}")
        P.I(f"s_and_b32 s{sC}, s{sT1}, 7")
        P.I(f"v_lshrrev_b32 v1, 6, v0")
        P.I(f"v_and_b32 v{vLANE}, 63, v0")
        P.I(f"v_readfirstlane_b32 s{sW}, v1")
        P.I(f"v_lshlrev_b32 v{vL16}, 4, v{vLANE}")
        P.I(f"s_lshr_b32 s{sISL}, s{sW}, 2")
        P.I(f"s_and_b32 s{sW}, s{sW}, 3")
        P.wait_lg_all()
        def mk(b, ptr, size):
            P.I(f"s_mov_b32 s{b}, s{ptr}")
            P.I(f"s_and_b32 s{b+1}, s{ptr+1}, 0xffff")
            P.I(f"s_mov_b32 s{b+2}, {size}")
            P.I(f"s_mov_b32 s{b+3}, 0x20000")
        mk(S_X0, 64, 2048 * 512 * 2)
        mk(S_WQKV, 66, 512 * 1536 * 2)
        mk(S_WO, 68, 512 * 512 * 2)
        mk(S_WD, 76, 1376 * 512 * 2)
        mk(S_OUT, 78, 2048 * 512 * 2)
        mk(S_DBG, 84, 256)
        mk(S_WS, 86, WS_SIZE)
        P.I(f"s_cmp_lt_u32 s{sW}, 2")
        P.I(f"s_cselect_b32 s{S_W3}, s72, s74")
        P.I(f"s_cselect_b32 s{sT0}, s73, s75")
        P.I(f"s_and_b32 s{S_W3+1}, s{sT0}, 0xffff")
        P.I(f"s_mov_b32 s{S_W3+2}, {512 * 1376 * 2}")
        P.I(f"s_mov_b32 s{S_W3+3}, 0x20000")
        P.I(f"s_mul_i32 s{sW3072}, s{sW}, 3072")
        P.I(f"s_lshl_b32 s{sW1024}, s{sW}, 10")
        P.I(f"s_mul_i32 s{sW5120}, s{sW}, 5120")
        P.I(f"s_mov_b32 s{sONES}, 0x3f803f80")
        P.I(f"s_lshl_b32 s{sRT}, s{sRB}, 2")
        P.I(f"s_add_u32 s{sRT}, s{sRT}, s{sW}")
        for r in (sLAYER, sL2M, sLH, sLST, sLFL):
            P.I(f"s_mov_b32 s{r}, 0")
        P.I(f"s_and_b32 s{sT0}, s{sRB}, 1")
        P.I(f"s_lshl_b32 s{sT0}, s{sT0}, 3")
        P.I(f"s_add_u32 s{sT0}, s{sT0}, s{sC}")
        P.I(f"s_mul_i32 s{sT1}, s{sT0}, 3")
        P.I(f"s_lshl_b32 s{sT2}, s{sT0}, 1")
        P.I(f"s_add_u32 s{sT2}, s{sT2}, 11")
        P.I(f"s_cmp_le_u32 s{sT0}, 10")
        P.I(f"s_cselect_b32 s{sP0}, s{sT1}, s{sT2}")
        P.I(f"s_cselect_b32 s{sNP}, 3, 2")
        P.I(f"s_lshr_b32 s{sT0}, s{sRB}, 1")
        P.I(f"s_lshl_b32 s{sT0}, s{sT0}, 2")
        P.I(f"s_add_u32 s{sR32}, s{sT0}, s{sW}")
        P.I(f"s_lshl_b32 s{sT1}, s{sRB}, 2")
        P.I(f"s_sub_u32 s{sT2}, s{sT1}, 1")
        P.I(f"s_max_i32 s{sXT0}, s{sT2}, 0")
        P.I(f"s_getreg_b32 s{sXCC}, hwreg(HW_REG_XCC_ID, 0, 4)")
        P.I(f"s_mov_b32 s{sFAST}, 0")
        P.I(f"s_and_b32 s{sT0}, s{sRT}, 15")
        P.I(f"s_cmp_eq_u32 s{sT0}, 15")
        P.I(f"s_cselect_b32 s{sHALO}, 1, 0")
        P.I(f"s_cmp_lg_u32 s{sISL}, 0")
        P.I(f"s_cbranch_scc1 L_loader")
        a, b, c_ = 20, 21, 22
        L.I(f"v_lshrrev_b32 v{a}, 3, v{vLANE}")
        L.I(f"v_and_b32 v{b}, 6, v{a}")
        L.I(f"v_and_b32 v{c_}, 7, v{vLANE}")
        L.I(f"v_xor_b32 v{c_}, v{c_}, v{b}")
        L.I(f"v_lshlrev_b32 v{c_}, 4, v{c_}")
        L.I(f"s_lshl_b32 s{sT0}, s{sC}, 7")
        L.I(f"v_add_u32 v{c_}, s{sT0}, v{c_}")
        L.I(f"s_lshl_b32 s{sT1}, s{sW}, 3")
        L.I(f"v_add_u32 v{a}, s{sT1}, v{a}")
        L.I(f"v_mul_u32_u24 v{b}, 3072, v{a}")
        L.I(f"v_add_u32 v{vW1OFF}, v{b}, v{c_}")
        L.I(f"v_lshlrev_b32 v{b}, 10, v{a}")
        L.I(f"v_add_u32 v{vW2OFF}, v{b}, v{c_}")
        for ks in range(6):
            self.ld_w1(ks)
        L.I(f"s_and_b32 s{sT0}, s{sW}, 1")
        L.I(f"s_mul_i32 s{sT0}, s{sT0}, {16 * 2752}")
        L.I(f"s_lshl_b32 s{sT1}, s{sP0}, 6")
        L.I(f"s_add_u32 s{sT0}, s{sT0}, s{sT1}")
        for e in range(3):
            L.I(f"v_add_u32 v{a}, {64 * e}, v{vLANE}")
            L.I(f"v_mul_u32_u24 v{b}, 43691, v{a}")
            L.I(f"v_lshrrev_b32 v{b}, 19, v{b}")
            L.I(f"v_mul_u32_u24 v{c_}, 12, v{b}")
            L.I(f"v_sub_u32 v{c_}, v{a}, v{c_}")
            L.I(f"v_mul_u32_u24 v{b}, 2752, v{b}")
            L.I(f"v_lshlrev_b32 v{c_}, 4, v{c_}")
            L.I(f"v_add_u32 v{b}, v{b}, v{c_}")
            L.I(f"v_add_u32 v{b}, s{sT0}, v{b}")
            if e:
                L.I(f"v_subrev_u32 v{vW3OFF+e}, {1024 * e}, v{b}")
            else:
                L.I(f"v_mov_b32 v{vW3OFF}, v{b}")
        L.I(f"v_add_u32 v{vX1OFF}, s{sW1024}, v{vL16}")
        L.I(f"s_add_u32 s{sT0}, s{sW5120}, {XB}")
        L.I(f"v_add_u32 v{vLONE}, s{sT0}, v{vL16}")
        for j in range(4):
            L.I(f"v_mov_b32 v{vLONE + 2 + j}, 0x3f803f80")
        L.I(f"s_mov_b32 s{sMI0}, 0x00010001")
        L.I(f"s_mov_b32 s{sMI0 + 1}, 0x00010001")
        l = self.newlab("nonce")
        P.I(f"s_or_b32 s{sT0}, s2, s{sW}")
        P.I(f"s_cmp_lg_u32 s{sT0}, 0")
        P.I(f"s_cbranch_scc1 {l}")
        P.optional += 1
        P.I(f"s_memrealtime {sp(sTS)}")
        P.raw("    s_waitcnt lgkmcnt(0)")
        P.I(f"s_or_b32 s{sT1}, s{sTS}, 16")
        P.I(f"s_andn2_b32 s{sT1}, s{sT1}, 15")
        P.I(f"v_mov_b32 v20, s{sT1}")
        P.I(f"v_mov_b32 v21, 0")
        P.I(f"s_mov_b64 exec, 1")
        P.I(f"buffer_store_dword v20, v21, {srd(S_DBG)}, 0 offen sc1")
        P.I(f"s_mov_b64 exec, -1")
        P.optional -= 1
        P.label(l)
        P.fence_hazards(2)
        P.I(f"v_and_b32 v{a}, 15, v{vLANE}")
        P.I(f"v_lshlrev_b32 v{a}, 10, v{a}")
        P.I(f"v_lshrrev_b32 v{b}, 4, v{vLANE}")
        P.I(f"v_lshlrev_b32 v{b}, 3, v{b}")
        P.I(f"v_add_u32 v{a}, v{a}, v{b}")
        P.I(f"s_lshl_b32 s{sT0}, s{sRT}, 14")
        P.I(f"s_lshl_b32 s{sT1}, s{sC}, 7")
        P.I(f"s_add_u32 s{sT0}, s{sT0}, s{sT1}")
        for T in range(4):
            P.I(f"buffer_load_dwordx2 {V(vRES + 2 * T, 2)}, v{a}, {srd(S_X0)}, s{sT0} offen offset:{T * 32}")
        d = 23
        P.I(f"v_and_b32 v{a}, 15, v{vLANE}")
        P.I(f"v_lshrrev_b32 v{b}, 4, v{vLANE}")
        P.I(f"v_lshlrev_b32 v{b}, 2, v{b}")
        for r in range(4):
            P.I(f"v_add_u32 v{c_}, {r}, v{b}")
            P.I(f"v_cmp_ge_u32 {sp(sMCUR + 2 * r)}, v{a}, v{c_}")
        P.I(f"v_and_b32 v{d}, 1, v{a}")
        P.I(f"v_add_u32 v{c_}, v{b}, v{d}")
        P.I(f"v_cmp_ge_u32 {sp(sM01)}, v{a}, v{c_}")
        P.I(f"v_add_u32 v{c_}, 2, v{c_}")
        P.I(f"v_cmp_ge_u32 {sp(sM23)}, v{a}, v{c_}")
        P.I(f"v_cmp_eq_u32 {sp(sMI0)}, 0, v{a}")
        P.I(f"s_mov_b64 {sp(sMLO16)}, 0xffff")
        P.I(f"s_mov_b32 s{sK3}, {hex(f2u(GC0 * 0.044715))}")
        P.I(f"s_mov_b32 s{sK3+1}, {hex(f2u(GC0 * 0.044715))}")
        P.I(f"s_mov_b32 s{sONEF}, 1.0")
        P.I(f"s_mov_b32 s{sONEF+1}, 1.0")

    def emit_x(self, layout32, xbase_s, stbase_s, halo_l=None):
        P = self.P
        a, b, t, a2 = 240, 241, 242, 239
        s1, s1b, s2, s2b = 244, 245, 246, 247
        if not layout32:
            P.I(f"s_lshl_b32 s{sT1}, s{sRT}, 14")
            P.I(f"s_lshl_b32 s{sT2}, s{sC}, 11")
            P.I(f"s_add_u32 s{sT1}, s{sT1}, s{sT2}")
            P.I(f"s_add_u32 s{sT1}, s{sT1}, s{xbase_s}")
            av = vL16; ustride = 1024
        else:
            P.I(f"v_lshrrev_b32 v{a2}, 4, v{vLANE}")
            P.I(f"v_lshlrev_b32 v{a2}, 9, v{a2}")
            P.I(f"v_and_b32 v{b}, 15, v{vLANE}")
            P.I(f"v_lshl_add_u32 v{a2}, v{b}, 4, v{a2}")
            P.I(f"s_lshr_b32 s{sT1}, s{sRT}, 1")
            P.I(f"s_lshl_b32 s{sT1}, s{sT1}, 15")
            P.I(f"s_lshl_b32 s{sT2}, s{sC}, 12")
            P.I(f"s_add_u32 s{sT1}, s{sT1}, s{sT2}")
            P.I(f"s_and_b32 s{sT2}, s{sRT}, 1")
            P.I(f"s_lshl_b32 s{sT2}, s{sT2}, 8")
            P.I(f"s_add_u32 s{sT1}, s{sT1}, s{sT2}")
            P.I(f"s_add_u32 s{sT1}, s{sT1}, s{xbase_s}")
            av = a2; ustride = 2048
        self.stores([f"buffer_store_dwordx4 {V(vRES + 4 * u, 4)}, v{av}, {srd(S_WS)}, s{sT1} offen" + (f" offset:{u * ustride}" if u else "") for u in range(2)])
        for x in (s1, s1b, s2, s2b):
            P.I(f"v_mov_b32 v{x}, 0")
        for j in range(8):
            P.I(f"v_dot2c_f32_bf16 v{s1 if j % 2 == 0 else s1b}, s{sONES}, v{vRES + j}")
            P.I(f"v_dot2c_f32_bf16 v{s2 if j % 2 == 0 else s2b}, v{vRES + j}, v{vRES + j}")
        P.I(f"v_lshlrev_b32 v{a}, 6, v{vLANE}")
        P.I(f"s_lshl_b32 s{sT1}, s{sRT}, 10")
        P.I(f"s_lshl_b32 s{sT2}, s{sC}, 3")
        P.I(f"v_add_f32 v{s1}, v{s1}, v{s1b}")
        P.I(f"v_add_f32 v{s1b}, v{s2}, v{s2b}")
        P.I(f"s_add_u32 s{sT1}, s{sT1}, s{sT2}")
        P.I(f"s_add_u32 s{sT1}, s{sT1}, s{stbase_s}")
        for step in ("16", "32"):
            P.I(f"v_mov_b32 v{t}, v{s1}")
            P.I(f"v_mov_b32 v{t + 1}, v{s1b}")
            P.I(f"s_nop 0")
            P.I(f"v_permlane{step}_swap_b32 v{s1}, v{t}")
            P.I(f"v_permlane{step}_swap_b32 v{s1b}, v{t + 1}")
            P.I(f"v_add_f32 v{s1}, v{s1}, v{t}")
            P.I(f"v_add_f32 v{s1b}, v{s1b}, v{t + 1}")
        P.I(f"s_mov_b64 exec, {sp(sMLO16)}")
        self.stores([f"buffer_store_dwordx2 {V(s1, 2)}, v{a}, {srd(S_WS)}, s{sT1} offen"])
        P.I(f"s_mov_b64 exec, -1")
        if halo_l is not None:
            lh = self.newlab("nohc")
            P.I(f"s_cmp_eq_u32 s{sHALO}, 0")
            P.I(f"s_cbranch_scc1 {lh}")
            P.optional += 1
            P.I(f"s_lshr_b32 s{sT1}, s{sRB}, 2")
            P.I(f"s_lshl_b32 s{sT2}, s{sT1}, 14")
            P.I(f"s_lshl_b32 s{sT3}, s{sC}, 11")
            P.I(f"s_add_u32 s{sT2}, s{sT2}, s{sT3}")
            P.I(f"s_add_u32 s{sT2}, s{sT2}, {XHALO + halo_l * 0x20000}")
            for u in range(2):
                off = f" offset:{u * 1024}" if u else ""
                P.I(f"buffer_store_dwordx4 {V(vRES + 4 * u, 4)}, v{vL16}, {srd(S_WS)}, s{sT2} offen{off} sc1")
            P.I(f"s_lshl_b32 s{sT2}, s{sT1}, 10")
            P.I(f"s_lshl_b32 s{sT3}, s{sC}, 3")
            P.I(f"s_add_u32 s{sT2}, s{sT2}, s{sT3}")
            P.I(f"s_add_u32 s{sT2}, s{sT2}, {STHALO + halo_l * 0x2000}")
            P.I(f"s_mov_b64 exec, {sp(sMLO16)}")
            P.I(f"buffer_store_dwordx2 {V(s1, 2)}, v{a}, {srd(S_WS)}, s{sT2} offen sc1")
            P.I(f"s_mov_b64 exec, -1")
            P.optional -= 1
            P.label(lh)
            P.fence_hazards(2)

    def phase1(self, part):
        P = self.P; L = self.L
        vB1, vB1h, vX, vXh = 16, 17, 18, 19
        vST = 20
        accQ, accK, accV = 40, 60, 80
        XF = [100, 120]
        WF = [140, 152]
        vONES = 164
        a = 166
        c_, d, e_ = 168, 169, 170
        SI = 172
        CI = 182
        MJ, RJ = 190, 210
        PM, PMf = 230, 234
        if part == 'pre':
            P.I(f"v_lshrrev_b32 v{c_}, 4, v{vLANE}")
            P.I(f"v_bfe_u32 v{d}, v{vLANE}, 2, 2")
            P.I(f"v_and_b32 v{e_}, 1, v{c_}")
            P.I(f"v_lshl_add_u32 v{e_}, v{e_}, 2, v{d}")
            P.I(f"v_and_b32 v{d}, 6, v{e_}")
            P.I(f"s_lshl_b32 s{sT1}, s{sW}, 1")
            P.I(f"v_xor_b32 v{d}, s{sT1}, v{d}")
            P.I(f"v_bfe_u32 v{vB1}, v{vLANE}, 1, 1")
            P.I(f"v_or_b32 v{d}, v{d}, v{vB1}")
            P.I(f"v_lshlrev_b32 v{d}, 4, v{d}")
            P.I(f"v_lshl_add_u32 v{d}, v{e_}, 7, v{d}")
            P.I(f"v_lshrrev_b32 v{c_}, 1, v{c_}")
            P.I(f"v_mul_u32_u24 v{c_}, 3072, v{c_}")
            P.I(f"v_add_u32 v{d}, v{d}, v{c_}")
            P.I(f"v_and_b32 v{c_}, 1, v{vLANE}")
            P.I(f"v_lshl_add_u32 v{vB1}, v{c_}, 3, v{d}")
            P.I(f"v_add_u32 v{vB1h}, 0x10000, v{vB1}")
            P.I(f"v_add_u32 v{vX}, {XB}, v{vL16}")
            P.I(f"v_add_u32 v{vXh}, {XB + 0x10000}, v{vL16}")
            P.I(f"v_mov_b32 v{vONES}, 0x3f803f80")
            for r in range(60):
                P.I(f"v_mov_b32 v{accQ + r}, 0")
            P.I(f"v_and_b32 v{a}, 15, v{vLANE}")
            P.I(f"v_lshlrev_b32 v{a}, 6, v{a}")
            P.I(f"v_lshrrev_b32 v{c_}, 4, v{vLANE}")
            P.I(f"v_lshl_add_u32 v{a}, v{c_}, 4, v{a}")
            P.I(f"v_and_b32 v{c_}, 1, v{vLANE}")
            P.I(f"v_cmp_eq_u32 vcc, 0, v{c_}")
            P.I(f"v_mov_b32 v{d}, {NEG}")
            P.I(f"v_cndmask_b32 v{PM}, v{d}, 0, vcc")
            P.I(f"v_cndmask_b32 v{PM + 1}, 0, v{d}, vcc")
            P.I(f"v_mov_b32 v{PM + 2}, v{PM}")
            P.I(f"v_mov_b32 v{PM + 3}, v{PM + 1}")
            P.I(f"s_cmp_eq_u32 s{sRB}, 0")
            P.I(f"s_cselect_b32 s{sT1}, {NEG}, 0")
            for r in range(4):
                P.I(f"v_mov_b32 v{c_}, s{sT1}")
                P.I(f"v_cndmask_b32 v{c_}, v{c_}, 0, {sp(sMCUR + 2 * r)}")
                P.I(f"v_min_f32 v{PMf + r}, v{c_}, v{PM + r}")
            return
        if part == 'touch':
            lsk = self.newlab("ntch1")
            P.I(f"s_cmp_lg_u32 s{sW}, 1")
            P.I(f"s_cbranch_scc1 {lsk}")
            P.optional += 1
            self.touch16(P, 240, 241, OBUF)
            self.touch32(P, 242, 243)
            self.touch_stats(P, 244, 245, STMID)
            P.optional -= 1
            P.label(lsk)
            P.fence_hazards(2)
            return
        lST = 20; la, lc = 40, 41
        if part == 'lpre':
            L.I(f"s_lshl_b32 s{sXB0}, s{sXT0}, 14")
            L.I(f"s_add_u32 s{sXB0}, s{sXB0}, s{sL2M}")
            L.I(f"s_lshr_b32 s{sT1}, s{sRB}, 2")
            L.I(f"s_lshl_b32 s{sT1}, s{sT1}, 14")
            L.I(f"s_lshr_b32 s{sT2}, s{sL2M}, 4")
            L.I(f"s_add_u32 s{sT1}, s{sT1}, s{sT2}")
            L.I(f"s_add_u32 s{sT1}, s{sT1}, {XHALO - XIN - 0x4000}")
            L.I(f"s_and_b32 s{sT2}, s{sRB}, 3")
            L.I(f"s_cmp_eq_u32 s{sT2}, 0")
            L.I(f"s_cselect_b32 s{sT1}, s{sT1}, s{sXB0}")
            L.I(f"s_cmp_eq_u32 s{sRB}, 0")
            L.I(f"s_cselect_b32 s{sXB0}, s{sXB0}, s{sT1}")
            L.I(f"s_lshl_b32 s{sXB1}, s{sRB}, 16")
            L.I(f"s_add_u32 s{sXB1}, s{sXB1}, s{sL2M}")
            L.I(f"s_lshl_b32 s{sT1}, s{sXT0}, 10")
            L.I(f"s_add_u32 s{sT1}, s{sT1}, s{sLST}")
            L.I(f"s_add_u32 s{sT1}, s{sT1}, {STIN}")
            L.I(f"s_lshr_b32 s{sT2}, s{sRB}, 2")
            L.I(f"s_lshl_b32 s{sT2}, s{sT2}, 10")
            L.I(f"s_lshr_b32 s{sT3}, s{sL2M}, 8")
            L.I(f"s_add_u32 s{sT2}, s{sT2}, s{sT3}")
            L.I(f"s_add_u32 s{sT2}, s{sT2}, {STHALO - 0x400}")
            L.I(f"s_and_b32 s{sT3}, s{sRB}, 3")
            L.I(f"s_cmp_eq_u32 s{sT3}, 0")
            L.I(f"s_cselect_b32 s{sT2}, s{sT2}, s{sT1}")
            L.I(f"s_cmp_eq_u32 s{sRB}, 0")
            L.I(f"s_cselect_b32 s{sT1}, s{sT1}, s{sT2}")
            L.I(f"s_lshl_b32 s{sT2}, s{sRB}, 12")
            L.I(f"s_add_u32 s{sT2}, s{sT2}, s{sLST}")
            L.I(f"s_add_u32 s{sT2}, s{sT2}, {STIN}")
            L.I(f"s_cmp_eq_u32 s{sW}, 0")
            L.I(f"s_cselect_b32 s{sT5}, s{sT2}, s{sT1}")
            L.I(f"s_cselect_b32 s{sT3}, 63, 15")
            L.I(f"s_cselect_b32 s{sT4}, 64, 0")
            L.I(f"s_add_u32 s{sT4}, s{sT4}, {MISC}")
            L.I(f"v_and_b32 v{lc}, s{sT3}, v{vLANE}")
            L.I(f"v_lshlrev_b32 v{la}, 6, v{lc}")
            L.I(f"v_lshlrev_b32 v{lc}, 2, v{lc}")
            L.I(f"v_add_u32 v{lc}, s{sT4}, v{lc}")
            return
        def xdma(m):
            for t in range(5):
                L.I(f"s_add_u32 m0, s{sW5120}, {XB + m * 20480 + t * 1024}")
                if t == 0:
                    L.I(f"s_add_u32 s{sBG}, s{sXB0}, {XIN + m * 4096}")
                else:
                    L.I(f"s_add_u32 s{sBG}, s{sXB1}, {XIN + (t - 1) * 16384 + m * 4096}")
                L.I(f"buffer_load_dwordx4 v{vX1OFF}, {srd(S_WS)}, s{sBG} offen sc1 lds", tag=('X1', m))
        xdma(0)
        lsk = self.newlab("nostat")
        L.I(f"s_cmp_gt_u32 s{sW}, 1")
        L.I(f"s_cbranch_scc1 {lsk}")
        L.optional += 1
        for j in range(4):
            L.I(f"buffer_load_dwordx4 {V(lST + 4 * j, 4)}, v{la}, {srd(S_WS)}, s{sT5} offen offset:{16 * j} sc1")
        L.optional -= 1
        L.label(lsk)
        L.fence_hazards(2)
        for m in range(1, 4):
            xdma(m)
        def stats_finish():
            lsk = self.newlab("nostat2")
            L.I(f"s_cmp_gt_u32 s{sW}, 1")
            L.I(f"s_cbranch_scc1 {lsk}")
            L.optional += 1
            for j in range(4):
                pass
            L.I(f"v_pk_add_f32 {V(lST, 2)}, {V(lST, 2)}, {V(lST + 2, 2)}")
            L.I(f"v_pk_add_f32 {V(lST + 4, 2)}, {V(lST + 4, 2)}, {V(lST + 6, 2)}")
            L.I(f"v_pk_add_f32 {V(lST + 8, 2)}, {V(lST + 8, 2)}, {V(lST + 10, 2)}")
            L.I(f"v_pk_add_f32 {V(lST + 12, 2)}, {V(lST + 12, 2)}, {V(lST + 14, 2)}")
            L.I(f"v_pk_add_f32 {V(lST, 2)}, {V(lST, 2)}, {V(lST + 4, 2)}")
            L.I(f"v_pk_add_f32 {V(lST + 8, 2)}, {V(lST + 8, 2)}, {V(lST + 12, 2)}")
            L.I(f"v_pk_add_f32 {V(lST, 2)}, {V(lST, 2)}, {V(lST + 8, 2)}")
            L.I(f"v_mul_f32 v{lST}, {hex(f2u(-1.0/512))}, v{lST}")
            L.I(f"v_mul_f32 v{lST + 1}, {hex(f2u(1.0/512))}, v{lST + 1}")
            L.I(f"v_fma_f32 v{lST + 1}, -v{lST}, v{lST}, v{lST + 1}")
            L.I(f"v_max_f32 v{lST + 1}, 0, v{lST + 1}")
            L.I(f"v_add_f32 v{lST + 1}, {hex(f2u(1e-5))}, v{lST + 1}")
            L.I(f"v_rsq_f32 v{lST + 1}, v{lST + 1}")
            L.I(f"ds_write_b32 v{lc}, v{lST}")
            L.I(f"ds_write_b32 v{lc}, v{lST + 1} offset:512")
            L.raw("    s_waitcnt lgkmcnt(0)")
            L.optional -= 1
            L.label(lsk)
            L.fence_hazards(2)

        def loads(ks):
            bf = ks & 1
            Ld = []
            def wread(mat):
                base = self.w1_page(ks) * PAGE + mat * 1024
                for half in range(2):
                    off = base + half * 6144
                    reg = vB1 if off < 65536 else vB1h
                    Ld.append(f"ds_read_b64_tr_b16 {V(WF[bf] + 4 * mat + 2 * half, 2)}, v{reg} offset:{off & 0xffff}")
            def xread(t):
                off = (ks * 5 + t) * 1024
                reg = vX if off < 65536 else vXh
                Ld.append(f"ds_read_b128 {V(XF[bf] + 4 * t, 4)}, v{reg} offset:{off & 0xffff}")
            wread(1); xread(1); wread(2); wread(0); xread(0); xread(2); xread(3); xread(4)
            return Ld
        def mfmas(ks):
            bf = ks & 1
            M = []
            for t in (1, 2, 3, 4, 0):
                x = V(XF[bf] + 4 * t, 4)
                M.append(f"v_mfma_f32_16x16x32_bf16 {V(accK + 4 * t, 4)}, {V(WF[bf] + 4, 4)}, {x}, {V(accK + 4 * t, 4)}")
                M.append(f"v_mfma_f32_16x16x32_bf16 {V(accV + 4 * t, 4)}, {x}, {V(WF[bf] + 8, 4)}, {V(accV + 4 * t, 4)}")
                M.append(f"v_mfma_f32_16x16x32_bf16 {V(accQ + 4 * t, 4)}, {V(WF[bf], 4)}, {x}, {V(accQ + 4 * t, 4)}")
            return M
        def xwait(m):
            L.wait_vm_tag(lambda t: t[0] == 'X1' and t[1] <= m)
            L.I(f"s_mov_b64 exec, {sp(sMI0)}")
            L.I(f"ds_write_b128 v{vLONE}, {V(vLONE + 2, 4)} offset:{m * 20480}")
            L.I(f"s_mov_b64 exec, -1")
            L.wait_lg_all()
        def stage_barrier(u):
            self.wait_units('W1', u + 2)
            if (u + 1) % 4 == 0:
                xwait((u + 1) >> 2)
            P.wait_lg_all()
            self.bar()
            if u <= 9:
                self.ld_w1(u + 5); self.ld_w1(u + 6)
            elif u == 11:
                for k in range(0, 6): self.ld_w2(k)
            elif u == 13:
                for k in range(6, 12): self.ld_w2(k)
            if u == 3:
                stats_finish()
            self.ts(3 + (u >> 1), fine=3)
        self.wait_units('W1', 1)
        xwait(0)
        self.bar()
        for x in loads(0):
            P.I(x)
        for ks in range(16):
            M = mfmas(ks)
            bf = ks & 1
            if ks & 1 and ks < 15:
                stage_barrier(ks)
            nxt = loads(ks + 1) if ks + 1 < 16 else []
            for n, m in enumerate(M):
                if n == 0:
                    P.need(regs(WF[bf], 12) + regs(XF[bf] + 4, 4) + regs(XF[bf], 4))
                if n == 3:
                    P.need(regs(XF[bf] + 8, 12))
                P.I(m)
                if nxt:
                    P.I(nxt.pop(0))
                elif ks + 1 < 16 or True:
                    pass
                if n in (11,):
                    pass
                if 7 <= n <= 10:
                    pass
        P.I(f"v_and_b32 v{c_}, 15, v{vLANE}")
        P.I(f"v_lshl_add_u32 v{c_}, v{c_}, 2, 0")
        P.I(f"v_add_u32 v{c_}, {MISC}, v{c_}")
        P.I(f"v_lshrrev_b32 v{d}, 4, v{vLANE}")
        P.I(f"v_lshlrev_b32 v{d}, 4, v{d}")
        P.I(f"v_add_u32 v{d}, {MISC}, v{d}")
        for t in range(5):
            P.I(f"ds_read2_b32 {V(SI + 2 * t, 2)}, v{c_} offset0:{t * 16} offset1:{128 + t * 16}")
        for t in range(5):
            P.I(f"ds_read_b128 {V(MJ + 4 * t, 4)}, v{d} offset:{t * 64}")
            P.I(f"ds_read_b128 {V(RJ + 4 * t, 4)}, v{d} offset:{512 + t * 64}")
        P.wait_lg_all()
        self.bar()
        for t in range(1, 5):
            P.I(f"v_mul_f32 v{CI + 2 * (t - 1)}, {hex(f2u(0.25 * 1.4426950408889634))}, v{SI + 2 * t + 1}")
        for k in range(12, 16):
            self.ld_w2(k)
        for u in range(4):
            self.ld_w3(u)
        self.ts(2)
        csQ, csK, csV = 100, 104, 108
        for r in range(4):
            P.I(f"v_mov_b32_dpp v{csQ + r}, v{accQ + r} row_newbcast:0 row_mask:0xf bank_mask:0xf")
            P.I(f"v_mov_b32_dpp v{csK + r}, v{accK + r} row_newbcast:0 row_mask:0xf bank_mask:0xf")
        P.I(f"v_mov_b32 v{csV}, v{accV}")
        P.I(f"v_mov_b32 v{csV + 1}, v{accV}")
        Qp, Kp, Vp = 20, 30, 110
        BL = "op_sel:[0,0,0] op_sel_hi:[1,0,1]"
        for t in range(5):
            for j in range(2):
                P.I(f"v_pk_fma_f32 {V(accK + 4 * t + 2 * j, 2)}, {V(csK + 2 * j, 2)}, {V(SI + 2 * t, 2)}, {V(accK + 4 * t + 2 * j, 2)} {BL}")
        P.I(f"v_permlane16_swap_b32 v{csV}, v{csV + 1}")
        for t in range(1, 5):
            for j in range(2):
                P.I(f"v_pk_fma_f32 {V(accQ + 4 * t + 2 * j, 2)}, {V(csQ + 2 * j, 2)}, {V(SI + 2 * t, 2)}, {V(accQ + 4 * t + 2 * j, 2)} {BL}")
        P.I(f"v_mov_b32 v{csV + 1}, v{csV}")
        for t in range(5):
            for j in range(2):
                P.I(f"v_pk_mul_f32 {V(accK + 4 * t + 2 * j, 2)}, {V(accK + 4 * t + 2 * j, 2)}, {V(SI + 2 * t, 2)} op_sel:[0,1] op_sel_hi:[1,1]")
        P.I(f"v_permlane32_swap_b32 v{csV}, v{csV + 1}")
        for t in range(1, 5):
            for j in range(2):
                P.I(f"v_cvt_pk_bf16_f32 v{Qp + 2 * (t - 1) + j}, v{accQ + 4 * t + 2 * j}, v{accQ + 4 * t + 2 * j + 1}")
        for t in range(5):
            for j in range(2):
                P.I(f"v_cvt_pk_bf16_f32 v{Kp + 2 * t + j}, v{accK + 4 * t + 2 * j}, v{accK + 4 * t + 2 * j + 1}")
        SP, SC = 40, 60
        for t in range(1, 5):
            q = V(Qp + 2 * (t - 1), 2)
            P.I(f"v_mfma_f32_16x16x16_bf16 {V(SP + 4 * t, 4)}, {V(Kp + 2 * (t - 1), 2)}, {q}, 0")
            P.I(f"v_mfma_f32_16x16x16_bf16 {V(SC + 4 * t, 4)}, {V(Kp + 2 * t, 2)}, {q}, 0")
        for t in range(5):
            for j in range(2):
                P.I(f"v_pk_fma_f32 {V(accV + 4 * t + 2 * j, 2)}, {V(MJ + 4 * t + 2 * j, 2)}, {V(csV, 2)}, {V(accV + 4 * t + 2 * j, 2)} {BL}")
        for t in range(5):
            for j in range(2):
                P.I(f"v_pk_mul_f32 {V(accV + 4 * t + 2 * j, 2)}, {V(accV + 4 * t + 2 * j, 2)}, {V(RJ + 4 * t + 2 * j, 2)}")
        for t in range(5):
            for j in range(2):
                P.I(f"v_cvt_pk_bf16_f32 v{Vp + 2 * t + j}, v{accV + 4 * t + 2 * j}, v{accV + 4 * t + 2 * j + 1}")
        Z = 120
        MX = [0, 140, 142, 144, 146]; TM = [0, 148, 149, 150, 151]; SM = [0, 152, 153, 154, 155]
        def z(t, r): return Z + 4 * (t - 1) + r
        for t in range(1, 5):
            for r in range(4):
                P.I(f"v_cndmask_b32 v{z(t, r)}, v{SP + 4 * t + r}, v{SC + 4 * t + r}, {sp(sMCUR + 2 * r)}")
        for t in range(1, 5):
            pm = PMf if t == 1 else PM
            for j in range(2):
                P.I(f"v_pk_fma_f32 {V(z(t, 2 * j), 2)}, {V(z(t, 2 * j), 2)}, {V(CI + 2 * (t - 1), 2)}, {V(pm + 2 * j, 2)} {BL}")
        for t in range(1, 5):
            P.I(f"v_max3_f32 v{MX[t]}, v{z(t, 0)}, v{z(t, 1)}, v{z(t, 2)}")
        for t in range(1, 5):
            P.I(f"v_max_f32 v{MX[t]}, v{MX[t]}, v{z(t, 3)}")
        for step in ("16", "32"):
            for t in range(1, 5):
                P.I(f"v_mov_b32 v{TM[t]}, v{MX[t]}")
            for t in range(1, 5):
                P.I(f"v_permlane{step}_swap_b32 v{MX[t]}, v{TM[t]}")
            for t in range(1, 5):
                P.I(f"v_max_f32 v{MX[t]}, v{MX[t]}, v{TM[t]}")
        for t in range(1, 5):
            for j in range(2):
                P.I(f"v_pk_add_f32 {V(z(t, 2 * j), 2)}, {V(z(t, 2 * j), 2)}, {V(MX[t], 2)} op_sel_hi:[1,0] neg_lo:[0,1] neg_hi:[0,1]")
        for t in range(1, 5):
            for r in range(4):
                P.I(f"v_exp_f32 v{z(t, r)}, v{z(t, r)}")
        PB = 40
        pk = [0, 156, 158, 160, 162]
        for t in range(1, 5):
            P.I(f"v_add_f32 v{SM[t]}, v{z(t, 0)}, v{z(t, 1)}")
            P.I(f"v_add_f32 v{TM[t]}, v{z(t, 2)}, v{z(t, 3)}")
        for t in range(1, 5):
            P.I(f"v_cvt_pk_bf16_f32 v{pk[t]}, v{z(t, 0)}, v{z(t, 1)}")
            P.I(f"v_cvt_pk_bf16_f32 v{pk[t] + 1}, v{z(t, 2)}, v{z(t, 3)}")
            P.I(f"v_add_f32 v{SM[t]}, v{SM[t]}, v{TM[t]}")
        for t in range(1, 5):
            P.I(f"v_cndmask_b32 v{PB + 4 * t + 0}, v{pk[t]}, 0, {sp(sM01)}")
            P.I(f"v_cndmask_b32 v{PB + 4 * t + 1}, v{pk[t] + 1}, 0, {sp(sM23)}")
            P.I(f"v_cndmask_b32 v{PB + 4 * t + 2}, 0, v{pk[t]}, {sp(sM01)}")
            P.I(f"v_cndmask_b32 v{PB + 4 * t + 3}, 0, v{pk[t] + 1}, {sp(sM23)}")
        O = 60
        for t in range(1, 5):
            P.I(f"v_mfma_f32_16x16x32_bf16 {V(O + 4 * t, 4)}, {V(Vp + 2 * (t - 1), 4)}, {V(PB + 4 * t, 4)}, 0")
        for step in ("16", "32"):
            for t in range(1, 5):
                P.I(f"v_mov_b32 v{TM[t]}, v{SM[t]}")
            for t in range(1, 5):
                P.I(f"v_permlane{step}_swap_b32 v{SM[t]}, v{TM[t]}")
            for t in range(1, 5):
                P.I(f"v_add_f32 v{SM[t]}, v{SM[t]}, v{TM[t]}")
        for t in range(1, 5):
            P.I(f"v_rcp_f32 v{MX[t]}, v{SM[t]}")
        P.I(f"s_and_b32 s{sT1}, s{sW}, 1")
        P.I(f"s_lshl_b32 s{sT1}, s{sT1}, 3")
        P.I(f"v_add_u32 v{c_}, s{sT1}, v{vL16}")
        P.I(f"s_lshl_b32 s{sT1}, s{sRB}, 16")
        P.I(f"s_lshl_b32 s{sT2}, s{sC}, 11")
        P.I(f"s_add_u32 s{sT1}, s{sT1}, s{sT2}")
        P.I(f"s_lshr_b32 s{sT2}, s{sW}, 1")
        P.I(f"s_lshl_b32 s{sT2}, s{sT2}, 10")
        P.I(f"s_add_u32 s{sT1}, s{sT1}, s{sT2}")
        P.I(f"s_add_u32 s{sT1}, s{sT1}, s{sL2M}")
        P.I(f"s_add_u32 s{sT1}, s{sT1}, {OBUF}")
        Op = 84
        for t in range(1, 5):
            for j in range(2):
                P.I(f"v_pk_mul_f32 {V(O + 4 * t + 2 * j, 2)}, {V(O + 4 * t + 2 * j, 2)}, {V(MX[t], 2)} op_sel_hi:[1,0]")
            P.I(f"v_cvt_pk_bf16_f32 v{Op + 2 * t}, v{O + 4 * t}, v{O + 4 * t + 1}")
            P.I(f"v_cvt_pk_bf16_f32 v{Op + 2 * t + 1}, v{O + 4 * t + 2}, v{O + 4 * t + 3}")
        lines = []
        for t in range(1, 5):
            if t > 1:
                lines.append(f"s_add_u32 s{sT2}, s{sT1}, {16384 * (t - 1)}")
            lines.append(f"buffer_store_dwordx2 {V(Op + 2 * t, 2)}, v{c_}, {srd(S_WS)}, s{sT1 if t == 1 else sT2} offen")
        self.stores(lines)

    def gemm_res(self, which, part):
        P = self.P; L = self.L
        nks = 16 if which == 2 else 43
        page = (lambda k: self.W2_PAGES[k]) if which == 2 else self.w4_page
        vB = 16
        acc = 32
        WR = 48; NR = 8; LA = 6
        a, b, c_, d, e_ = 80, 81, 82, 83, 84
        XR = 96; NX = 32
        if part == 'pre':
            P.I(f"v_lshrrev_b32 v{a}, 4, v{vLANE}")
            P.I(f"v_bfe_u32 v{b}, v{vLANE}, 2, 2")
            P.I(f"v_and_b32 v{c_}, 1, v{a}")
            P.I(f"v_lshl_add_u32 v{c_}, v{c_}, 2, v{b}")
            P.I(f"v_and_b32 v{d}, 6, v{c_}")
            P.I(f"v_lshlrev_b32 v{c_}, 7, v{c_}")
            P.I(f"v_lshrrev_b32 v{a}, 1, v{a}")
            P.I(f"v_lshlrev_b32 v{a}, {10 if which == 2 else 11}, v{a}")
            P.I(f"v_add_u32 v{c_}, v{c_}, v{a}")
            P.I(f"v_and_b32 v{b}, 1, v{vLANE}")
            P.I(f"v_lshl_add_u32 v{c_}, v{b}, 3, v{c_}")
            P.I(f"v_bfe_u32 v{b}, v{vLANE}, 1, 1")
            for T in range(4):
                P.I(f"v_xor_b32 v{e_}, {2 * T}, v{d}")
                P.I(f"v_or_b32 v{e_}, v{e_}, v{b}")
                P.I(f"v_lshl_add_u32 v{vB + 3 * T}, v{e_}, 4, v{c_}")
                P.I(f"v_add_u32 v{vB + 3 * T + 1}, 0x10000, v{vB + 3 * T}")
                if which == 4:
                    P.I(f"v_add_u32 v{vB + 3 * T + 2}, 0x20000, v{vB + 3 * T}")
            for r in range(16):
                P.I(f"v_mov_b32 v{acc + r}, 0")
            if which == 2:
                P.I(f"s_lshl_b32 s{sT5}, s{sRT}, 14")
                P.I(f"s_add_u32 s{sT5}, s{sT5}, s{sL2M}")
                P.I(f"s_add_u32 s{sT5}, s{sT5}, {OBUF}")
            else:
                P.I(f"s_mul_i32 s{sT5}, s{sRT}, {43 * 1024}")
                P.I(f"s_add_u32 s{sT5}, s{sT5}, s{sLH}")
                P.I(f"s_add_u32 s{sT5}, s{sT5}, {HBUF}")
            return
        self._xn = 0
        def xload():
            k = self._xn
            if k >= nks: return
            self._xn += 1
            if k % 4 == 0:
                P.I(f"s_add_u32 s{sT1}, s{sT5}, {(k // 4) * 4096}")
            off = f" offset:{(k % 4) * 1024}" if k % 4 else ""
            P.I(f"buffer_load_dwordx4 {V(XR + 4 * (k % NX), 4)}, v{vL16}, {srd(S_WS)}, s{sT1} offen{off} sc1", tag=(f'X{which}', k))
        for _ in range(self.init24):
            xload()
        half_off = 2048 if which == 2 else 1024
        frags = [(k, T) for k in range(nks) for T in range(4)]
        def reads(n):
            k, T = frags[n]
            Ld = []
            for half in range(2):
                off = page(k) * PAGE + half * half_off
                Ld.append(f"ds_read_b64_tr_b16 {V(WR + 4 * (n % NR) + 2 * half, 2)}, v{vB + 3 * T + (off >> 16)} offset:{off & 0xffff}")
            return Ld
        def hook(k):
            if which == 2 and k == 5:
                self.bar()
                self.ld_w3(4); self.ld_w3(5); self.ld_w4(0); self.ld_w4(1)
                if self.touch:
                    lsk = self.newlab("ntch")
                    L.I(f"s_cmp_lg_u32 s{sW}, 3")
                    L.I(f"s_cbranch_scc1 {lsk}")
                    L.optional += 1
                    self.touch_h(L, 60, 61, 62)
                    self.touch16(L, 60, 66, XIN + 0x200000)
                    self.touch_stats(L, 60, 67, STIN + 0x20000)
                    L.optional -= 1
                    L.label(lsk)
                    L.fence_hazards(2)
            if which == 4:
                if k == 8:
                    self.bar()
                    for kk in range(38, 43):
                        self.ld_w4(kk)
                if k == 28:
                    self.wait_units('W4', 42)
                    self.bar()
                    lsk = self.newlab("lnow1")
                    L.I(f"s_cmp_lg_u32 s{sLAYER}, 0")
                    L.I(f"s_cbranch_scc1 {lsk}")
                    L.optional += 1
                    for ks in range(6):
                        self.ld_w1(ks)
                    L.optional -= 1
                    L.label(lsk)
                    L.fence_hazards(2)
        for n in range(LA):
            if frags[n][1] == 0:
                hook(frags[n][0])
            for x in reads(n):
                P.I(x)
        for n, (k, T) in enumerate(frags):
            rd = []
            if n + LA < len(frags):
                if frags[n + LA][1] == 0:
                    hook(frags[n + LA][0])
                rd = reads(n + LA)
            xr = XR + 4 * (k % NX)
            if T in (0, 2):
                P.need([f"v{WR + 4 * ((n + j) % NR) + i}" for j in range(2) for i in range(4)] + regs(xr, 4))
            if T == 0 and which == 2 and k in (0, 2, 4, 6, 8, 10, 12):
                self.ts(9 + k // 2, fine=4)
            if T == 0 and which == 4 and k in (0, 4, 8, 16, 24, 32, 40):
                self.ts(9 + (0, 4, 8, 16, 24, 32, 40).index(k), fine=5)
            P.I(f"v_mfma_f32_16x16x32_bf16 {V(acc + 4 * T, 4)}, {V(WR + 4 * (n % NR), 4)}, {V(xr, 4)}, {V(acc + 4 * T, 4)}")
            for x in rd:
                P.I(x)
            if (T == 1 or (T == 3 and k % 2 == 0 and self._xn < k + 12)) and self._xn <= k + NX - 1:
                xload()
        P.wait_lg_all()
        self.bar()
        self.ts(4 if which == 2 else 8)
        t0 = 80
        for T in range(4):
            for j in range(2):
                rr = vRES + 2 * T + j
                tt = t0 + 2 * ((2 * T + j) % 4)
                P.I(f"v_lshlrev_b32 v{tt}, 16, v{rr}")
                P.I(f"v_and_b32 v{tt + 1}, 0xffff0000, v{rr}")
                P.I(f"v_pk_add_f32 {V(tt, 2)}, {V(tt, 2)}, {V(acc + 4 * T + 2 * j, 2)}")
                P.I(f"v_cvt_pk_bf16_f32 v{rr}, v{tt}, v{tt + 1}")
        if which == 2:
            P.I(f"s_add_u32 s{sT3}, s{sL2M}, {XMID}")
            P.I(f"s_add_u32 s{sT4}, s{sLST}, {STMID}")
            self.emit_x(True, sT3, sT4)
        else:
            self.lfin = self.newlab("final")
            P.I(f"s_cmp_lg_u32 s{sLAYER}, 0")
            P.I(f"s_cbranch_scc1 {self.lfin}")
            L.I(f"s_cmp_lg_u32 s{sLAYER}, 0")
            L.I(f"s_cbranch_scc1 L_lend")
            P.I(f"s_add_u32 s{sT3}, s{sL2M}, {XIN + 0x200000}")
            P.I(f"s_add_u32 s{sT4}, s{sLST}, {STIN + 0x20000}")
            self.emit_x(False, sT3, sT4, halo_l=1)

    def final_store(self):
        P = self.P
        P.label(self.lfin)
        P.fence_hazards(4)
        a, b = 80, 81
        P.I(f"v_and_b32 v{a}, 15, v{vLANE}")
        P.I(f"v_lshlrev_b32 v{a}, 10, v{a}")
        P.I(f"v_lshrrev_b32 v{b}, 4, v{vLANE}")
        P.I(f"v_lshlrev_b32 v{b}, 3, v{b}")
        P.I(f"v_add_u32 v{a}, v{a}, v{b}")
        P.I(f"s_lshl_b32 s{sT0}, s{sRT}, 14")
        P.I(f"s_lshl_b32 s{sT1}, s{sC}, 7")
        P.I(f"s_add_u32 s{sT0}, s{sT0}, s{sT1}")
        for T in range(4):
            P.I(f"buffer_store_dwordx2 {V(vRES + 2 * T, 2)}, v{a}, {srd(S_OUT)}, s{sT0} offen offset:{T * 32}")
        self.ts(9)

    def phase3(self, part):
        P = self.P; L = self.L
        vB3 = 16
        vRS, vNMR = 20, 21
        vST = 24
        tmps = 32
        WR = 40
        XR = 88
        acc = 152
        a, b, c_ = 32, 33, 34
        if part == 'pre':
            P.I(f"v_lshrrev_b32 v{a}, 5, v{vLANE}")
            P.I(f"v_bfe_u32 v{b}, v{vLANE}, 2, 2")
            P.I(f"v_lshl_add_u32 v{a}, v{a}, 2, v{b}")
            P.I(f"v_mul_u32_u24 v{a}, 192, v{a}")
            P.I(f"v_bfe_u32 v{b}, v{vLANE}, 4, 1")
            P.I(f"v_lshl_add_u32 v{a}, v{b}, 5, v{a}")
            P.I(f"v_and_b32 v{b}, 3, v{vLANE}")
            P.I(f"v_lshl_add_u32 v{vB3}, v{b}, 3, v{a}")
            P.I(f"v_add_u32 v{vB3 + 1}, 0x10000, v{vB3}")
            P.I(f"v_add_u32 v{vB3 + 2}, 0x20000, v{vB3}")
            for r in range(96):
                P.I(f"v_mov_b32 v{acc + r}, 0")
            P.I(f"v_and_b32 v{a}, 31, v{vLANE}")
            P.I(f"v_lshlrev_b32 v{a}, 6, v{a}")
            P.I(f"v_lshrrev_b32 v{b}, 5, v{vLANE}")
            P.I(f"v_lshl_add_u32 v{a}, v{b}, 5, v{a}")
            P.I(f"s_lshl_b32 s{sT5}, s{sR32}, 11")
            P.I(f"s_add_u32 s{sT5}, s{sT5}, s{sLST}")
            P.I(f"s_add_u32 s{sT5}, s{sT5}, {STMID}")
            P.I(f"s_lshl_b32 s{sT4}, s{sR32}, 15")
            P.I(f"s_add_u32 s{sT4}, s{sT4}, s{sL2M}")
            P.I(f"s_add_u32 s{sT4}, s{sT4}, {XMID}")
            return
        P.I(f"buffer_load_dwordx4 {V(vST, 4)}, v{a}, {srd(S_WS)}, s{sT5} offen sc1")
        P.I(f"buffer_load_dwordx4 {V(vST + 4, 4)}, v{a}, {srd(S_WS)}, s{sT5} offen offset:16 sc1")
        self._xn = 0
        def xload():
            n = self._xn
            if n >= 32: return
            self._xn += 1
            if n % 4 == 0:
                P.I(f"s_add_u32 s{sT3}, s{sT4}, {(n // 4) * 4096}")
            off = f" offset:{(n % 4) * 1024}" if n % 4 else ""
            P.I(f"buffer_load_dwordx4 {V(XR + 4 * (n % 16), 4)}, v{vL16}, {srd(S_WS)}, s{sT3} offen{off} sc1", tag=('X3', n))
        for n in range(self.init3):
            xload()
        for j in (2, 4, 6):
            P.I(f"v_add_f32 v{vST}, v{vST}, v{vST + j}")
            P.I(f"v_add_f32 v{vST + 1}, v{vST + 1}, v{vST + j + 1}")
        P.I(f"v_mov_b32 v{a}, v{vST}")
        P.I(f"v_mov_b32 v{b}, v{vST + 1}")
        P.I(f"s_nop 0")
        P.I(f"v_permlane32_swap_b32 v{vST}, v{a}")
        P.I(f"v_permlane32_swap_b32 v{vST + 1}, v{b}")
        P.I(f"v_add_f32 v{vST}, v{vST}, v{a}")
        P.I(f"v_add_f32 v{vST + 1}, v{vST + 1}, v{b}")
        P.I(f"v_mul_f32 v{vST}, {hex(f2u(-1.0/512))}, v{vST}")
        P.I(f"v_mul_f32 v{vST + 1}, {hex(f2u(1.0/512))}, v{vST + 1}")
        P.I(f"v_fma_f32 v{vST + 1}, -v{vST}, v{vST}, v{vST + 1}")
        P.I(f"v_max_f32 v{vST + 1}, 0, v{vST + 1}")
        P.I(f"v_add_f32 v{vST + 1}, {hex(f2u(1e-5))}, v{vST + 1}")
        P.I(f"v_rsq_f32 v{vRS}, v{vST + 1}")
        P.I(f"v_mul_f32 v{vNMR}, v{vST}, v{vRS}")

        def norm(n):
            Ld = []
            base = XR + 4 * (n % 16)
            for j in range(4):
                t = tmps + 2 * (j % 4)
                Ld.append(f"v_lshlrev_b32 v{t}, 16, v{base + j}")
                Ld.append(f"v_and_b32 v{t + 1}, 0xffff0000, v{base + j}")
                Ld.append(f"v_fma_f32 v{t}, v{t}, v{vRS}, v{vNMR}")
                Ld.append(f"v_fma_f32 v{t + 1}, v{t + 1}, v{vRS}, v{vNMR}")
                Ld.append(f"v_cvt_pk_bf16_f32 v{base + j}, v{t}, v{t + 1}")
            return Ld
        def wreads(n):
            p, u = n >> 1, n & 1
            Ld = []
            for F in range(3):
                for mat in range(2):
                    fr = WR + 24 * (n & 1) + 4 * (2 * F + mat)
                    for half in range(2):
                        off = self.w3_page(p) * PAGE + mat * 6144 + u * 1536 + half * 3072 + F * 64
                        Ld.append(f"ds_read_b64_tr_b16 {V(fr + 2 * half, 2)}, v{vB3 + (off >> 16)} offset:{off & 0xffff}")
            return Ld
        def mf(n):
            M = []
            for F in range(3):
                for mat in range(2):
                    fr = WR + 24 * (n & 1) + 4 * (2 * F + mat)
                    ac = acc + 16 * (2 * F + mat)
                    M.append(f"v_mfma_f32_32x32x16_bf16 {V(ac, 16)}, {V(fr, 4)}, {V(XR + 4 * (n % 16), 4)}, {V(ac, 16)}")
            return M
        def stage(j):
            self.wait_units('W3', 2 * j + 3)
            P.wait_lg_all()
            self.bar()
            if j <= 4:
                self.ld_w3(6 + 2 * j); self.ld_w3(7 + 2 * j)
            elif j == 5:
                for k in range(2, 11): self.ld_w4(k)
            elif j == 6:
                for k in range(11, 20): self.ld_w4(k)
        for x in wreads(0):
            P.I(x)
        for x in norm(0):
            P.I(x)
        for n in range(32):
            M = mf(n)
            rd, nr = [], []
            if n % 4 == 3 and n < 31:
                stage(n // 4)
            if n + 1 < 32:
                rd = wreads(n + 1)
                nr = norm(n + 1)
                P.need(regs(XR + 4 * ((n + 1) % 16), 4))
            for k, m in enumerate(M):
                if k in (0, 3):
                    P.need(regs(WR + 24 * (n & 1) + 12 * (k // 3), 12))
                if k == 0 and n in (0, 4, 8, 12, 16, 24, 28):
                    self.ts(9 + (0, 4, 8, 12, 16, 24, 28).index(n), fine=6)
                P.I(m)
                for _ in range(2):
                    if rd: P.I(rd.pop(0))
                nv = (len(nr) + (6 - k) - 1) // (6 - k)
                for _ in range(nv):
                    if nr: P.I(nr.pop(0))
                if (k == 1 or (k == 4 and self._xn < n + 10)) and self._xn <= n + 15:
                    xload()
        P.wait_lg_all()
        self.bar()
        for k in range(20, 38):
            self.ld_w4(k)
        self.ts(6)
        vK1 = 20
        P.I(f"v_mov_b32 v{vK1}, {hex(f2u(GC0))}")
        P.I(f"v_mov_b32 v{vK1 + 1}, v{vK1}")
        va = 22
        P.I(f"v_bfe_u32 v{a}, v{vLANE}, 4, 1")
        P.I(f"v_mul_u32_u24 v{a}, {43 * 1024}, v{a}")
        P.I(f"v_lshrrev_b32 v{b}, 5, v{vLANE}")
        P.I(f"v_lshl_add_u32 v{a}, v{b}, 8, v{a}")
        P.I(f"v_and_b32 v{b}, 15, v{vLANE}")
        P.I(f"v_lshl_add_u32 v{va}, v{b}, 4, v{a}")
        P.I(f"s_lshl_b32 s{sT1}, s{sR32}, 1")
        P.I(f"s_mul_i32 s{sT1}, s{sT1}, 43")
        P.I(f"s_add_u32 s{sT1}, s{sT1}, s{sP0}")
        P.I(f"s_lshl_b32 s{sT1}, s{sT1}, 10")
        P.I(f"s_add_u32 s{sT1}, s{sT1}, s{sLH}")
        P.I(f"s_add_u32 s{sT1}, s{sT1}, {HBUF}")
        HP = 40
        T0 = 88
        lskip = self.newlab("nof2")
        for F in range(3):
            if F == 2:
                P.I(f"s_cmp_lt_u32 s{sNP}, 3")
                P.I(f"s_cbranch_scc1 {lskip}")
                P.optional += 1
            G = acc + 16 * (2 * F); U = acc + 16 * (2 * F + 1)
            for grp in range(2):
                prs = [4 * grp + j for j in range(4)]
                def T(j, k): return T0 + 8 * j + 2 * k
                for j, pr in enumerate(prs):
                    P.I(f"v_pk_mul_f32 {V(T(j,0),2)}, {V(G + 2 * pr, 2)}, {V(G + 2 * pr, 2)}")
                for j, pr in enumerate(prs):
                    P.I(f"v_pk_fma_f32 {V(T(j,0),2)}, {V(T(j,0),2)}, {sp(sK3)}, {V(vK1, 2)}")
                for j, pr in enumerate(prs):
                    P.I(f"v_pk_mul_f32 {V(T(j,0),2)}, {V(T(j,0),2)}, {V(G + 2 * pr, 2)}")
                for j, pr in enumerate(prs):
                    P.I(f"v_exp_f32 v{T(j,0)}, v{T(j,0)}")
                    P.I(f"v_exp_f32 v{T(j,0)+1}, v{T(j,0)+1}")
                for j, pr in enumerate(prs):
                    P.I(f"v_pk_mul_f32 {V(T(j,1),2)}, {V(G + 2 * pr, 2)}, {V(U + 2 * pr, 2)}")
                for j, pr in enumerate(prs):
                    P.I(f"v_pk_add_f32 {V(T(j,0),2)}, {V(T(j,0),2)}, {sp(sONEF)}")
                for j, pr in enumerate(prs):
                    P.I(f"v_rcp_f32 v{T(j,0)}, v{T(j,0)}")
                    P.I(f"v_rcp_f32 v{T(j,0)+1}, v{T(j,0)+1}")
                for j, pr in enumerate(prs):
                    P.I(f"v_pk_mul_f32 {V(T(j,1),2)}, {V(T(j,1),2)}, {V(T(j,0),2)}")
                for j, pr in enumerate(prs):
                    P.I(f"v_cvt_pk_bf16_f32 v{HP + 8 * F + pr}, v{T(j,1)}, v{T(j,1)+1}")
            self.stores([f"buffer_store_dwordx4 {V(HP + 8 * F + 4 * AB, 4)}, v{va}, {srd(S_WS)}, s{sT1} offen offset:{F * 1024 + AB * 512}" for AB in range(2)])
            if F == 2:
                P.optional -= 1
                P.label(lskip)
                P.fence_hazards(2)

    def set_layer1(self, P):
        P.I(f"s_mov_b32 s{sLAYER}, 1")
        P.I(f"s_mov_b32 s{sL2M}, 0x200000")
        P.I(f"s_mov_b32 s{sLH}, 0x600000")
        P.I(f"s_mov_b32 s{sLST}, 0x20000")
        P.I(f"s_mov_b32 s{sLFL}, 0x1000")

    def build(self):
        P = self.P; L = self.L
        self.prologue()
        P.I(f"s_mov_b32 s{sT3}, {XIN}")
        P.I(f"s_mov_b32 s{sT4}, {STIN}")
        self.ts(0)
        self.emit_x(False, sT3, sT4, halo_l=0)
        self.finish_phase(0, 0, lambda: self.poll_rb_prev(True), lambda: self.phase1('pre'), first=True)
        P.label("L_layer")
        P.fence_hazards(4)
        L.label("L_llayer")
        L.fence_hazards(2)
        L.vmq = [{'regs': set(), 'tag': ('W1', ks), 'definite': True} for ks in range(6) for _ in range(3)]
        P.vmq = []
        self.phase1('lpre')
        if self.touch: self.phase1('touch')
        self.bar()
        P.I(f"v_mov_b32 v252, {MISC + 4096}")
        P.I(f"ds_read_b32 v253, v252")
        P.I(f"v_readfirstlane_b32 s{sFAST}, v253")
        self.ts(1)
        self.phase1('body')
        self.finish_phase(1, 1, self.poll_rb, lambda: self.gemm_res(2, 'pre'))
        self.wait_units('W2', 15)
        self.bar()
        self.ts(3)
        self.gemm_res(2, 'body')
        self.finish_phase(2, 2, self.poll_pair, lambda: self.phase3('pre'))
        self.wait_units('W3', 1)
        self.bar()
        self.ts(5)
        self.phase3('body')
        self.finish_phase(3, 3, self.poll_pair, lambda: self.gemm_res(4, 'pre'))
        self.wait_units('W4', 37)
        self.bar()
        self.ts(7)
        self.gemm_res(4, 'body')
        self.finish_phase(4, 4, self.poll_rb_prev, lambda: self.phase1('pre'))
        self.set_layer1(P)
        P.I("s_branch L_layer")
        self.set_layer1(L)
        L.I("s_branch L_llayer")
        self.final_store()
        P.label("L_end")
        P.I("s_endpgm")
        L.label("L_lend")
        L.wait_vm_all()
        L.I("s_endpgm")

    def text(self):
        hdr = open('cdna_kernels/' + NAME + '.s.ref').read().split('\n')
        head = [l for l in hdr if l.startswith(';') and '@launch' not in l and 'Override' not in l and 'grid=ceil' not in l]
        s = "\n".join(head) + "\n"
        s += f"; @launch grid=(256,1,1) block=(512,1,1) lds={LDS_BYTES}\n"
        s += '.amdgcn_target "amdgcn-amd-amdhsa--gfx950"\n.text\n'
        s += f".globl {NAME}_kernel\n.p2align 8\n.type {NAME}_kernel,@function\n{NAME}_kernel:\n"
        s += self.P.text()
        s += "L_loader:\n    s_nop 1\n"
        s += self.L.text()
        s += f""".section .rodata,"a"
.p2align 6
.amdhsa_kernel {NAME}_kernel
  .amdhsa_next_free_vgpr 256
  .amdhsa_next_free_sgpr 102
  .amdhsa_accum_offset 256
  .amdhsa_group_segment_fixed_size 0
  .amdhsa_kernarg_size 80
  .amdhsa_user_sgpr_count 2
  .amdhsa_user_sgpr_kernarg_segment_ptr 1
  .amdhsa_system_sgpr_workgroup_id_x 1
.end_amdhsa_kernel
"""
        return s

if __name__ == "__main__":
    import argparse
    ap = argparse.ArgumentParser()
    ap.add_argument('-o', default='cdna_kernels/' + NAME + '.s')
    ap.add_argument('--profile', type=int, default=0)
    ap.add_argument('--drop', default='')
    ap.add_argument('--slow', action='store_true')
    ap.add_argument('--init24', type=int, default=0)
    ap.add_argument('--notouch', action='store_true')
    ap.add_argument('--init3', type=int, default=0)
    a = ap.parse_args()
    g = Gen(profile=a.profile, drop=a.drop.split(',') if a.drop else (), force_slow=a.slow)
    if a.notouch: g.touch = False
    if a.init24: g.init24 = a.init24
    if a.init3: g.init3 = a.init3
    g.build()
    open(a.o, 'w').write(g.text())
    print("compute instrs:", g.P.ninstr, "nops:", g.P.nops, " loader instrs:", g.L.ninstr,
          " barriers:", sum(1 for l in g.P.out if 's_barrier' in l), sum(1 for l in g.L.out if 's_barrier' in l))
```

```python
import sys, struct
from asmlib import Prog

NAME = "interleave_layers__sliding_local_dilated__geglu_ffn__prompt"

def f2u(x):
    return struct.unpack('<I', struct.pack('<f', x))[0]

XIN   = 0x000000
XMID  = 0x400000
OBUF  = 0x800000
HBUF  = 0xC00000
STIN  = 0x1800000
STMID = 0x1840000
FLAGS = 0x1900000
FLAGS2 = FLAGS + 0x10000
XHALO = 0x1920000
STHALO = 0x1960000
TSBUF = 0x1A00000
WS_SIZE = 0x2000000

S_WS, S_X0, S_WQKV, S_WO, S_W3, S_WD, S_OUT, S_DBG = 8, 12, 16, 20, 24, 32, 36, 40
sRB, sC, sW, sNONCE, sLAYER = 44, 45, 46, 47, 48
sL2M, sLH, sLST, sLFL = 49, 50, 51, 52
sT0, sT1, sT2, sT3, sT4, sT5 = 53, 54, 55, 56, 57, 58
sW3072, sW1024, sW5120, sONES = 59, 60, 61, 62
sRT = 63
sMCUR = 64
sM01, sM23, sMI0, sMLO16 = 72, 74, 76, 78
sP0, sNP, sR32, sCNT = 80, 81, 82, 83
sK3 = 84
sONEF = 86
sTS = 88
sXT0 = 90
sISL = 91
sEXEC = 92
sBG = 96
sXB0, sXB1 = 97, 98
sFAST, sXCC, sHALO = 99, 100, 101
def srd(b): return f"s[{b}:{b+3}]"
def sp(b): return f"s[{b}:{b+1}]"

vL16 = 1
vRES = 2
vLANE = 15
vW1OFF, vW2OFF = 10, 11
vW3OFF = 12
vX1OFF = 16
vLONE = 50

def V(b, n=1):
    return f"v{b}" if n == 1 else f"v[{b}:{b+n-1}]"
def regs(base, n): return [f"v{base + i}" for i in range(n)]

PAGE = 4096
XB = 18 * PAGE
MISC = 38 * PAGE
LDS_BYTES = 40 * PAGE
NEG = hex(f2u(-3.0e38))
GC0 = -2.0 * 0.7978845608028654 * 1.4426950408889634


class Gen:
    def __init__(self, profile=0, drop=(), force_slow=False):
        self.force_slow = force_slow
        self.init24 = 10
        self.init3 = 8
        self.touch = True
        self.dbgfast = False
        self.P = Prog()
        self.L = Prog()
        self.P.drop = set(drop); self.L.drop = set(drop)
        self.profile = profile
        self.lab = 0

    def newlab(self, s):
        self.lab += 1
        return f"L_{s}_{self.lab}"

    def bar(self):
        self.P.barrier()
        self.L.barrier()

    def w1_page(self, ks): return (ks % 6) * 3
    W2_PAGES = [12, 13, 14, 15, 16, 17, 0, 1, 2, 3, 4, 5, 6, 7, 8, 9]
    def w3_page(self, u):
        if u < 6: return 18 + 3 * u
        if u < 12: return 3 * (u - 6)
        return 18 + 3 * (u - 12)
    def w4_page(self, k):
        if k < 2: return 36 + k
        if k < 8: return 30 + (k - 2)
        if k < 26: return k - 8
        if k < 38: return 18 + (k - 26)
        return [36, 37, 30, 31, 32][k - 38]

    def dma_group(self, voffs, srd_b, soff_imm, m0_base_s, m0_imm, tag):
        L = self.L
        L.I(f"s_add_u32 m0, s{m0_base_s}, {m0_imm}")
        L.I(f"s_mov_b32 s{sBG}, {soff_imm}")
        for e, voff in enumerate(voffs):
            off = f" offset:{e * 1024}" if e else ""
            L.I(f"buffer_load_dwordx4 v{voff}, {srd(srd_b)}, s{sBG} offen{off} lds", tag=tag)
    def ld_w1(self, ks): self.dma_group([vW1OFF] * 3, S_WQKV, ks * 98304, sW3072, self.w1_page(ks) * PAGE, ('W1', ks))
    def ld_w2(self, ks): self.dma_group([vW2OFF], S_WO, ks * 32768, sW1024, self.W2_PAGES[ks] * PAGE, ('W2', ks))
    def ld_w3(self, u): self.dma_group([vW3OFF, vW3OFF + 1, vW3OFF + 2], S_W3, u * 88064, sW3072, self.w3_page(u) * PAGE, ('W3', u))
    def ld_w4(self, k): self.dma_group([vW2OFF], S_WD, k * 32768, sW1024, self.w4_page(k) * PAGE, ('W4', k))
    def wait_units(self, name, upto):
        self.L.wait_vm_tag(lambda t: t[0] == name and t[1] <= upto)

    def ts(self, idx, fine=False):
        if not self.profile:
            return
        if self.profile >= 3:
            keep = {3: (1, 2), 4: (3, 4), 5: (7, 8), 6: (5, 6)}[self.profile]
            if fine != self.profile and not (fine is False and idx in keep):
                return
        elif fine:
            return
        P = self.P
        l = self.newlab("ts")
        P.I(f"s_cmp_lg_u32 s{sW}, 0")
        P.I(f"s_cbranch_scc1 {l}")
        P.optional += 1
        P.I(f"{'s_memtime' if self.profile >= 2 else 's_memrealtime'} {sp(sTS)}")
        P.raw("    s_waitcnt lgkmcnt(0)")
        P.I(f"s_mov_b64 {sp(sEXEC)}, exec")
        P.I(f"s_mov_b64 exec, 1")
        P.I(f"v_mov_b32 v254, s{sTS}")
        P.I(f"v_mov_b32 v255, s{sTS+1}")
        P.I(f"s_lshl_b32 s95, s2, 8")
        P.I(f"s_lshl_b32 s94, s{sLAYER}, 7")
        P.I(f"s_add_u32 s95, s95, s94")
        P.I(f"s_add_u32 s95, s95, {TSBUF + idx * 8}")
        P.I(f"v_mov_b32 v253, 0")
        P.I(f"buffer_store_dwordx2 v[254:255], v253, {srd(S_WS)}, s95 offen")
        P.I(f"s_mov_b64 exec, {sp(sEXEC)}")
        P.optional -= 1
        P.label(l)
        P.fence_hazards(2)

    def stores(self, lines):
        P = self.P
        ls = self.newlab("slow"); lj = self.newlab("join")
        for t in lines:
            from asmlib import classify
            if t.startswith('buffer_store'):
                P.need(sorted(classify(t).rd))
        P.fence_hazards(8)
        P.I(f"s_cmp_eq_u32 s{sFAST}, 0")
        P.I(f"s_cbranch_scc1 {ls}")
        for t in lines:
            P.I(t, tag=('ST', 0) if t.startswith('buffer_store') else None)
        P.raw(f"    s_branch {lj}")
        P.label(ls)
        for t in lines:
            P.raw("    " + t + (" sc1" if t.startswith('buffer_store') else ""))
        P.label(lj)
        P.fence_hazards(2)

    def signal_and_poll(self, flag_phase, poll_phase, poll_off_v, first=False):
        P = self.P
        l = self.newlab("w0skip")
        P.I(f"s_cmp_lg_u32 s{sW}, 0")
        P.I(f"s_cbranch_scc1 {l}")
        P.optional += 1
        if first:
            lp = self.newlab("npoll"); ld = self.newlab("ndone")
            P.I(f"s_mov_b32 s{sCNT}, 0")
            P.label(lp)
            P.I(f"v_mov_b32 v252, 0")
            P.I(f"buffer_load_dword v253, v252, {srd(S_DBG)}, 0 offen sc1")
            P.raw("    s_waitcnt vmcnt(0)")
            P.I(f"v_readfirstlane_b32 s{sNONCE}, v253")
            P.I(f"s_cmp_lg_u32 s{sNONCE}, 0")
            P.I(f"s_cbranch_scc1 {ld}")
            P.I(f"s_sleep 1")
            P.I(f"s_add_u32 s{sCNT}, s{sCNT}, 1")
            P.I(f"s_cmp_lt_u32 s{sCNT}, 100000")
            P.I(f"s_cbranch_scc1 {lp}")
            P.label(ld)
        P.I(f"s_lshl_b32 s{sT1}, s{sRB}, 3")
        P.I(f"s_add_u32 s{sT1}, s{sT1}, s{sC}")
        P.I(f"s_lshl_b32 s{sT1}, s{sT1}, 2")
        P.I(f"s_add_u32 s{sT1}, s{sT1}, s{sLFL}")
        P.I(f"s_add_u32 s{sT1}, s{sT1}, {FLAGS + flag_phase * 0x400}")
        P.I(f"s_mov_b64 {sp(sEXEC)}, exec")
        P.I(f"s_mov_b64 exec, 1")
        P.I(f"v_mov_b32 v252, 0")
        if first:
            P.I(f"s_or_b32 s{sT2}, s{sNONCE}, s{sXCC}")
            P.I(f"v_mov_b32 v253, s{sT2}")
            P.I(f"buffer_store_dword v253, v252, {srd(S_WS)}, s{sT1} offen sc1")
        else:
            P.I(f"v_mov_b32 v253, s{sNONCE}")
            lsl = self.newlab("fslow"); lfj = self.newlab("fjoin")
            P.I(f"s_cmp_eq_u32 s{sFAST}, 0")
            P.I(f"s_cbranch_scc1 {lsl}")
            P.I(f"buffer_store_dword v253, v252, {srd(S_WS)}, s{sT1} offen")
            P.I(f"s_branch {lfj}")
            P.label(lsl)
            P.I(f"buffer_store_dword v253, v252, {srd(S_WS)}, s{sT1} offen sc1")
            P.label(lfj)
        P.I(f"s_mov_b64 exec, {sp(sEXEC)}")
        lp = self.newlab("poll"); ld = self.newlab("pdone")
        P.I(f"s_add_u32 s{sT1}, s{sLFL}, {FLAGS + poll_phase * 0x400}")
        P.I(f"s_mov_b32 s{sCNT}, 0")
        P.label(lp)
        P.I(f"buffer_load_dword v253, v{poll_off_v}, {srd(S_WS)}, s{sT1} offen sc1")
        P.raw("    s_waitcnt vmcnt(0)")
        P.I(f"v_and_b32 v252, -16, v253")
        P.I(f"v_cmp_ne_u32 vcc, s{sNONCE}, v252")
        P.I(f"s_cmp_eq_u64 vcc, 0")
        P.I(f"s_cbranch_scc1 {ld}")
        P.I(f"s_add_u32 s{sCNT}, s{sCNT}, 1")
        P.I(f"s_cmp_lt_u32 s{sCNT}, 200000")
        P.I(f"s_cbranch_scc1 {lp}")
        P.label(ld)
        if first:
            P.I(f"v_and_b32 v252, 15, v253")
            P.I(f"v_cmp_ne_u32 vcc, s{sXCC}, v252")
            P.I(f"s_cmp_eq_u32 vcc_lo, 0")
            P.I(f"s_cselect_b32 s{sT2}, {0 if self.force_slow else 1}, 0")
            if self.dbgfast:
                P.I(f"s_lshl_b32 s{sT3}, s{sXCC}, 4")
                P.I(f"s_or_b32 s{sT3}, s{sT3}, s{sT2}")
                P.I(f"s_or_b32 s{sT3}, s{sT3}, 0x100")
                P.I(f"s_and_b32 s{sT4}, s2, 7")
                P.I(f"s_lshl_b32 s{sT4}, s{sT4}, 2")
                P.I(f"s_add_u32 s{sT4}, s{sT4}, 16")
                P.I(f"v_mov_b32 v252, 0")
                P.I(f"v_mov_b32 v253, s{sT3}")
                P.I(f"s_mov_b64 exec, 1")
                P.I(f"buffer_store_dword v253, v252, {srd(S_DBG)}, s{sT4} offen sc1")
                P.I(f"s_mov_b64 exec, -1")
            P.I(f"v_mov_b32 v252, {MISC + 4096}")
            P.I(f"v_mov_b32 v253, s{sT2}")
            P.I(f"ds_write_b32 v252, v253")
            P.raw("    s_waitcnt lgkmcnt(0)")
        P.optional -= 1
        P.label(l)
        P.fence_hazards(4)

    def finish_phase(self, flag_phase, poll_phase, poll_setup, pre, first=False):
        P = self.P
        if flag_phase in (1, 2, 3): self.ts(10 + 2 * (flag_phase - 1))
        pre()
        pv = poll_setup()
        P.wait_vm_tag(lambda t: t[0] == 'ST')
        self.bar()
        if flag_phase in (1, 2, 3): self.ts(11 + 2 * (flag_phase - 1))
        if flag_phase in (0, 4):
            lh = self.newlab("nohalo")
            P.I(f"s_cmp_eq_u32 s{sHALO}, 0")
            P.I(f"s_cbranch_scc1 {lh}")
            P.optional += 1
            P.raw("    s_waitcnt vmcnt(0)")
            if first:
                lp = self.newlab("hn"); ld = self.newlab("hnd")
                P.I(f"s_mov_b32 s{sCNT}, 0")
                P.label(lp)
                P.I(f"v_mov_b32 v252, 0")
                P.I(f"buffer_load_dword v253, v252, {srd(S_DBG)}, 0 offen sc1")
                P.raw("    s_waitcnt vmcnt(0)")
                P.I(f"v_readfirstlane_b32 s{sNONCE}, v253")
                P.I(f"s_cmp_lg_u32 s{sNONCE}, 0")
                P.I(f"s_cbranch_scc1 {ld}")
                P.I(f"s_add_u32 s{sCNT}, s{sCNT}, 1")
                P.I(f"s_cmp_lt_u32 s{sCNT}, 200000")
                P.I(f"s_cbranch_scc1 {lp}")
                P.label(ld)
            P.I(f"s_lshr_b32 s{sT1}, s{sRB}, 2")
            P.I(f"s_lshl_b32 s{sT1}, s{sT1}, 3")
            P.I(f"s_add_u32 s{sT1}, s{sT1}, s{sC}")
            P.I(f"s_lshl_b32 s{sT1}, s{sT1}, 2")
            P.I(f"s_add_u32 s{sT1}, s{sT1}, s{sLFL}")
            P.I(f"s_add_u32 s{sT1}, s{sT1}, {FLAGS2 + flag_phase * 0x400}")
            P.I(f"s_mov_b64 {sp(sEXEC)}, exec")
            P.I(f"s_mov_b64 exec, 1")
            P.I(f"v_mov_b32 v252, 0")
            P.I(f"v_mov_b32 v253, s{sNONCE}")
            P.I(f"buffer_store_dword v253, v252, {srd(S_WS)}, s{sT1} offen sc1")
            P.I(f"s_mov_b64 exec, {sp(sEXEC)}")
            P.optional -= 1
            P.label(lh)
            P.fence_hazards(2)
        self.signal_and_poll(flag_phase, poll_phase, pv, first=first)

    def poll_rb_prev(self, first=False):
        P = self.P
        P.I(f"v_and_b32 v250, 7, v{vLANE}")
        P.I(f"s_lshr_b32 s{sT1}, s{sRB}, 2")
        P.I(f"s_lshl_b32 s{sT1}, s{sT1}, 3")
        P.I(f"s_add_u32 s{sT1}, s{sT1}, {0x4000 - 8}")
        P.I(f"s_lshl_b32 s{sT2}, s{sRB}, 3")
        P.I(f"s_sub_u32 s{sT3}, s{sT2}, 8")
        P.I(f"s_and_b32 s{sT4}, s{sRB}, 3")
        P.I(f"s_cmp_eq_u32 s{sT4}, 0")
        P.I(f"s_cselect_b32 s{sT3}, s{sT1}, s{sT3}")
        P.I(f"s_cmp_eq_u32 s{sRB}, 0")
        P.I(f"s_cselect_b32 s{sT3}, s{sT2}, s{sT3}")
        if not first:
            P.I(f"v_add_u32 v251, s{sT2}, v250")
            P.I(f"v_add_u32 v250, s{sT3}, v250")
            P.I(f"v_and_b32 v249, 8, v{vLANE}")
            P.I(f"v_cmp_eq_u32 vcc, 0, v249")
            P.I(f"v_cndmask_b32 v251, v250, v251, vcc")
        else:
            P.I(f"s_lshr_b32 s{sT1}, s{sRB}, 2")
            P.I(f"s_lshl_b32 s{sT1}, s{sT1}, 5")
            P.I(f"v_and_b32 v251, 31, v{vLANE}")
            P.I(f"v_add_u32 v251, s{sT1}, v251")
            P.I(f"v_add_u32 v250, s{sT3}, v250")
            P.I(f"v_cmp_gt_u32 vcc, 32, v{vLANE}")
            P.I(f"v_cndmask_b32 v251, v250, v251, vcc")
        P.I(f"v_lshlrev_b32 v251, 2, v251")
        return 251
    def poll_rb(self):
        P = self.P
        P.I(f"v_and_b32 v251, 7, v{vLANE}")
        P.I(f"s_lshl_b32 s{sT1}, s{sRB}, 3")
        P.I(f"v_add_u32 v251, s{sT1}, v251")
        P.I(f"v_lshlrev_b32 v251, 2, v251")
        return 251
    def poll_pair(self):
        P = self.P
        P.I(f"v_and_b32 v251, 15, v{vLANE}")
        P.I(f"s_lshr_b32 s{sT1}, s{sRB}, 1")
        P.I(f"s_lshl_b32 s{sT1}, s{sT1}, 4")
        P.I(f"v_add_u32 v251, s{sT1}, v251")
        P.I(f"v_lshlrev_b32 v251, 2, v251")
        return 251

    def touch16(self, S, va, vd, base_const, use_l2m=True, extra_l2m=0):
        S.I(f"v_lshrrev_b32 v{va}, 4, v{vLANE}")
        S.I(f"v_lshlrev_b32 v{va}, 14, v{va}")
        S.I(f"v_and_b32 v{vd}, 15, v{vLANE}")
        S.I(f"v_lshl_add_u32 v{va}, v{vd}, 7, v{va}")
        S.I(f"s_lshl_b32 s{sT1}, s{sRB}, 16")
        S.I(f"s_lshl_b32 s{sT2}, s{sC}, 11")
        S.I(f"s_add_u32 s{sT1}, s{sT1}, s{sT2}")
        S.I(f"s_add_u32 s{sT1}, s{sT1}, s{sL2M}")
        S.I(f"s_add_u32 s{sT1}, s{sT1}, {base_const}")
        S.I(f"buffer_load_dword v{vd}, v{va}, {srd(S_WS)}, s{sT1} offen")
    def touch32(self, S, va, vd):
        S.I(f"v_lshrrev_b32 v{va}, 5, v{vLANE}")
        S.I(f"v_lshlrev_b32 v{va}, 15, v{va}")
        S.I(f"v_and_b32 v{vd}, 31, v{vLANE}")
        S.I(f"v_lshl_add_u32 v{va}, v{vd}, 7, v{va}")
        S.I(f"s_lshl_b32 s{sT1}, s{sRB}, 16")
        S.I(f"s_lshl_b32 s{sT2}, s{sC}, 12")
        S.I(f"s_add_u32 s{sT1}, s{sT1}, s{sT2}")
        S.I(f"s_add_u32 s{sT1}, s{sT1}, s{sL2M}")
        S.I(f"s_add_u32 s{sT1}, s{sT1}, {XMID}")
        S.I(f"buffer_load_dword v{vd}, v{va}, {srd(S_WS)}, s{sT1} offen")
    def touch_stats(self, S, va, vd, base_const):
        S.I(f"v_and_b32 v{va}, 31, v{vLANE}")
        S.I(f"v_lshlrev_b32 v{va}, 7, v{va}")
        S.I(f"s_lshl_b32 s{sT1}, s{sRB}, 12")
        S.I(f"s_add_u32 s{sT1}, s{sT1}, s{sLST}")
        S.I(f"s_add_u32 s{sT1}, s{sT1}, {base_const}")
        S.I(f"buffer_load_dword v{vd}, v{va}, {srd(S_WS)}, s{sT1} offen")
    def touch_h(self, S, va, vb, vd):
        S.I(f"s_lshr_b32 s{sT1}, s{sRB}, 1")
        S.I(f"s_mul_i32 s{sT1}, s{sT1}, {8 * 43}")
        S.I(f"s_add_u32 s{sT1}, s{sT1}, s{sP0}")
        S.I(f"s_lshl_b32 s{sT1}, s{sT1}, 10")
        S.I(f"s_add_u32 s{sT1}, s{sT1}, s{sLH}")
        S.I(f"s_add_u32 s{sT1}, s{sT1}, {HBUF}")
        for e in range(3):
            S.I(f"v_add_u32 v{va}, {64 * e}, v{vLANE}")
            S.I(f"v_mul_u32_u24 v{vb}, 43691, v{va}")
            S.I(f"v_lshrrev_b32 v{vb}, 20, v{vb}")
            S.I(f"v_mul_u32_u24 v{vd + e}, 24, v{vb}")
            S.I(f"v_sub_u32 v{va}, v{va}, v{vd + e}")
            S.I(f"v_lshlrev_b32 v{va}, 7, v{va}")
            S.I(f"v_mul_u32_u24 v{vb}, {43 * 1024}, v{vb}")
            S.I(f"v_add_u32 v{va}, v{va}, v{vb}")
            S.I(f"buffer_load_dword v{vd + e}, v{va}, {srd(S_WS)}, s{sT1} offen")

    def prologue(self):
        P = self.P; L = self.L
        P.I("s_cmp_ge_u32 s2, 256")
        P.I("s_cbranch_scc1 L_end")
        P.I("s_load_dwordx16 s[64:79], s[0:1], 0")
        P.I("s_load_dwordx4 s[84:87], s[0:1], 64")
        P.I(f"s_and_b32 s{sT0}, s2, 7")
        P.I(f"s_lshr_b32 s{sT1}, s2, 3")
        P.I(f"s_lshl_b32 s{sRB}, s{sT0}, 2")
        P.I(f"s_lshr_b32 s{sT2}, s{sT1}, 3")
        P.I(f"s_add_u32 s{sRB}, s{sRB}, s{sT2}")
        P.I(f"s_and_b32 s{sC}, s{sT1}, 7")
        P.I(f"v_lshrrev_b32 v1, 6, v0")
        P.I(f"v_and_b32 v{vLANE}, 63, v0")
        P.I(f"v_readfirstlane_b32 s{sW}, v1")
        P.I(f"v_lshlrev_b32 v{vL16}, 4, v{vLANE}")
        P.I(f"s_lshr_b32 s{sISL}, s{sW}, 2")
        P.I(f"s_and_b32 s{sW}, s{sW}, 3")
        P.wait_lg_all()
        def mk(b, ptr, size):
            P.I(f"s_mov_b32 s{b}, s{ptr}")
            P.I(f"s_and_b32 s{b+1}, s{ptr+1}, 0xffff")
            P.I(f"s_mov_b32 s{b+2}, {size}")
            P.I(f"s_mov_b32 s{b+3}, 0x20000")
        mk(S_X0, 64, 2048 * 512 * 2)
        mk(S_WQKV, 66, 512 * 1536 * 2)
        mk(S_WO, 68, 512 * 512 * 2)
        mk(S_WD, 76, 1376 * 512 * 2)
        mk(S_OUT, 78, 2048 * 512 * 2)
        mk(S_DBG, 84, 256)
        mk(S_WS, 86, WS_SIZE)
        P.I(f"s_cmp_lt_u32 s{sW}, 2")
        P.I(f"s_cselect_b32 s{S_W3}, s72, s74")
        P.I(f"s_cselect_b32 s{sT0}, s73, s75")
        P.I(f"s_and_b32 s{S_W3+1}, s{sT0}, 0xffff")
        P.I(f"s_mov_b32 s{S_W3+2}, {512 * 1376 * 2}")
        P.I(f"s_mov_b32 s{S_W3+3}, 0x20000")
        P.I(f"s_mul_i32 s{sW3072}, s{sW}, 3072")
        P.I(f"s_lshl_b32 s{sW1024}, s{sW}, 10")
        P.I(f"s_mul_i32 s{sW5120}, s{sW}, 5120")
        P.I(f"s_mov_b32 s{sONES}, 0x3f803f80")
        P.I(f"s_lshl_b32 s{sRT}, s{sRB}, 2")
        P.I(f"s_add_u32 s{sRT}, s{sRT}, s{sW}")
        for r in (sLAYER, sL2M, sLH, sLST, sLFL):
            P.I(f"s_mov_b32 s{r}, 0")
        P.I(f"s_and_b32 s{sT0}, s{sRB}, 1")
        P.I(f"s_lshl_b32 s{sT0}, s{sT0}, 3")
        P.I(f"s_add_u32 s{sT0}, s{sT0}, s{sC}")
        P.I(f"s_mul_i32 s{sT1}, s{sT0}, 3")
        P.I(f"s_lshl_b32 s{sT2}, s{sT0}, 1")
        P.I(f"s_add_u32 s{sT2}, s{sT2}, 11")
        P.I(f"s_cmp_le_u32 s{sT0}, 10")
        P.I(f"s_cselect_b32 s{sP0}, s{sT1}, s{sT2}")
        P.I(f"s_cselect_b32 s{sNP}, 3, 2")
        P.I(f"s_lshr_b32 s{sT0}, s{sRB}, 1")
        P.I(f"s_lshl_b32 s{sT0}, s{sT0}, 2")
        P.I(f"s_add_u32 s{sR32}, s{sT0}, s{sW}")
        P.I(f"s_lshl_b32 s{sT1}, s{sRB}, 2")
        P.I(f"s_sub_u32 s{sT2}, s{sT1}, 1")
        P.I(f"s_max_i32 s{sXT0}, s{sT2}, 0")
        P.I(f"s_getreg_b32 s{sXCC}, hwreg(HW_REG_XCC_ID, 0, 4)")
        P.I(f"s_mov_b32 s{sFAST}, 0")
        P.I(f"s_and_b32 s{sT0}, s{sRT}, 15")
        P.I(f"s_cmp_eq_u32 s{sT0}, 15")
        P.I(f"s_cselect_b32 s{sHALO}, 1, 0")
        P.I(f"s_cmp_lg_u32 s{sISL}, 0")
        P.I(f"s_cbranch_scc1 L_loader")
        a, b, c_ = 20, 21, 22
        L.I(f"v_lshrrev_b32 v{a}, 3, v{vLANE}")
        L.I(f"v_and_b32 v{b}, 6, v{a}")
        L.I(f"v_and_b32 v{c_}, 7, v{vLANE}")
        L.I(f"v_xor_b32 v{c_}, v{c_}, v{b}")
        L.I(f"v_lshlrev_b32 v{c_}, 4, v{c_}")
        L.I(f"s_lshl_b32 s{sT0}, s{sC}, 7")
        L.I(f"v_add_u32 v{c_}, s{sT0}, v{c_}")
        L.I(f"s_lshl_b32 s{sT1}, s{sW}, 3")
        L.I(f"v_add_u32 v{a}, s{sT1}, v{a}")
        L.I(f"v_mul_u32_u24 v{b}, 3072, v{a}")
        L.I(f"v_add_u32 v{vW1OFF}, v{b}, v{c_}")
        L.I(f"v_lshlrev_b32 v{b}, 10, v{a}")
        L.I(f"v_add_u32 v{vW2OFF}, v{b}, v{c_}")
        for ks in range(6):
            self.ld_w1(ks)
        L.I(f"s_and_b32 s{sT0}, s{sW}, 1")
        L.I(f"s_mul_i32 s{sT0}, s{sT0}, {16 * 2752}")
        L.I(f"s_lshl_b32 s{sT1}, s{sP0}, 6")
        L.I(f"s_add_u32 s{sT0}, s{sT0}, s{sT1}")
        for e in range(3):
            L.I(f"v_add_u32 v{a}, {64 * e}, v{vLANE}")
            L.I(f"v_mul_u32_u24 v{b}, 43691, v{a}")
            L.I(f"v_lshrrev_b32 v{b}, 19, v{b}")
            L.I(f"v_mul_u32_u24 v{c_}, 12, v{b}")
            L.I(f"v_sub_u32 v{c_}, v{a}, v{c_}")
            L.I(f"v_mul_u32_u24 v{b}, 2752, v{b}")
            L.I(f"v_lshlrev_b32 v{c_}, 4, v{c_}")
            L.I(f"v_add_u32 v{b}, v{b}, v{c_}")
            L.I(f"v_add_u32 v{b}, s{sT0}, v{b}")
            if e:
                L.I(f"v_subrev_u32 v{vW3OFF+e}, {1024 * e}, v{b}")
            else:
                L.I(f"v_mov_b32 v{vW3OFF}, v{b}")
        L.I(f"v_add_u32 v{vX1OFF}, s{sW1024}, v{vL16}")
        L.I(f"s_add_u32 s{sT0}, s{sW5120}, {XB}")
        L.I(f"v_add_u32 v{vLONE}, s{sT0}, v{vL16}")
        for j in range(4):
            L.I(f"v_mov_b32 v{vLONE + 2 + j}, 0x3f803f80")
        L.I(f"s_mov_b32 s{sMI0}, 0x00010001")
        L.I(f"s_mov_b32 s{sMI0 + 1}, 0x00010001")
        l = self.newlab("nonce")
        P.I(f"s_or_b32 s{sT0}, s2, s{sW}")
        P.I(f"s_cmp_lg_u32 s{sT0}, 0")
        P.I(f"s_cbranch_scc1 {l}")
        P.optional += 1
        P.I(f"s_memrealtime {sp(sTS)}")
        P.raw("    s_waitcnt lgkmcnt(0)")
        P.I(f"s_or_b32 s{sT1}, s{sTS}, 16")
        P.I(f"s_andn2_b32 s{sT1}, s{sT1}, 15")
        P.I(f"v_mov_b32 v20, s{sT1}")
        P.I(f"v_mov_b32 v21, 0")
        P.I(f"s_mov_b64 exec, 1")
        P.I(f"buffer_store_dword v20, v21, {srd(S_DBG)}, 0 offen sc1")
        P.I(f"s_mov_b64 exec, -1")
        P.optional -= 1
        P.label(l)
        P.fence_hazards(2)
        P.I(f"v_and_b32 v{a}, 15, v{vLANE}")
        P.I(f"v_lshlrev_b32 v{a}, 10, v{a}")
        P.I(f"v_lshrrev_b32 v{b}, 4, v{vLANE}")
        P.I(f"v_lshlrev_b32 v{b}, 3, v{b}")
        P.I(f"v_add_u32 v{a}, v{a}, v{b}")
        P.I(f"s_lshl_b32 s{sT0}, s{sRT}, 14")
        P.I(f"s_lshl_b32 s{sT1}, s{sC}, 7")
        P.I(f"s_add_u32 s{sT0}, s{sT0}, s{sT1}")
        for T in range(4):
            P.I(f"buffer_load_dwordx2 {V(vRES + 2 * T, 2)}, v{a}, {srd(S_X0)}, s{sT0} offen offset:{T * 32}")
        d = 23
        P.I(f"v_and_b32 v{a}, 15, v{vLANE}")
        P.I(f"v_lshrrev_b32 v{b}, 4, v{vLANE}")
        P.I(f"v_lshlrev_b32 v{b}, 2, v{b}")
        for r in range(4):
            P.I(f"v_add_u32 v{c_}, {r}, v{b}")
            P.I(f"v_cmp_ge_u32 {sp(sMCUR + 2 * r)}, v{a}, v{c_}")
        P.I(f"v_and_b32 v{d}, 1, v{a}")
        P.I(f"v_add_u32 v{c_}, v{b}, v{d}")
        P.I(f"v_cmp_ge_u32 {sp(sM01)}, v{a}, v{c_}")
        P.I(f"v_add_u32 v{c_}, 2, v{c_}")
        P.I(f"v_cmp_ge_u32 {sp(sM23)}, v{a}, v{c_}")
        P.I(f"v_cmp_eq_u32 {sp(sMI0)}, 0, v{a}")
        P.I(f"s_mov_b64 {sp(sMLO16)}, 0xffff")
        P.I(f"s_mov_b32 s{sK3}, {hex(f2u(GC0 * 0.044715))}")
        P.I(f"s_mov_b32 s{sK3+1}, {hex(f2u(GC0 * 0.044715))}")
        P.I(f"s_mov_b32 s{sONEF}, 1.0")
        P.I(f"s_mov_b32 s{sONEF+1}, 1.0")

    def emit_x(self, layout32, xbase_s, stbase_s, halo_l=None):
        P = self.P
        a, b, t, a2 = 240, 241, 242, 239
        s1, s1b, s2, s2b = 244, 245, 246, 247
        if not layout32:
            P.I(f"s_lshl_b32 s{sT1}, s{sRT}, 14")
            P.I(f"s_lshl_b32 s{sT2}, s{sC}, 11")
            P.I(f"s_add_u32 s{sT1}, s{sT1}, s{sT2}")
            P.I(f"s_add_u32 s{sT1}, s{sT1}, s{xbase_s}")
            av = vL16; ustride = 1024
        else:
            P.I(f"v_lshrrev_b32 v{a2}, 4, v{vLANE}")
            P.I(f"v_lshlrev_b32 v{a2}, 9, v{a2}")
            P.I(f"v_and_b32 v{b}, 15, v{vLANE}")
            P.I(f"v_lshl_add_u32 v{a2}, v{b}, 4, v{a2}")
            P.I(f"s_lshr_b32 s{sT1}, s{sRT}, 1")
            P.I(f"s_lshl_b32 s{sT1}, s{sT1}, 15")
            P.I(f"s_lshl_b32 s{sT2}, s{sC}, 12")
            P.I(f"s_add_u32 s{sT1}, s{sT1}, s{sT2}")
            P.I(f"s_and_b32 s{sT2}, s{sRT}, 1")
            P.I(f"s_lshl_b32 s{sT2}, s{sT2}, 8")
            P.I(f"s_add_u32 s{sT1}, s{sT1}, s{sT2}")
            P.I(f"s_add_u32 s{sT1}, s{sT1}, s{xbase_s}")
            av = a2; ustride = 2048
        self.stores([f"buffer_store_dwordx4 {V(vRES + 4 * u, 4)}, v{av}, {srd(S_WS)}, s{sT1} offen" + (f" offset:{u * ustride}" if u else "") for u in range(2)])
        for x in (s1, s1b, s2, s2b):
            P.I(f"v_mov_b32 v{x}, 0")
        for j in range(8):
            P.I(f"v_dot2c_f32_bf16 v{s1 if j % 2 == 0 else s1b}, s{sONES}, v{vRES + j}")
            P.I(f"v_dot2c_f32_bf16 v{s2 if j % 2 == 0 else s2b}, v{vRES + j}, v{vRES + j}")
        P.I(f"v_lshlrev_b32 v{a}, 6, v{vLANE}")
        P.I(f"s_lshl_b32 s{sT1}, s{sRT}, 10")
        P.I(f"s_lshl_b32 s{sT2}, s{sC}, 3")
        P.I(f"v_add_f32 v{s1}, v{s1}, v{s1b}")
        P.I(f"v_add_f32 v{s1b}, v{s2}, v{s2b}")
        P.I(f"s_add_u32 s{sT1}, s{sT1}, s{sT2}")
        P.I(f"s_add_u32 s{sT1}, s{sT1}, s{stbase_s}")
        for step in ("16", "32"):
            P.I(f"v_mov_b32 v{t}, v{s1}")
            P.I(f"v_mov_b32 v{t + 1}, v{s1b}")
            P.I(f"s_nop 0")
            P.I(f"v_permlane{step}_swap_b32 v{s1}, v{t}")
            P.I(f"v_permlane{step}_swap_b32 v{s1b}, v{t + 1}")
            P.I(f"v_add_f32 v{s1}, v{s1}, v{t}")
            P.I(f"v_add_f32 v{s1b}, v{s1b}, v{t + 1}")
        P.I(f"s_mov_b64 exec, {sp(sMLO16)}")
        self.stores([f"buffer_store_dwordx2 {V(s1, 2)}, v{a}, {srd(S_WS)}, s{sT1} offen"])
        P.I(f"s_mov_b64 exec, -1")
        if halo_l is not None:
            lh = self.newlab("nohc")
            P.I(f"s_cmp_eq_u32 s{sHALO}, 0")
            P.I(f"s_cbranch_scc1 {lh}")
            P.optional += 1
            P.I(f"s_lshr_b32 s{sT1}, s{sRB}, 2")
            P.I(f"s_lshl_b32 s{sT2}, s{sT1}, 14")
            P.I(f"s_lshl_b32 s{sT3}, s{sC}, 11")
            P.I(f"s_add_u32 s{sT2}, s{sT2}, s{sT3}")
            P.I(f"s_add_u32 s{sT2}, s{sT2}, {XHALO + halo_l * 0x20000}")
            for u in range(2):
                off = f" offset:{u * 1024}" if u else ""
                P.I(f"buffer_store_dwordx4 {V(vRES + 4 * u, 4)}, v{vL16}, {srd(S_WS)}, s{sT2} offen{off} sc1")
            P.I(f"s_lshl_b32 s{sT2}, s{sT1}, 10")
            P.I(f"s_lshl_b32 s{sT3}, s{sC}, 3")
            P.I(f"s_add_u32 s{sT2}, s{sT2}, s{sT3}")
            P.I(f"s_add_u32 s{sT2}, s{sT2}, {STHALO + halo_l * 0x2000}")
            P.I(f"s_mov_b64 exec, {sp(sMLO16)}")
            P.I(f"buffer_store_dwordx2 {V(s1, 2)}, v{a}, {srd(S_WS)}, s{sT2} offen sc1")
            P.I(f"s_mov_b64 exec, -1")
            P.optional -= 1
            P.label(lh)
            P.fence_hazards(2)

    def phase1(self, part):
        P = self.P; L = self.L
        vB1, vB1h, vX, vXh = 16, 17, 18, 19
        vST = 20
        accQ, accK, accV = 40, 60, 80
        XF = [100, 120]
        WF = [140, 152]
        vONES = 164
        a = 166
        c_, d, e_ = 168, 169, 170
        SI = 172
        CI = 182
        MJ, RJ = 190, 210
        PM, PMf = 230, 234
        if part == 'pre':
            P.I(f"v_lshrrev_b32 v{c_}, 4, v{vLANE}")
            P.I(f"v_bfe_u32 v{d}, v{vLANE}, 2, 2")
            P.I(f"v_and_b32 v{e_}, 1, v{c_}")
            P.I(f"v_lshl_add_u32 v{e_}, v{e_}, 2, v{d}")
            P.I(f"v_and_b32 v{d}, 6, v{e_}")
            P.I(f"s_lshl_b32 s{sT1}, s{sW}, 1")
            P.I(f"v_xor_b32 v{d}, s{sT1}, v{d}")
            P.I(f"v_bfe_u32 v{vB1}, v{vLANE}, 1, 1")
            P.I(f"v_or_b32 v{d}, v{d}, v{vB1}")
            P.I(f"v_lshlrev_b32 v{d}, 4, v{d}")
            P.I(f"v_lshl_add_u32 v{d}, v{e_}, 7, v{d}")
            P.I(f"v_lshrrev_b32 v{c_}, 1, v{c_}")
            P.I(f"v_mul_u32_u24 v{c_}, 3072, v{c_}")
            P.I(f"v_add_u32 v{d}, v{d}, v{c_}")
            P.I(f"v_and_b32 v{c_}, 1, v{vLANE}")
            P.I(f"v_lshl_add_u32 v{vB1}, v{c_}, 3, v{d}")
            P.I(f"v_add_u32 v{vB1h}, 0x10000, v{vB1}")
            P.I(f"v_add_u32 v{vX}, {XB}, v{vL16}")
            P.I(f"v_add_u32 v{vXh}, {XB + 0x10000}, v{vL16}")
            P.I(f"v_mov_b32 v{vONES}, 0x3f803f80")
            for r in range(60):
                P.I(f"v_mov_b32 v{accQ + r}, 0")
            P.I(f"v_and_b32 v{a}, 15, v{vLANE}")
            P.I(f"v_lshlrev_b32 v{a}, 6, v{a}")
            P.I(f"v_lshrrev_b32 v{c_}, 4, v{vLANE}")
            P.I(f"v_lshl_add_u32 v{a}, v{c_}, 4, v{a}")
            P.I(f"v_and_b32 v{c_}, 1, v{vLANE}")
            P.I(f"v_cmp_eq_u32 vcc, 0, v{c_}")
            P.I(f"v_mov_b32 v{d}, {NEG}")
            P.I(f"v_cndmask_b32 v{PM}, v{d}, 0, vcc")
            P.I(f"v_cndmask_b32 v{PM + 1}, 0, v{d}, vcc")
            P.I(f"v_mov_b32 v{PM + 2}, v{PM}")
            P.I(f"v_mov_b32 v{PM + 3}, v{PM + 1}")
            P.I(f"s_cmp_eq_u32 s{sRB}, 0")
            P.I(f"s_cselect_b32 s{sT1}, {NEG}, 0")
            for r in range(4):
                P.I(f"v_mov_b32 v{c_}, s{sT1}")
                P.I(f"v_cndmask_b32 v{c_}, v{c_}, 0, {sp(sMCUR + 2 * r)}")
                P.I(f"v_min_f32 v{PMf + r}, v{c_}, v{PM + r}")
            return
        if part == 'touch':
            lsk = self.newlab("ntch1")
            P.I(f"s_cmp_lg_u32 s{sW}, 1")
            P.I(f"s_cbranch_scc1 {lsk}")
            P.optional += 1
            self.touch16(P, 240, 241, OBUF)
            self.touch32(P, 242, 243)
            self.touch_stats(P, 244, 245, STMID)
            P.optional -= 1
            P.label(lsk)
            P.fence_hazards(2)
            return
        lST = 20; la, lc = 40, 41
        if part == 'lpre':
            L.I(f"s_lshl_b32 s{sXB0}, s{sXT0}, 14")
            L.I(f"s_add_u32 s{sXB0}, s{sXB0}, s{sL2M}")
            L.I(f"s_lshr_b32 s{sT1}, s{sRB}, 2")
            L.I(f"s_lshl_b32 s{sT1}, s{sT1}, 14")
            L.I(f"s_lshr_b32 s{sT2}, s{sL2M}, 4")
            L.I(f"s_add_u32 s{sT1}, s{sT1}, s{sT2}")
            L.I(f"s_add_u32 s{sT1}, s{sT1}, {XHALO - XIN - 0x4000}")
            L.I(f"s_and_b32 s{sT2}, s{sRB}, 3")
            L.I(f"s_cmp_eq_u32 s{sT2}, 0")
            L.I(f"s_cselect_b32 s{sT1}, s{sT1}, s{sXB0}")
            L.I(f"s_cmp_eq_u32 s{sRB}, 0")
            L.I(f"s_cselect_b32 s{sXB0}, s{sXB0}, s{sT1}")
            L.I(f"s_lshl_b32 s{sXB1}, s{sRB}, 16")
            L.I(f"s_add_u32 s{sXB1}, s{sXB1}, s{sL2M}")
            L.I(f"s_lshl_b32 s{sT1}, s{sXT0}, 10")
            L.I(f"s_add_u32 s{sT1}, s{sT1}, s{sLST}")
            L.I(f"s_add_u32 s{sT1}, s{sT1}, {STIN}")
            L.I(f"s_lshr_b32 s{sT2}, s{sRB}, 2")
            L.I(f"s_lshl_b32 s{sT2}, s{sT2}, 10")
            L.I(f"s_lshr_b32 s{sT3}, s{sL2M}, 8")
            L.I(f"s_add_u32 s{sT2}, s{sT2}, s{sT3}")
            L.I(f"s_add_u32 s{sT2}, s{sT2}, {STHALO - 0x400}")
            L.I(f"s_and_b32 s{sT3}, s{sRB}, 3")
            L.I(f"s_cmp_eq_u32 s{sT3}, 0")
            L.I(f"s_cselect_b32 s{sT2}, s{sT2}, s{sT1}")
            L.I(f"s_cmp_eq_u32 s{sRB}, 0")
            L.I(f"s_cselect_b32 s{sT1}, s{sT1}, s{sT2}")
            L.I(f"s_lshl_b32 s{sT2}, s{sRB}, 12")
            L.I(f"s_add_u32 s{sT2}, s{sT2}, s{sLST}")
            L.I(f"s_add_u32 s{sT2}, s{sT2}, {STIN}")
            L.I(f"s_cmp_eq_u32 s{sW}, 0")
            L.I(f"s_cselect_b32 s{sT5}, s{sT2}, s{sT1}")
            L.I(f"s_cselect_b32 s{sT3}, 63, 15")
            L.I(f"s_cselect_b32 s{sT4}, 64, 0")
            L.I(f"s_add_u32 s{sT4}, s{sT4}, {MISC}")
            L.I(f"v_and_b32 v{lc}, s{sT3}, v{vLANE}")
            L.I(f"v_lshlrev_b32 v{la}, 6, v{lc}")
            L.I(f"v_lshlrev_b32 v{lc}, 2, v{lc}")
            L.I(f"v_add_u32 v{lc}, s{sT4}, v{lc}")
            return
        def xdma(m):
            for t in range(5):
                L.I(f"s_add_u32 m0, s{sW5120}, {XB + m * 20480 + t * 1024}")
                if t == 0:
                    L.I(f"s_add_u32 s{sBG}, s{sXB0}, {XIN + m * 4096}")
                else:
                    L.I(f"s_add_u32 s{sBG}, s{sXB1}, {XIN + (t - 1) * 16384 + m * 4096}")
                L.I(f"buffer_load_dwordx4 v{vX1OFF}, {srd(S_WS)}, s{sBG} offen sc1 lds", tag=('X1', m))
        xdma(0)
        lsk = self.newlab("nostat")
        L.I(f"s_cmp_gt_u32 s{sW}, 1")
        L.I(f"s_cbranch_scc1 {lsk}")
        L.optional += 1
        for j in range(4):
            L.I(f"buffer_load_dwordx4 {V(lST + 4 * j, 4)}, v{la}, {srd(S_WS)}, s{sT5} offen offset:{16 * j} sc1")
        L.optional -= 1
        L.label(lsk)
        L.fence_hazards(2)
        for m in range(1, 4):
            xdma(m)
        def stats_finish():
            lsk = self.newlab("nostat2")
            L.I(f"s_cmp_gt_u32 s{sW}, 1")
            L.I(f"s_cbranch_scc1 {lsk}")
            L.optional += 1
            for j in range(4):
                pass
            L.I(f"v_pk_add_f32 {V(lST, 2)}, {V(lST, 2)}, {V(lST + 2, 2)}")
            L.I(f"v_pk_add_f32 {V(lST + 4, 2)}, {V(lST + 4, 2)}, {V(lST + 6, 2)}")
            L.I(f"v_pk_add_f32 {V(lST + 8, 2)}, {V(lST + 8, 2)}, {V(lST + 10, 2)}")
            L.I(f"v_pk_add_f32 {V(lST + 12, 2)}, {V(lST + 12, 2)}, {V(lST + 14, 2)}")
            L.I(f"v_pk_add_f32 {V(lST, 2)}, {V(lST, 2)}, {V(lST + 4, 2)}")
            L.I(f"v_pk_add_f32 {V(lST + 8, 2)}, {V(lST + 8, 2)}, {V(lST + 12, 2)}")
            L.I(f"v_pk_add_f32 {V(lST, 2)}, {V(lST, 2)}, {V(lST + 8, 2)}")
            L.I(f"v_mul_f32 v{lST}, {hex(f2u(-1.0/512))}, v{lST}")
            L.I(f"v_mul_f32 v{lST + 1}, {hex(f2u(1.0/512))}, v{lST + 1}")
            L.I(f"v_fma_f32 v{lST + 1}, -v{lST}, v{lST}, v{lST + 1}")
            L.I(f"v_max_f32 v{lST + 1}, 0, v{lST + 1}")
            L.I(f"v_add_f32 v{lST + 1}, {hex(f2u(1e-5))}, v{lST + 1}")
            L.I(f"v_rsq_f32 v{lST + 1}, v{lST + 1}")
            L.I(f"ds_write_b32 v{lc}, v{lST}")
            L.I(f"ds_write_b32 v{lc}, v{lST + 1} offset:512")
            L.raw("    s_waitcnt lgkmcnt(0)")
            L.optional -= 1
            L.label(lsk)
            L.fence_hazards(2)

        def loads(ks):
            bf = ks & 1
            Ld = []
            def wread(mat):
                base = self.w1_page(ks) * PAGE + mat * 1024
                for half in range(2):
                    off = base + half * 6144
                    reg = vB1 if off < 65536 else vB1h
                    Ld.append(f"ds_read_b64_tr_b16 {V(WF[bf] + 4 * mat + 2 * half, 2)}, v{reg} offset:{off & 0xffff}")
            def xread(t):
                off = (ks * 5 + t) * 1024
                reg = vX if off < 65536 else vXh
                Ld.append(f"ds_read_b128 {V(XF[bf] + 4 * t, 4)}, v{reg} offset:{off & 0xffff}")
            wread(1); xread(1); wread(2); wread(0); xread(0); xread(2); xread(3); xread(4)
            return Ld
        def mfmas(ks):
            bf = ks & 1
            M = []
            for t in (1, 2, 3, 4, 0):
                x = V(XF[bf] + 4 * t, 4)
                M.append(f"v_mfma_f32_16x16x32_bf16 {V(accK + 4 * t, 4)}, {V(WF[bf] + 4, 4)}, {x}, {V(accK + 4 * t, 4)}")
                M.append(f"v_mfma_f32_16x16x32_bf16 {V(accV + 4 * t, 4)}, {x}, {V(WF[bf] + 8, 4)}, {V(accV + 4 * t, 4)}")
                M.append(f"v_mfma_f32_16x16x32_bf16 {V(accQ + 4 * t, 4)}, {V(WF[bf], 4)}, {x}, {V(accQ + 4 * t, 4)}")
            return M
        def xwait(m):
            L.wait_vm_tag(lambda t: t[0] == 'X1' and t[1] <= m)
            L.I(f"s_mov_b64 exec, {sp(sMI0)}")
            L.I(f"ds_write_b128 v{vLONE}, {V(vLONE + 2, 4)} offset:{m * 20480}")
            L.I(f"s_mov_b64 exec, -1")
            L.wait_lg_all()
        def stage_barrier(u):
            self.wait_units('W1', u + 2)
            if (u + 1) % 4 == 0:
                xwait((u + 1) >> 2)
            P.wait_lg_all()
            self.bar()
            if u <= 9:
                self.ld_w1(u + 5); self.ld_w1(u + 6)
            elif u == 11:
                for k in range(0, 6): self.ld_w2(k)
            elif u == 13:
                for k in range(6, 12): self.ld_w2(k)
            if u == 3:
                stats_finish()
            self.ts(3 + (u >> 1), fine=3)
        self.wait_units('W1', 1)
        xwait(0)
        self.bar()
        for x in loads(0):
            P.I(x)
        for ks in range(16):
            M = mfmas(ks)
            bf = ks & 1
            if ks & 1 and ks < 15:
                stage_barrier(ks)
            nxt = loads(ks + 1) if ks + 1 < 16 else []
            for n, m in enumerate(M):
                if n == 0:
                    P.need(regs(WF[bf], 12) + regs(XF[bf] + 4, 4) + regs(XF[bf], 4))
                if n == 3:
                    P.need(regs(XF[bf] + 8, 12))
                P.I(m)
                if nxt:
                    P.I(nxt.pop(0))
                elif ks + 1 < 16 or True:
                    pass
                if n in (11,):
                    pass
                if 7 <= n <= 10:
                    pass
        P.I(f"v_and_b32 v{c_}, 15, v{vLANE}")
        P.I(f"v_lshl_add_u32 v{c_}, v{c_}, 2, 0")
        P.I(f"v_add_u32 v{c_}, {MISC}, v{c_}")
        P.I(f"v_lshrrev_b32 v{d}, 4, v{vLANE}")
        P.I(f"v_lshlrev_b32 v{d}, 4, v{d}")
        P.I(f"v_add_u32 v{d}, {MISC}, v{d}")
        for t in range(5):
            P.I(f"ds_read2_b32 {V(SI + 2 * t, 2)}, v{c_} offset0:{t * 16} offset1:{128 + t * 16}")
        for t in range(5):
            P.I(f"ds_read_b128 {V(MJ + 4 * t, 4)}, v{d} offset:{t * 64}")
            P.I(f"ds_read_b128 {V(RJ + 4 * t, 4)}, v{d} offset:{512 + t * 64}")
        P.wait_lg_all()
        self.bar()
        for t in range(1, 5):
            P.I(f"v_mul_f32 v{CI + 2 * (t - 1)}, {hex(f2u(0.25 * 1.4426950408889634))}, v{SI + 2 * t + 1}")
        for k in range(12, 16):
            self.ld_w2(k)
        for u in range(4):
            self.ld_w3(u)
        self.ts(2)
        csQ, csK, csV = 100, 104, 108
        for r in range(4):
            P.I(f"v_mov_b32_dpp v{csQ + r}, v{accQ + r} row_newbcast:0 row_mask:0xf bank_mask:0xf")
            P.I(f"v_mov_b32_dpp v{csK + r}, v{accK + r} row_newbcast:0 row_mask:0xf bank_mask:0xf")
        P.I(f"v_mov_b32 v{csV}, v{accV}")
        P.I(f"v_mov_b32 v{csV + 1}, v{accV}")
        Qp, Kp, Vp = 20, 30, 110
        BL = "op_sel:[0,0,0] op_sel_hi:[1,0,1]"
        for t in range(5):
            for j in range(2):
                P.I(f"v_pk_fma_f32 {V(accK + 4 * t + 2 * j, 2)}, {V(csK + 2 * j, 2)}, {V(SI + 2 * t, 2)}, {V(accK + 4 * t + 2 * j, 2)} {BL}")
        P.I(f"v_permlane16_swap_b32 v{csV}, v{csV + 1}")
        for t in range(1, 5):
            for j in range(2):
                P.I(f"v_pk_fma_f32 {V(accQ + 4 * t + 2 * j, 2)}, {V(csQ + 2 * j, 2)}, {V(SI + 2 * t, 2)}, {V(accQ + 4 * t + 2 * j, 2)} {BL}")
        P.I(f"v_mov_b32 v{csV + 1}, v{csV}")
        for t in range(5):
            for j in range(2):
                P.I(f"v_pk_mul_f32 {V(accK + 4 * t + 2 * j, 2)}, {V(accK + 4 * t + 2 * j, 2)}, {V(SI + 2 * t, 2)} op_sel:[0,1] op_sel_hi:[1,1]")
        P.I(f"v_permlane32_swap_b32 v{csV}, v{csV + 1}")
        for t in range(1, 5):
            for j in range(2):
                P.I(f"v_cvt_pk_bf16_f32 v{Qp + 2 * (t - 1) + j}, v{accQ + 4 * t + 2 * j}, v{accQ + 4 * t + 2 * j + 1}")
        for t in range(5):
            for j in range(2):
                P.I(f"v_cvt_pk_bf16_f32 v{Kp + 2 * t + j}, v{accK + 4 * t + 2 * j}, v{accK + 4 * t + 2 * j + 1}")
        SP, SC = 40, 60
        for t in range(1, 5):
            q = V(Qp + 2 * (t - 1), 2)
            P.I(f"v_mfma_f32_16x16x16_bf16 {V(SP + 4 * t, 4)}, {V(Kp + 2 * (t - 1), 2)}, {q}, 0")
            P.I(f"v_mfma_f32_16x16x16_bf16 {V(SC + 4 * t, 4)}, {V(Kp + 2 * t, 2)}, {q}, 0")
        for t in range(5):
            for j in range(2):
                P.I(f"v_pk_fma_f32 {V(accV + 4 * t + 2 * j, 2)}, {V(MJ + 4 * t + 2 * j, 2)}, {V(csV, 2)}, {V(accV + 4 * t + 2 * j, 2)} {BL}")
        for t in range(5):
            for j in range(2):
                P.I(f"v_pk_mul_f32 {V(accV + 4 * t + 2 * j, 2)}, {V(accV + 4 * t + 2 * j, 2)}, {V(RJ + 4 * t + 2 * j, 2)}")
        for t in range(5):
            for j in range(2):
                P.I(f"v_cvt_pk_bf16_f32 v{Vp + 2 * t + j}, v{accV + 4 * t + 2 * j}, v{accV + 4 * t + 2 * j + 1}")
        Z = 120
        MX = [0, 140, 142, 144, 146]; TM = [0, 148, 149, 150, 151]; SM = [0, 152, 153, 154, 155]
        def z(t, r): return Z + 4 * (t - 1) + r
        for t in range(1, 5):
            for r in range(4):
                P.I(f"v_cndmask_b32 v{z(t, r)}, v{SP + 4 * t + r}, v{SC + 4 * t + r}, {sp(sMCUR + 2 * r)}")
        for t in range(1, 5):
            pm = PMf if t == 1 else PM
            for j in range(2):
                P.I(f"v_pk_fma_f32 {V(z(t, 2 * j), 2)}, {V(z(t, 2 * j), 2)}, {V(CI + 2 * (t - 1), 2)}, {V(pm + 2 * j, 2)} {BL}")
        for t in range(1, 5):
            P.I(f"v_max3_f32 v{MX[t]}, v{z(t, 0)}, v{z(t, 1)}, v{z(t, 2)}")
        for t in range(1, 5):
            P.I(f"v_max_f32 v{MX[t]}, v{MX[t]}, v{z(t, 3)}")
        for step in ("16", "32"):
            for t in range(1, 5):
                P.I(f"v_mov_b32 v{TM[t]}, v{MX[t]}")
            for t in range(1, 5):
                P.I(f"v_permlane{step}_swap_b32 v{MX[t]}, v{TM[t]}")
            for t in range(1, 5):
                P.I(f"v_max_f32 v{MX[t]}, v{MX[t]}, v{TM[t]}")
        for t in range(1, 5):
            for j in range(2):
                P.I(f"v_pk_add_f32 {V(z(t, 2 * j), 2)}, {V(z(t, 2 * j), 2)}, {V(MX[t], 2)} op_sel_hi:[1,0] neg_lo:[0,1] neg_hi:[0,1]")
        for t in range(1, 5):
            for r in range(4):
                P.I(f"v_exp_f32 v{z(t, r)}, v{z(t, r)}")
        PB = 40
        pk = [0, 156, 158, 160, 162]
        for t in range(1, 5):
            P.I(f"v_add_f32 v{SM[t]}, v{z(t, 0)}, v{z(t, 1)}")
            P.I(f"v_add_f32 v{TM[t]}, v{z(t, 2)}, v{z(t, 3)}")
        for t in range(1, 5):
            P.I(f"v_cvt_pk_bf16_f32 v{pk[t]}, v{z(t, 0)}, v{z(t, 1)}")
            P.I(f"v_cvt_pk_bf16_f32 v{pk[t] + 1}, v{z(t, 2)}, v{z(t, 3)}")
            P.I(f"v_add_f32 v{SM[t]}, v{SM[t]}, v{TM[t]}")
        for t in range(1, 5):
            P.I(f"v_cndmask_b32 v{PB + 4 * t + 0}, v{pk[t]}, 0, {sp(sM01)}")
            P.I(f"v_cndmask_b32 v{PB + 4 * t + 1}, v{pk[t] + 1}, 0, {sp(sM23)}")
            P.I(f"v_cndmask_b32 v{PB + 4 * t + 2}, 0, v{pk[t]}, {sp(sM01)}")
            P.I(f"v_cndmask_b32 v{PB + 4 * t + 3}, 0, v{pk[t] + 1}, {sp(sM23)}")
        O = 60
        for t in range(1, 5):
            P.I(f"v_mfma_f32_16x16x32_bf16 {V(O + 4 * t, 4)}, {V(Vp + 2 * (t - 1), 4)}, {V(PB + 4 * t, 4)}, 0")
        for step in ("16", "32"):
            for t in range(1, 5):
                P.I(f"v_mov_b32 v{TM[t]}, v{SM[t]}")
            for t in range(1, 5):
                P.I(f"v_permlane{step}_swap_b32 v{SM[t]}, v{TM[t]}")
            for t in range(1, 5):
                P.I(f"v_add_f32 v{SM[t]}, v{SM[t]}, v{TM[t]}")
        for t in range(1, 5):
            P.I(f"v_rcp_f32 v{MX[t]}, v{SM[t]}")
        P.I(f"s_and_b32 s{sT1}, s{sW}, 1")
        P.I(f"s_lshl_b32 s{sT1}, s{sT1}, 3")
        P.I(f"v_add_u32 v{c_}, s{sT1}, v{vL16}")
        P.I(f"s_lshl_b32 s{sT1}, s{sRB}, 16")
        P.I(f"s_lshl_b32 s{sT2}, s{sC}, 11")
        P.I(f"s_add_u32 s{sT1}, s{sT1}, s{sT2}")
        P.I(f"s_lshr_b32 s{sT2}, s{sW}, 1")
        P.I(f"s_lshl_b32 s{sT2}, s{sT2}, 10")
        P.I(f"s_add_u32 s{sT1}, s{sT1}, s{sT2}")
        P.I(f"s_add_u32 s{sT1}, s{sT1}, s{sL2M}")
        P.I(f"s_add_u32 s{sT1}, s{sT1}, {OBUF}")
        Op = 84
        for t in range(1, 5):
            for j in range(2):
                P.I(f"v_pk_mul_f32 {V(O + 4 * t + 2 * j, 2)}, {V(O + 4 * t + 2 * j, 2)}, {V(MX[t], 2)} op_sel_hi:[1,0]")
            P.I(f"v_cvt_pk_bf16_f32 v{Op + 2 * t}, v{O + 4 * t}, v{O + 4 * t + 1}")
            P.I(f"v_cvt_pk_bf16_f32 v{Op + 2 * t + 1}, v{O + 4 * t + 2}, v{O + 4 * t + 3}")
        lines = []
        for t in range(1, 5):
            if t > 1:
                lines.append(f"s_add_u32 s{sT2}, s{sT1}, {16384 * (t - 1)}")
            lines.append(f"buffer_store_dwordx2 {V(Op + 2 * t, 2)}, v{c_}, {srd(S_WS)}, s{sT1 if t == 1 else sT2} offen")
        self.stores(lines)

    def gemm_res(self, which, part):
        P = self.P; L = self.L
        nks = 16 if which == 2 else 43
        page = (lambda k: self.W2_PAGES[k]) if which == 2 else self.w4_page
        vB = 16
        acc = 32
        WR = 48; NR = 8; LA = 6
        a, b, c_, d, e_ = 80, 81, 82, 83, 84
        XR = 96; NX = 32
        if part == 'pre':
            P.I(f"v_lshrrev_b32 v{a}, 4, v{vLANE}")
            P.I(f"v_bfe_u32 v{b}, v{vLANE}, 2, 2")
            P.I(f"v_and_b32 v{c_}, 1, v{a}")
            P.I(f"v_lshl_add_u32 v{c_}, v{c_}, 2, v{b}")
            P.I(f"v_and_b32 v{d}, 6, v{c_}")
            P.I(f"v_lshlrev_b32 v{c_}, 7, v{c_}")
            P.I(f"v_lshrrev_b32 v{a}, 1, v{a}")
            P.I(f"v_lshlrev_b32 v{a}, {10 if which == 2 else 11}, v{a}")
            P.I(f"v_add_u32 v{c_}, v{c_}, v{a}")
            P.I(f"v_and_b32 v{b}, 1, v{vLANE}")
            P.I(f"v_lshl_add_u32 v{c_}, v{b}, 3, v{c_}")
            P.I(f"v_bfe_u32 v{b}, v{vLANE}, 1, 1")
            for T in range(4):
                P.I(f"v_xor_b32 v{e_}, {2 * T}, v{d}")
                P.I(f"v_or_b32 v{e_}, v{e_}, v{b}")
                P.I(f"v_lshl_add_u32 v{vB + 3 * T}, v{e_}, 4, v{c_}")
                P.I(f"v_add_u32 v{vB + 3 * T + 1}, 0x10000, v{vB + 3 * T}")
                if which == 4:
                    P.I(f"v_add_u32 v{vB + 3 * T + 2}, 0x20000, v{vB + 3 * T}")
            for r in range(16):
                P.I(f"v_mov_b32 v{acc + r}, 0")
            if which == 2:
                P.I(f"s_lshl_b32 s{sT5}, s{sRT}, 14")
                P.I(f"s_add_u32 s{sT5}, s{sT5}, s{sL2M}")
                P.I(f"s_add_u32 s{sT5}, s{sT5}, {OBUF}")
            else:
                P.I(f"s_mul_i32 s{sT5}, s{sRT}, {43 * 1024}")
                P.I(f"s_add_u32 s{sT5}, s{sT5}, s{sLH}")
                P.I(f"s_add_u32 s{sT5}, s{sT5}, {HBUF}")
            return
        self._xn = 0
        def xload():
            k = self._xn
            if k >= nks: return
            self._xn += 1
            if k % 4 == 0:
                P.I(f"s_add_u32 s{sT1}, s{sT5}, {(k // 4) * 4096}")
            off = f" offset:{(k % 4) * 1024}" if k % 4 else ""
            P.I(f"buffer_load_dwordx4 {V(XR + 4 * (k % NX), 4)}, v{vL16}, {srd(S_WS)}, s{sT1} offen{off} sc1", tag=(f'X{which}', k))
        for _ in range(self.init24):
            xload()
        half_off = 2048 if which == 2 else 1024
        frags = [(k, T) for k in range(nks) for T in range(4)]
        def reads(n):
            k, T = frags[n]
            Ld = []
            for half in range(2):
                off = page(k) * PAGE + half * half_off
                Ld.append(f"ds_read_b64_tr_b16 {V(WR + 4 * (n % NR) + 2 * half, 2)}, v{vB + 3 * T + (off >> 16)} offset:{off & 0xffff}")
            return Ld
        def hook(k):
            if which == 2 and k == 5:
                self.bar()
                self.ld_w3(4); self.ld_w3(5); self.ld_w4(0); self.ld_w4(1)
                if self.touch:
                    lsk = self.newlab("ntch")
                    L.I(f"s_cmp_lg_u32 s{sW}, 3")
                    L.I(f"s_cbranch_scc1 {lsk}")
                    L.optional += 1
                    self.touch_h(L, 60, 61, 62)
                    self.touch16(L, 60, 66, XIN + 0x200000)
                    self.touch_stats(L, 60, 67, STIN + 0x20000)
                    L.optional -= 1
                    L.label(lsk)
                    L.fence_hazards(2)
            if which == 4:
                if k == 8:
                    self.bar()
                    for kk in range(38, 43):
                        self.ld_w4(kk)
                if k == 28:
                    self.wait_units('W4', 42)
                    self.bar()
                    lsk = self.newlab("lnow1")
                    L.I(f"s_cmp_lg_u32 s{sLAYER}, 0")
                    L.I(f"s_cbranch_scc1 {lsk}")
                    L.optional += 1
                    for ks in range(6):
                        self.ld_w1(ks)
                    L.optional -= 1
                    L.label(lsk)
                    L.fence_hazards(2)
        for n in range(LA):
            if frags[n][1] == 0:
                hook(frags[n][0])
            for x in reads(n):
                P.I(x)
        for n, (k, T) in enumerate(frags):
            rd = []
            if n + LA < len(frags):
                if frags[n + LA][1] == 0:
                    hook(frags[n + LA][0])
                rd = reads(n + LA)
            xr = XR + 4 * (k % NX)
            if T in (0, 2):
                P.need([f"v{WR + 4 * ((n + j) % NR) + i}" for j in range(2) for i in range(4)] + regs(xr, 4))
            if T == 0 and which == 2 and k in (0, 2, 4, 6, 8, 10, 12):
                self.ts(9 + k // 2, fine=4)
            if T == 0 and which == 4 and k in (0, 4, 8, 16, 24, 32, 40):
                self.ts(9 + (0, 4, 8, 16, 24, 32, 40).index(k), fine=5)
            P.I(f"v_mfma_f32_16x16x32_bf16 {V(acc + 4 * T, 4)}, {V(WR + 4 * (n % NR), 4)}, {V(xr, 4)}, {V(acc + 4 * T, 4)}")
            for x in rd:
                P.I(x)
            if (T == 1 or (T == 3 and k % 2 == 0 and self._xn < k + 12)) and self._xn <= k + NX - 1:
                xload()
        P.wait_lg_all()
        self.bar()
        self.ts(4 if which == 2 else 8)
        t0 = 80
        for T in range(4):
            for j in range(2):
                rr = vRES + 2 * T + j
                tt = t0 + 2 * ((2 * T + j) % 4)
                P.I(f"v_lshlrev_b32 v{tt}, 16, v{rr}")
                P.I(f"v_and_b32 v{tt + 1}, 0xffff0000, v{rr}")
                P.I(f"v_pk_add_f32 {V(tt, 2)}, {V(tt, 2)}, {V(acc + 4 * T + 2 * j, 2)}")
                P.I(f"v_cvt_pk_bf16_f32 v{rr}, v{tt}, v{tt + 1}")
        if which == 2:
            P.I(f"s_add_u32 s{sT3}, s{sL2M}, {XMID}")
            P.I(f"s_add_u32 s{sT4}, s{sLST}, {STMID}")
            self.emit_x(True, sT3, sT4)
        else:
            self.lfin = self.newlab("final")
            P.I(f"s_cmp_lg_u32 s{sLAYER}, 0")
            P.I(f"s_cbranch_scc1 {self.lfin}")
            L.I(f"s_cmp_lg_u32 s{sLAYER}, 0")
            L.I(f"s_cbranch_scc1 L_lend")
            P.I(f"s_add_u32 s{sT3}, s{sL2M}, {XIN + 0x200000}")
            P.I(f"s_add_u32 s{sT4}, s{sLST}, {STIN + 0x20000}")
            self.emit_x(False, sT3, sT4, halo_l=1)

    def final_store(self):
        P = self.P
        P.label(self.lfin)
        P.fence_hazards(4)
        a, b = 80, 81
        P.I(f"v_and_b32 v{a}, 15, v{vLANE}")
        P.I(f"v_lshlrev_b32 v{a}, 10, v{a}")
        P.I(f"v_lshrrev_b32 v{b}, 4, v{vLANE}")
        P.I(f"v_lshlrev_b32 v{b}, 3, v{b}")
        P.I(f"v_add_u32 v{a}, v{a}, v{b}")
        P.I(f"s_lshl_b32 s{sT0}, s{sRT}, 14")
        P.I(f"s_lshl_b32 s{sT1}, s{sC}, 7")
        P.I(f"s_add_u32 s{sT0}, s{sT0}, s{sT1}")
        for T in range(4):
            P.I(f"buffer_store_dwordx2 {V(vRES + 2 * T, 2)}, v{a}, {srd(S_OUT)}, s{sT0} offen offset:{T * 32}")
        self.ts(9)

    def phase3(self, part):
        P = self.P; L = self.L
        vB3 = 16
        vRS, vNMR = 20, 21
        vST = 24
        tmps = 32
        WR = 40
        XR = 88
        acc = 152
        a, b, c_ = 32, 33, 34
        if part == 'pre':
            P.I(f"v_lshrrev_b32 v{a}, 5, v{vLANE}")
            P.I(f"v_bfe_u32 v{b}, v{vLANE}, 2, 2")
            P.I(f"v_lshl_add_u32 v{a}, v{a}, 2, v{b}")
            P.I(f"v_mul_u32_u24 v{a}, 192, v{a}")
            P.I(f"v_bfe_u32 v{b}, v{vLANE}, 4, 1")
            P.I(f"v_lshl_add_u32 v{a}, v{b}, 5, v{a}")
            P.I(f"v_and_b32 v{b}, 3, v{vLANE}")
            P.I(f"v_lshl_add_u32 v{vB3}, v{b}, 3, v{a}")
            P.I(f"v_add_u32 v{vB3 + 1}, 0x10000, v{vB3}")
            P.I(f"v_add_u32 v{vB3 + 2}, 0x20000, v{vB3}")
            for r in range(96):
                P.I(f"v_mov_b32 v{acc + r}, 0")
            P.I(f"v_and_b32 v{a}, 31, v{vLANE}")
            P.I(f"v_lshlrev_b32 v{a}, 6, v{a}")
            P.I(f"v_lshrrev_b32 v{b}, 5, v{vLANE}")
            P.I(f"v_lshl_add_u32 v{a}, v{b}, 5, v{a}")
            P.I(f"s_lshl_b32 s{sT5}, s{sR32}, 11")
            P.I(f"s_add_u32 s{sT5}, s{sT5}, s{sLST}")
            P.I(f"s_add_u32 s{sT5}, s{sT5}, {STMID}")
            P.I(f"s_lshl_b32 s{sT4}, s{sR32}, 15")
            P.I(f"s_add_u32 s{sT4}, s{sT4}, s{sL2M}")
            P.I(f"s_add_u32 s{sT4}, s{sT4}, {XMID}")
            return
        P.I(f"buffer_load_dwordx4 {V(vST, 4)}, v{a}, {srd(S_WS)}, s{sT5} offen sc1")
        P.I(f"buffer_load_dwordx4 {V(vST + 4, 4)}, v{a}, {srd(S_WS)}, s{sT5} offen offset:16 sc1")
        self._xn = 0
        def xload():
            n = self._xn
            if n >= 32: return
            self._xn += 1
            if n % 4 == 0:
                P.I(f"s_add_u32 s{sT3}, s{sT4}, {(n // 4) * 4096}")
            off = f" offset:{(n % 4) * 1024}" if n % 4 else ""
            P.I(f"buffer_load_dwordx4 {V(XR + 4 * (n % 16), 4)}, v{vL16}, {srd(S_WS)}, s{sT3} offen{off} sc1", tag=('X3', n))
        for n in range(self.init3):
            xload()
        for j in (2, 4, 6):
            P.I(f"v_add_f32 v{vST}, v{vST}, v{vST + j}")
            P.I(f"v_add_f32 v{vST + 1}, v{vST + 1}, v{vST + j + 1}")
        P.I(f"v_mov_b32 v{a}, v{vST}")
        P.I(f"v_mov_b32 v{b}, v{vST + 1}")
        P.I(f"s_nop 0")
        P.I(f"v_permlane32_swap_b32 v{vST}, v{a}")
        P.I(f"v_permlane32_swap_b32 v{vST + 1}, v{b}")
        P.I(f"v_add_f32 v{vST}, v{vST}, v{a}")
        P.I(f"v_add_f32 v{vST + 1}, v{vST + 1}, v{b}")
        P.I(f"v_mul_f32 v{vST}, {hex(f2u(-1.0/512))}, v{vST}")
        P.I(f"v_mul_f32 v{vST + 1}, {hex(f2u(1.0/512))}, v{vST + 1}")
        P.I(f"v_fma_f32 v{vST + 1}, -v{vST}, v{vST}, v{vST + 1}")
        P.I(f"v_max_f32 v{vST + 1}, 0, v{vST + 1}")
        P.I(f"v_add_f32 v{vST + 1}, {hex(f2u(1e-5))}, v{vST + 1}")
        P.I(f"v_rsq_f32 v{vRS}, v{vST + 1}")
        P.I(f"v_mul_f32 v{vNMR}, v{vST}, v{vRS}")

        def norm(n):
            Ld = []
            base = XR + 4 * (n % 16)
            for j in range(4):
                t = tmps + 2 * (j % 4)
                Ld.append(f"v_lshlrev_b32 v{t}, 16, v{base + j}")
                Ld.append(f"v_and_b32 v{t + 1}, 0xffff0000, v{base + j}")
                Ld.append(f"v_fma_f32 v{t}, v{t}, v{vRS}, v{vNMR}")
                Ld.append(f"v_fma_f32 v{t + 1}, v{t + 1}, v{vRS}, v{vNMR}")
                Ld.append(f"v_cvt_pk_bf16_f32 v{base + j}, v{t}, v{t + 1}")
            return Ld
        def wreads(n):
            p, u = n >> 1, n & 1
            Ld = []
            for F in range(3):
                for mat in range(2):
                    fr = WR + 24 * (n & 1) + 4 * (2 * F + mat)
                    for half in range(2):
                        off = self.w3_page(p) * PAGE + mat * 6144 + u * 1536 + half * 3072 + F * 64
                        Ld.append(f"ds_read_b64_tr_b16 {V(fr + 2 * half, 2)}, v{vB3 + (off >> 16)} offset:{off & 0xffff}")
            return Ld
        def mf(n):
            M = []
            for F in range(3):
                for mat in range(2):
                    fr = WR + 24 * (n & 1) + 4 * (2 * F + mat)
                    ac = acc + 16 * (2 * F + mat)
                    M.append(f"v_mfma_f32_32x32x16_bf16 {V(ac, 16)}, {V(fr, 4)}, {V(XR + 4 * (n % 16), 4)}, {V(ac, 16)}")
            return M
        def stage(j):
            self.wait_units('W3', 2 * j + 3)
            P.wait_lg_all()
            self.bar()
            if j <= 4:
                self.ld_w3(6 + 2 * j); self.ld_w3(7 + 2 * j)
            elif j == 5:
                for k in range(2, 11): self.ld_w4(k)
            elif j == 6:
                for k in range(11, 20): self.ld_w4(k)
        for x in wreads(0):
            P.I(x)
        for x in norm(0):
            P.I(x)
        for n in range(32):
            M = mf(n)
            rd, nr = [], []
            if n % 4 == 3 and n < 31:
                stage(n // 4)
            if n + 1 < 32:
                rd = wreads(n + 1)
                nr = norm(n + 1)
                P.need(regs(XR + 4 * ((n + 1) % 16), 4))
            for k, m in enumerate(M):
                if k in (0, 3):
                    P.need(regs(WR + 24 * (n & 1) + 12 * (k // 3), 12))
                if k == 0 and n in (0, 4, 8, 12, 16, 24, 28):
                    self.ts(9 + (0, 4, 8, 12, 16, 24, 28).index(n), fine=6)
                P.I(m)
                for _ in range(2):
                    if rd: P.I(rd.pop(0))
                nv = (len(nr) + (6 - k) - 1) // (6 - k)
                for _ in range(nv):
                    if nr: P.I(nr.pop(0))
                if (k == 1 or (k == 4 and self._xn < n + 10)) and self._xn <= n + 15:
                    xload()
        P.wait_lg_all()
        self.bar()
        for k in range(20, 38):
            self.ld_w4(k)
        self.ts(6)
        vK1 = 20
        P.I(f"v_mov_b32 v{vK1}, {hex(f2u(GC0))}")
        P.I(f"v_mov_b32 v{vK1 + 1}, v{vK1}")
        va = 22
        P.I(f"v_bfe_u32 v{a}, v{vLANE}, 4, 1")
        P.I(f"v_mul_u32_u24 v{a}, {43 * 1024}, v{a}")
        P.I(f"v_lshrrev_b32 v{b}, 5, v{vLANE}")
        P.I(f"v_lshl_add_u32 v{a}, v{b}, 8, v{a}")
        P.I(f"v_and_b32 v{b}, 15, v{vLANE}")
        P.I(f"v_lshl_add_u32 v{va}, v{b}, 4, v{a}")
        P.I(f"s_lshl_b32 s{sT1}, s{sR32}, 1")
        P.I(f"s_mul_i32 s{sT1}, s{sT1}, 43")
        P.I(f"s_add_u32 s{sT1}, s{sT1}, s{sP0}")
        P.I(f"s_lshl_b32 s{sT1}, s{sT1}, 10")
        P.I(f"s_add_u32 s{sT1}, s{sT1}, s{sLH}")
        P.I(f"s_add_u32 s{sT1}, s{sT1}, {HBUF}")
        HP = 40
        T0 = 88
        lskip = self.newlab("nof2")
        for F in range(3):
            if F == 2:
                P.I(f"s_cmp_lt_u32 s{sNP}, 3")
                P.I(f"s_cbranch_scc1 {lskip}")
                P.optional += 1
            G = acc + 16 * (2 * F); U = acc + 16 * (2 * F + 1)
            for grp in range(2):
                prs = [4 * grp + j for j in range(4)]
                def T(j, k): return T0 + 8 * j + 2 * k
                for j, pr in enumerate(prs):
                    P.I(f"v_pk_mul_f32 {V(T(j,0),2)}, {V(G + 2 * pr, 2)}, {V(G + 2 * pr, 2)}")
                for j, pr in enumerate(prs):
                    P.I(f"v_pk_fma_f32 {V(T(j,0),2)}, {V(T(j,0),2)}, {sp(sK3)}, {V(vK1, 2)}")
                for j, pr in enumerate(prs):
                    P.I(f"v_pk_mul_f32 {V(T(j,0),2)}, {V(T(j,0),2)}, {V(G + 2 * pr, 2)}")
                for j, pr in enumerate(prs):
                    P.I(f"v_exp_f32 v{T(j,0)}, v{T(j,0)}")
                    P.I(f"v_exp_f32 v{T(j,0)+1}, v{T(j,0)+1}")
                for j, pr in enumerate(prs):
                    P.I(f"v_pk_mul_f32 {V(T(j,1),2)}, {V(G + 2 * pr, 2)}, {V(U + 2 * pr, 2)}")
                for j, pr in enumerate(prs):
                    P.I(f"v_pk_add_f32 {V(T(j,0),2)}, {V(T(j,0),2)}, {sp(sONEF)}")
                for j, pr in enumerate(prs):
                    P.I(f"v_rcp_f32 v{T(j,0)}, v{T(j,0)}")
                    P.I(f"v_rcp_f32 v{T(j,0)+1}, v{T(j,0)+1}")
                for j, pr in enumerate(prs):
                    P.I(f"v_pk_mul_f32 {V(T(j,1),2)}, {V(T(j,1),2)}, {V(T(j,0),2)}")
                for j, pr in enumerate(prs):
                    P.I(f"v_cvt_pk_bf16_f32 v{HP + 8 * F + pr}, v{T(j,1)}, v{T(j,1)+1}")
            self.stores([f"buffer_store_dwordx4 {V(HP + 8 * F + 4 * AB, 4)}, v{va}, {srd(S_WS)}, s{sT1} offen offset:{F * 1024 + AB * 512}" for AB in range(2)])
            if F == 2:
                P.optional -= 1
                P.label(lskip)
                P.fence_hazards(2)

    def set_layer1(self, P):
        P.I(f"s_mov_b32 s{sLAYER}, 1")
        P.I(f"s_mov_b32 s{sL2M}, 0x200000")
        P.I(f"s_mov_b32 s{sLH}, 0x600000")
        P.I(f"s_mov_b32 s{sLST}, 0x20000")
        P.I(f"s_mov_b32 s{sLFL}, 0x1000")

    def build(self):
        P = self.P; L = self.L
        self.prologue()
        P.I(f"s_mov_b32 s{sT3}, {XIN}")
        P.I(f"s_mov_b32 s{sT4}, {STIN}")
        self.ts(0)
        self.emit_x(False, sT3, sT4, halo_l=0)
        self.finish_phase(0, 0, lambda: self.poll_rb_prev(True), lambda: self.phase1('pre'), first=True)
        P.label("L_layer")
        P.fence_hazards(4)
        L.label("L_llayer")
        L.fence_hazards(2)
        L.vmq = [{'regs': set(), 'tag': ('W1', ks), 'definite': True} for ks in range(6) for _ in range(3)]
        P.vmq = []
        self.phase1('lpre')
        if self.touch: self.phase1('touch')
        self.bar()
        P.I(f"v_mov_b32 v252, {MISC + 4096}")
        P.I(f"ds_read_b32 v253, v252")
        P.I(f"v_readfirstlane_b32 s{sFAST}, v253")
        self.ts(1)
        self.phase1('body')
        self.finish_phase(1, 1, self.poll_rb, lambda: self.gemm_res(2, 'pre'))
        self.wait_units('W2', 15)
        self.bar()
        self.ts(3)
        self.gemm_res(2, 'body')
        self.finish_phase(2, 2, self.poll_pair, lambda: self.phase3('pre'))
        self.wait_units('W3', 1)
        self.bar()
        self.ts(5)
        self.phase3('body')
        self.finish_phase(3, 3, self.poll_pair, lambda: self.gemm_res(4, 'pre'))
        self.wait_units('W4', 37)
        self.bar()
        self.ts(7)
        self.gemm_res(4, 'body')
        self.finish_phase(4, 4, self.poll_rb_prev, lambda: self.phase1('pre'))
        self.set_layer1(P)
        P.I("s_branch L_layer")
        self.set_layer1(L)
        L.I("s_branch L_llayer")
        self.final_store()
        P.label("L_end")
        P.I("s_endpgm")
        L.label("L_lend")
        L.wait_vm_all()
        L.I("s_endpgm")

    def text(self):
        hdr = open('cdna_kernels/' + NAME + '.s.ref').read().split('\n')
        head = [l for l in hdr if l.startswith(';') and '@launch' not in l and 'Override' not in l and 'grid=ceil' not in l]
        s = "\n".join(head) + "\n"
        s += f"; @launch grid=(256,1,1) block=(512,1,1) lds={LDS_BYTES}\n"
        s += '.amdgcn_target "amdgcn-amd-amdhsa--gfx950"\n.text\n'
        s += f".globl {NAME}_kernel\n.p2align 8\n.type {NAME}_kernel,@function\n{NAME}_kernel:\n"
        s += self.P.text()
        s += "L_loader:\n    s_nop 1\n"
        s += self.L.text()
        s += f""".section .rodata,"a"
.p2align 6
.amdhsa_kernel {NAME}_kernel
  .amdhsa_next_free_vgpr 256
  .amdhsa_next_free_sgpr 102
  .amdhsa_accum_offset 256
  .amdhsa_group_segment_fixed_size 0
  .amdhsa_kernarg_size 80
  .amdhsa_user_sgpr_count 2
  .amdhsa_user_sgpr_kernarg_segment_ptr 1
  .amdhsa_system_sgpr_workgroup_id_x 1
.end_amdhsa_kernel
"""
        return s

if __name__ == "__main__":
    import argparse
    ap = argparse.ArgumentParser()
    ap.add_argument('-o', default='cdna_kernels/' + NAME + '.s')
    ap.add_argument('--profile', type=int, default=0)
    ap.add_argument('--drop', default='')
    ap.add_argument('--slow', action='store_true')
    ap.add_argument('--init24', type=int, default=0)
    ap.add_argument('--notouch', action='store_true')
    ap.add_argument('--dbgfast', action='store_true')
    ap.add_argument('--init3', type=int, default=0)
    a = ap.parse_args()
    g = Gen(profile=a.profile, drop=a.drop.split(',') if a.drop else (), force_slow=a.slow)
    if a.notouch: g.touch = False
    g.dbgfast = a.dbgfast
    if a.init24: g.init24 = a.init24
    if a.init3: g.init3 = a.init3
    g.build()
    open(a.o, 'w').write(g.text())
    print("compute instrs:", g.P.ninstr, "nops:", g.P.nops, " loader instrs:", g.L.ninstr,
          " barriers:", sum(1 for l in g.P.out if 's_barrier' in l), sum(1 for l in g.L.out if 's_barrier' in l))
```

```python
import re

REG_RE = re.compile(r'\b([vas])\[(\d+):(\d+)\]|\b([vas])(\d+)\b|\b(vcc|exec|m0|scc)\b')

def regs_of(opnd):
    out = []
    for m in REG_RE.finditer(opnd):
        if m.group(1):
            out += [f"{m.group(1)}{i}" for i in range(int(m.group(2)), int(m.group(3)) + 1)]
        elif m.group(4):
            out.append(f"{m.group(4)}{m.group(5)}")
        else:
            out.append(m.group(6))
    return out

def split_ops(s):
    out, depth, cur = [], 0, ''
    for ch in s:
        if ch in '[(':
            depth += 1
        if ch in '])':
            depth -= 1
        if ch == ',' and depth == 0:
            out.append(cur.strip()); cur = ''
        else:
            cur += ch
    if cur.strip():
        out.append(cur.strip())
    return out

TRANS = ('v_exp_f32', 'v_log_f32', 'v_rcp_f32', 'v_rsq_f32', 'v_sqrt_f32', 'v_sin_f32', 'v_cos_f32')

class Ins:
    __slots__ = ('text', 'mn', 'rd', 'wr', 'kind', 'passes', 'srcc', 'ab', 'comment')

def classify(text):
    t = text.split(';')[0].strip()
    parts = t.split(None, 1)
    mn = parts[0]
    rest = parts[1] if len(parts) > 1 else ''
    ops = split_ops(rest)
    ins = Ins(); ins.text = text; ins.mn = mn; ins.rd = set(); ins.wr = set(); ins.kind = 'other'; ins.passes = 0
    ins.srcc = set(); ins.ab = set()
    def R(i):
        return set(regs_of(ops[i])) if i < len(ops) else set()
    if mn.startswith('v_mfma'):
        ins.kind = 'mfma'
        ins.passes = 8 if '32x32' in mn else 4
        ins.wr = R(0); ins.ab = R(1) | R(2); ins.srcc = R(3); ins.rd = ins.ab | ins.srcc
    elif mn.startswith('v_cmp'):
        ins.kind = 'valu'
        ins.wr = R(0); ins.rd = R(1) | R(2)
    elif mn.startswith('v_readfirstlane') or mn.startswith('v_readlane'):
        ins.kind = 'valu'; ins.wr = R(0); ins.rd = R(1) | R(2)
    elif mn.startswith('v_permlane'):
        ins.kind = 'valu'; ins.wr = R(0) | R(1); ins.rd = R(0) | R(1)
    elif mn.startswith('v_'):
        ins.kind = 'valu'
        ins.wr = R(0)
        for i in range(1, len(ops)):
            ins.rd |= R(i)
        if mn.startswith('v_dot2c') or mn.startswith('v_fmac') or mn.startswith('v_pk_fmac') or 'dpp' in text or mn.endswith('_dpp'):
            ins.rd |= R(0)
        if mn.startswith('v_cndmask') and len(ops) == 3:
            ins.rd.add('vcc')
        if mn.startswith('v_add_co') or mn.startswith('v_addc_co'):
            ins.wr |= R(1)
    elif mn.startswith('ds_read') or mn.startswith('ds_bpermute') or mn.startswith('ds_swizzle'):
        ins.kind = 'ds'; ins.wr = R(0)
        for i in range(1, len(ops)):
            ins.rd |= R(i)
    elif mn.startswith('ds_write'):
        ins.kind = 'ds'
        for i in range(len(ops)):
            ins.rd |= R(i)
    elif mn.startswith('buffer_load'):
        ins.kind = 'vmem'
        if re.search(r'\blds\b', rest):
            for i in range(len(ops)):
                ins.rd |= R(i)
            ins.rd.add('m0'); ins.kind = 'vmem_lds'
        else:
            ins.wr = R(0)
            for i in range(1, len(ops)):
                ins.rd |= R(i)
    elif mn.startswith('buffer_store') or mn.startswith('buffer_atomic'):
        ins.kind = 'vmem_st'
        for i in range(len(ops)):
            ins.rd |= R(i)
        if 'x4' in mn or 'x3' in mn:
            ins.srcc = R(0)
    elif mn.startswith('s_load') or mn.startswith('s_memrealtime') or mn.startswith('s_memtime'):
        ins.kind = 'smem'; ins.wr = R(0)
        for i in range(1, len(ops)):
            ins.rd |= R(i)
    elif mn.startswith('s_cmp') or mn.startswith('s_cbranch') or mn in ('s_branch', 's_barrier', 's_endpgm', 's_sleep', 's_setprio', 's_nop', 's_waitcnt', 's_bitcmp1_b32', 's_bitcmp0_b32'):
        ins.kind = 'salu'
        for i in range(len(ops)):
            ins.rd |= R(i)
    elif mn.startswith('s_'):
        ins.kind = 'salu'; ins.wr = R(0)
        for i in range(1, len(ops)):
            ins.rd |= R(i)
        if 'saveexec' in mn:
            ins.wr.add('exec')
    else:
        raise ValueError("unknown instr " + text)
    return ins

class Prog:
    def __init__(self):
        self.out = []
        self.hist = []
        self.pos = 0
        self.vmq = []
        self.lgq = []
        self._optional = 0
        self._saved = None
        self.nops = 0
        self.ninstr = 0
        self.smem_pending = set()
        self.bg = []
        self.sprinkle = 0
        self._spr_cnt = 0
        self._in_bg = False
        self.scc_live = False

    @property
    def optional(self):
        return self._optional

    @optional.setter
    def optional(self, v):
        if self._optional == 0 and v > 0:
            self._saved = (list(self.vmq), list(self.lgq), set(self.smem_pending))
            for e in self.vmq: e['_old'] = True
            for e in self.lgq: e['_old'] = True
        if self._optional > 0 and v == 0:
            newv = [e for e in self.vmq if not e.get('_old')]
            newl = [e for e in self.lgq if not e.get('_old')]
            self.vmq = self._saved[0] + newv
            self.lgq = self._saved[1] + newl
            for e in newl: e['definite'] = False
            for e in self.vmq: e.pop('_old', None)
            for e in self.lgq: e.pop('_old', None)
            self._saved = None
        self._optional = v

    def bg_push(self, fn):
        self.bg.append(fn)

    def bg_pop(self, n=1):
        if self._in_bg:
            return
        self._in_bg = True
        for _ in range(n):
            if self.bg:
                self.bg.pop(0)()
        self._in_bg = False

    def bg_flush(self):
        self.bg_pop(len(self.bg))

    def need(self, regs):
        touched = set(regs)
        need = None
        for i, e in enumerate(self.vmq):
            if e['regs'] & touched:
                need = i
        if need is not None:
            self._wait_vm(self._younger_definite(self.vmq, need))
        need = None
        for i, e in enumerate(self.lgq):
            if e['regs'] & touched:
                need = i
        if need is not None:
            self._wait_lg(self._younger_definite(self.lgq, need))

    def raw(self, s):
        self.out.append(s)

    def comment(self, s):
        self.out.append("    ; " + s)

    def label(self, name):
        self.out.append(name + ":")

    def _emit_plain(self, text, states=1):
        self.out.append("    " + text)
        self.pos += states
        self.ninstr += 1

    def _wait_vm(self, n):
        n = min(n, 63)
        self._emit_plain(f"s_waitcnt vmcnt({n})")
        keep = []
        cnt = 0
        for e in reversed(self.vmq):
            if cnt < n:
                keep.append(e)
                if e['definite']:
                    cnt += 1
            else:
                break
        self.vmq = list(reversed(keep))

    def _wait_lg(self, n):
        n = min(n, 15)
        self._emit_plain(f"s_waitcnt lgkmcnt({n})")
        keep = []
        cnt = 0
        for e in reversed(self.lgq):
            if cnt < n:
                keep.append(e)
                if e['definite']:
                    cnt += 1
            else:
                break
        self.lgq = list(reversed(keep))
        if n == 0:
            self.smem_pending = set()

    def _younger_definite(self, q, idx):
        return sum(1 for e in q[idx + 1:] if e['definite'])

    def wait_vm_tag(self, pred):
        idxs = [i for i, e in enumerate(self.vmq) if e['tag'] is not None and pred(e['tag'])]
        if not idxs:
            return
        n = self._younger_definite(self.vmq, idxs[-1])
        if n >= 63:
            n = 62
        self._wait_vm(n)

    def wait_vm_all(self):
        self._emit_plain("s_waitcnt vmcnt(0)")
        self.vmq = []

    def wait_lg_all(self):
        self._emit_plain("s_waitcnt lgkmcnt(0)")
        self.lgq = []
        self.smem_pending = set()

    def forget_vm(self):
        self.vmq = []

    def I(self, text, tag=None):
        if getattr(self, 'nomem', False) and text.startswith('buffer_load') and 'S_POLL' not in text and 'v253' not in text:
            return None
        if getattr(self, 'nobar', False) and text.startswith('ds_read'):
            return None
        if tag is not None and tag[0] in getattr(self, 'drop', ()):
            return None
        ins = classify(text)
        touched = ins.rd | ins.wr
        if self.smem_pending & touched:
            self.wait_lg_all()
        need = None
        for i, e in enumerate(self.vmq):
            if e['regs'] & touched:
                need = i
        if need is not None:
            self._wait_vm(self._younger_definite(self.vmq, need))
        need = None
        for i, e in enumerate(self.lgq):
            if e['regs'] & touched:
                need = i
        if need is not None:
            if self.smem_pending:
                self.wait_lg_all()
            else:
                self._wait_lg(self._younger_definite(self.lgq, need))
        req = 0
        for (p, ppos) in self.hist:
            dist = self.pos - ppos - 1
            r = self._hazard(p, ins)
            if r > dist:
                req = max(req, r - dist)
        while req > 0:
            k = min(req, 16)
            self._emit_plain(f"s_nop {k - 1}", states=k)
            self.nops += 1
            req -= k
        self.out.append("    " + text)
        self.ninstr += 1
        self.hist.append((ins, self.pos))
        self.pos += 1
        if ins.mn == 's_nop':
            self.pos += int(text.split()[1])
        self.hist = [(p, pp) for (p, pp) in self.hist if self.pos - pp <= 24]
        if ins.kind in ('vmem', 'vmem_lds', 'vmem_st'):
            self.vmq.append({'regs': set(ins.wr), 'tag': tag, 'definite': self.optional == 0})
        elif ins.kind == 'ds':
            self.lgq.append({'regs': set(ins.wr), 'tag': tag, 'definite': self.optional == 0})
            if len(self.lgq) > 15:
                pass
        elif ins.kind == 'smem':
            self.smem_pending |= ins.wr
        if ins.mn == 's_waitcnt':
            raise ValueError("use wait helpers")
        if ins.mn.startswith('s_cmp') or ins.mn.startswith('s_bitcmp'):
            self.scc_live = True
        elif ins.mn.startswith('s_cbranch_scc'):
            self.scc_live = False
        elif ins.kind == 'valu' or ins.kind == 'mfma':
            if self.scc_live and self._in_bg is False:
                pass
        if self.sprinkle and ins.kind == 'valu' and not self._in_bg and self.optional == 0 and self.bg:
            self._spr_cnt += 1
            if self._spr_cnt >= self.sprinkle:
                self._spr_cnt = 0
                self.bg_pop(1)
        return ins

    def _hazard(self, p, c):
        r = 0
        cv = c.rd | c.wr
        if p.kind == 'valu' and p.mn.startswith('v_dot'):
            if p.wr & cv:
                same_acc = (c.mn == p.mn and (p.wr & c.wr) and not (p.wr & (c.rd - c.wr)))
                if not same_acc:
                    r = max(r, 3)
        if p.kind == 'valu':
            pw = p.wr
            vw = {x for x in pw if x[0] in 'va' and x not in ('vcc',)}
            sw = {x for x in pw if (x[0] == 's' and x != 'scc') or x == 'vcc'}
            if c.kind == 'mfma' and (vw & c.rd):
                r = max(r, 2)
            if c.kind == 'valu':
                if (c.mn.startswith('v_permlane') or 'dpp' in c.text) and (vw & c.rd):
                    r = max(r, 2)
                if (c.mn.startswith('v_readfirstlane') or c.mn.startswith('v_readlane')) and (vw & c.rd):
                    r = max(r, 1)
                if sw & c.rd:
                    r = max(r, 2)
                    if c.mn.startswith('v_readlane') or c.mn.startswith('v_writelane'):
                        r = max(r, 4)
                if p.mn.replace('_e32', '').replace('_e64', '') in TRANS and (vw & c.rd):
                    r = max(r, 1)
                if 'op_sel' in p.text and not p.mn.startswith('v_pk') and (vw & cv):
                    r = max(r, 1)
            if c.kind in ('vmem', 'vmem_lds', 'vmem_st') and (sw & c.rd):
                r = max(r, 5)
            if c.kind in ('salu', 'smem') and (sw & c.rd):
                r = max(r, 4)
            if 'exec' in pw:
                if c.kind == 'mfma':
                    r = max(r, 4)
                if c.kind == 'valu':
                    r = max(r, 5)
        if p.kind == 'mfma':
            big = p.passes == 8
            if c.kind == 'mfma':
                if p.wr & c.ab:
                    r = max(r, 12 if big else 8)
                if p.wr & c.srcc:
                    if not (p.wr == c.srcc and p.passes == c.passes):
                        r = max(r, 10 if big else 6)
                if (p.wr & c.wr) and not (p.wr & c.srcc):
                    r = max(r, 12 if big else 8)
            else:
                if p.wr & cv:
                    r = max(r, 12 if big else 8)
                if c.kind == 'valu' and (p.srcc & c.wr):
                    r = max(r, 7 if big else 3)
        if p.kind == 'vmem_st' and p.srcc:
            if p.srcc & c.wr:
                r = max(r, 2)
        if p.kind == 'salu' and 'm0' in p.wr and c.kind == 'vmem_lds':
            r = max(r, 1)
        if p.kind == 'salu' and 'exec' in p.wr and c.kind == 'mfma':
            r = max(r, 4)
        return r

    def barrier(self):
        self._emit_plain("s_barrier")

    def fence_hazards(self, n=16):
        self._emit_plain(f"s_nop {n - 1}", states=n)

    def text(self):
        return "\n".join(self.out) + "\n"
```

```python
import sys, struct
from asmlib import Prog

NAME = "interleave_layers__sliding_local_dilated__geglu_ffn__prompt"

def f2u(x):
    return struct.unpack('<I', struct.pack('<f', x))[0]

XIN   = 0x000000
XMID  = 0x400000
OBUF  = 0x800000
HBUF  = 0xC00000
STIN  = 0x1800000
STMID = 0x1840000
FLAGS = 0x1900000
FLAGS2 = FLAGS + 0x10000
XHALO = 0x1920000
STHALO = 0x1960000
TSBUF = 0x1A00000
CSBUF = 0x1BF0000
FLAGS3 = 0x1918000
W2S = 0x1C00000
W4S = 0x1C80000
W3S = 0x2000000
WS_SIZE = 0x2400000

S_WS, S_X0, S_WQKV, S_WO, S_W3, S_WD, S_OUT, S_DBG = 8, 12, 16, 20, 24, 32, 36, 40
sRB, sC, sW, sNONCE, sLAYER = 44, 45, 46, 47, 48
sL2M, sLH, sLST, sLFL = 49, 50, 51, 52
sT0, sT1, sT2, sT3, sT4, sT5 = 53, 54, 55, 56, 57, 58
sW3072, sW1024, sW5120, sONES = 59, 60, 61, 62
sRT = 63
sMCUR = 64
sM01, sM23, sMI0, sMLO16 = 72, 74, 76, 78
sP0, sNP, sR32, sCNT = 80, 81, 82, 83
sK3 = 84
sONEF = 86
sTS = 88
sXT0 = 90
sISL = 91
sEXEC = 92
sBG = 96
sXB0, sXB1 = 97, 98
sW2B, sW3B, sW4B = 64, 65, 66
sSH1, sSH2, sSH3, sSH4 = 67, 68, 69, 70
CSL = None
sFAST, sXCC, sHALO = 99, 100, 101
def srd(b): return f"s[{b}:{b+3}]"
def sp(b): return f"s[{b}:{b+1}]"

vL16 = 1
vRES = 2
vLANE = 15
vW1OFF, vW2OFF = 10, 11
vW3OFF = 12
vX1OFF = 16
vLONE = 120

def V(b, n=1):
    return f"v{b}" if n == 1 else f"v[{b}:{b+n-1}]"
def regs(base, n): return [f"v{base + i}" for i in range(n)]

PAGE = 4096
XB = 18 * PAGE
MISC = 38 * PAGE
LDS_BYTES = 40 * PAGE
NEG = hex(f2u(-3.0e38))
GC0 = -2.0 * 0.7978845608028654 * 1.4426950408889634


class Gen:
    def __init__(self, profile=0, drop=(), force_slow=False):
        self.force_slow = force_slow
        self.init24 = 10
        self.init3 = 8
        self.touch = True
        self.tlbwarm = 0
        self.latew1 = False
        self.dbgfast = False
        self.P = Prog()
        self.L = Prog()
        self.P.drop = set(drop); self.L.drop = set(drop)
        self.profile = profile
        self.lab = 0

    def newlab(self, s):
        self.lab += 1
        return f"L_{s}_{self.lab}"

    def bar(self):
        self.P.barrier()
        self.L.barrier()

    def w1_page(self, ks): return (ks % 6) * 3
    W2_PAGES = [12, 13, 14, 15, 16, 17, 0, 1, 2, 3, 4, 5, 6, 7, 8, 9]
    def w3_page(self, u):
        if u < 6: return 18 + 3 * u
        if u < 12: return 3 * (u - 6)
        return 18 + 3 * (u - 12)
    def w4_page(self, k):
        if k < 2: return 36 + k
        if k < 8: return 30 + (k - 2)
        if k < 26: return k - 8
        if k < 38: return 18 + (k - 26)
        return [36, 37, 30, 31, 32][k - 38]

    def dma_group(self, voffs, srd_b, soff_imm, m0_base_s, m0_imm, tag):
        L = self.L
        L.I(f"s_add_u32 m0, s{m0_base_s}, {m0_imm}")
        L.I(f"s_mov_b32 s{sBG}, {soff_imm}")
        for e, voff in enumerate(voffs):
            off = f" offset:{e * 1024}" if e else ""
            L.I(f"buffer_load_dwordx4 v{voff}, {srd(srd_b)}, s{sBG} offen{off} lds", tag=tag)
    def ld_w1(self, ks): self.dma_group([vW1OFF] * 3, S_WQKV, ks * 98304, sW3072, self.w1_page(ks) * PAGE, ('W1', ks))
    def lin(self, base_s, goff, lds_off, tag):
        L = self.L
        L.I(f"s_add_u32 m0, s{sW1024}, {lds_off}")
        L.I(f"s_add_u32 s{sBG}, s{base_s}, {goff}")
        L.I(f"buffer_load_dwordx4 v{vX1OFF}, {srd(S_WS)}, s{sBG} offen lds", tag=tag)
    def ld_w2(self, ks): self.lin(sW2B, ks * 4096, self.W2_PAGES[ks] * PAGE, ('W2', ks))
    def ld_w3(self, u):
        for F in range(3):
            self.lin(sW3B, F * 65536 + u * 4096, self.w3_page(u) * PAGE + F * 4096, ('W3', u))
    def ld_w4(self, k): self.lin(sW4B, k * 4096, self.w4_page(k) * PAGE, ('W4', k))
    def wait_units(self, name, upto):
        self.L.wait_vm_tag(lambda t: t[0] == name and t[1] <= upto)

    def ts(self, idx, fine=False):
        if not self.profile:
            return
        if self.profile >= 3:
            keep = {3: (1, 2), 4: (3, 4), 5: (7, 8), 6: (5, 6)}[self.profile]
            if fine != self.profile and not (fine is False and idx in keep):
                return
        elif fine:
            return
        P = self.P
        l = self.newlab("ts")
        P.I(f"s_cmp_lg_u32 s{sW}, 0")
        P.I(f"s_cbranch_scc1 {l}")
        P.optional += 1
        P.I(f"{'s_memtime' if self.profile >= 2 else 's_memrealtime'} {sp(sTS)}")
        P.raw("    s_waitcnt lgkmcnt(0)")
        P.I(f"s_mov_b64 {sp(sEXEC)}, exec")
        P.I(f"s_mov_b64 exec, 1")
        P.I(f"v_mov_b32 v254, s{sTS}")
        P.I(f"v_mov_b32 v255, s{sTS+1}")
        P.I(f"s_lshl_b32 s95, s2, 8")
        P.I(f"s_lshl_b32 s94, s{sLAYER}, 7")
        P.I(f"s_add_u32 s95, s95, s94")
        P.I(f"s_add_u32 s95, s95, {TSBUF + idx * 8}")
        P.I(f"v_mov_b32 v253, 0")
        P.I(f"buffer_store_dwordx2 v[254:255], v253, {srd(S_WS)}, s95 offen")
        P.I(f"s_mov_b64 exec, {sp(sEXEC)}")
        P.optional -= 1
        P.label(l)
        P.fence_hazards(2)

    def stores(self, lines):
        P = self.P
        ls = self.newlab("slow"); lj = self.newlab("join")
        for t in lines:
            from asmlib import classify
            if t.startswith('buffer_store'):
                P.need(sorted(classify(t).rd))
        P.fence_hazards(8)
        P.I(f"s_cmp_eq_u32 s{sFAST}, 0")
        P.I(f"s_cbranch_scc1 {ls}")
        for t in lines:
            P.I(t, tag=('ST', 0) if t.startswith('buffer_store') else None)
        P.raw(f"    s_branch {lj}")
        P.label(ls)
        for t in lines:
            P.raw("    " + t + (" sc1" if t.startswith('buffer_store') else ""))
        P.label(lj)
        P.fence_hazards(2)

    def signal_and_poll(self, flag_phase, poll_phase, poll_off_v, first=False):
        P = self.P
        l = self.newlab("w0skip")
        P.I(f"s_cmp_lg_u32 s{sW}, 0")
        P.I(f"s_cbranch_scc1 {l}")
        P.optional += 1
        if first:
            lp = self.newlab("npoll"); ld = self.newlab("ndone")
            P.I(f"s_mov_b32 s{sCNT}, 0")
            P.label(lp)
            P.I(f"v_mov_b32 v252, 0")
            P.I(f"buffer_load_dword v253, v252, {srd(S_DBG)}, 0 offen sc1")
            P.raw("    s_waitcnt vmcnt(0)")
            P.I(f"v_readfirstlane_b32 s{sNONCE}, v253")
            P.I(f"s_cmp_lg_u32 s{sNONCE}, 0")
            P.I(f"s_cbranch_scc1 {ld}")
            P.I(f"s_sleep 1")
            P.I(f"s_add_u32 s{sCNT}, s{sCNT}, 1")
            P.I(f"s_cmp_lt_u32 s{sCNT}, 100000")
            P.I(f"s_cbranch_scc1 {lp}")
            P.label(ld)
        P.I(f"s_lshl_b32 s{sT1}, s{sRB}, 3")
        P.I(f"s_add_u32 s{sT1}, s{sT1}, s{sC}")
        P.I(f"s_lshl_b32 s{sT1}, s{sT1}, 2")
        P.I(f"s_add_u32 s{sT1}, s{sT1}, s{sLFL}")
        P.I(f"s_add_u32 s{sT1}, s{sT1}, {FLAGS + flag_phase * 0x400}")
        P.I(f"s_mov_b64 {sp(sEXEC)}, exec")
        P.I(f"s_mov_b64 exec, 1")
        P.I(f"v_mov_b32 v252, 0")
        if first:
            P.I(f"s_or_b32 s{sT2}, s{sNONCE}, s{sXCC}")
            P.I(f"v_mov_b32 v253, s{sT2}")
            P.I(f"buffer_store_dword v253, v252, {srd(S_WS)}, s{sT1} offen sc1")
        else:
            P.I(f"v_mov_b32 v253, s{sNONCE}")
            lsl = self.newlab("fslow"); lfj = self.newlab("fjoin")
            P.I(f"s_cmp_eq_u32 s{sFAST}, 0")
            P.I(f"s_cbranch_scc1 {lsl}")
            P.I(f"buffer_store_dword v253, v252, {srd(S_WS)}, s{sT1} offen")
            P.I(f"s_branch {lfj}")
            P.label(lsl)
            P.I(f"buffer_store_dword v253, v252, {srd(S_WS)}, s{sT1} offen sc1")
            P.label(lfj)
        P.I(f"s_mov_b64 exec, {sp(sEXEC)}")
        lp = self.newlab("poll"); ld = self.newlab("pdone")
        P.I(f"s_add_u32 s{sT1}, s{sLFL}, {FLAGS + poll_phase * 0x400}")
        P.I(f"s_mov_b32 s{sCNT}, 0")
        P.label(lp)
        P.I(f"buffer_load_dword v253, v{poll_off_v}, {srd(S_WS)}, s{sT1} offen sc1")
        P.raw("    s_waitcnt vmcnt(0)")
        P.I(f"v_and_b32 v252, -16, v253")
        P.I(f"v_cmp_ne_u32 vcc, s{sNONCE}, v252")
        P.I(f"s_cmp_eq_u64 vcc, 0")
        P.I(f"s_cbranch_scc1 {ld}")
        P.I(f"s_add_u32 s{sCNT}, s{sCNT}, 1")
        P.I(f"s_cmp_lt_u32 s{sCNT}, 200000")
        P.I(f"s_cbranch_scc1 {lp}")
        P.label(ld)
        if first:
            P.I(f"v_and_b32 v252, 15, v253")
            P.I(f"v_cmp_ne_u32 vcc, s{sXCC}, v252")
            P.I(f"s_cmp_eq_u32 vcc_lo, 0")
            P.I(f"s_cselect_b32 s{sT2}, {0 if self.force_slow else 1}, 0")
            P.I(f"v_mov_b32 v252, {MISC + 4096}")
            P.I(f"v_mov_b32 v253, s{sT2}")
            P.I(f"ds_write_b32 v252, v253")
            P.I(f"v_mov_b32 v253, s{sNONCE}")
            P.I(f"ds_write_b32 v252, v253 offset:4")
            P.raw("    s_waitcnt lgkmcnt(0)")
        P.optional -= 1
        P.label(l)
        P.fence_hazards(4)

    def finish_phase(self, flag_phase, poll_phase, poll_setup, pre, first=False):
        P = self.P
        if flag_phase in (1, 2, 3): self.ts(10 + 2 * (flag_phase - 1))
        pre()
        pv = poll_setup()
        P.wait_vm_tag(lambda t: t[0] == 'ST')
        self.bar()
        if flag_phase in (1, 2, 3): self.ts(11 + 2 * (flag_phase - 1))
        if flag_phase in (0, 4):
            lh = self.newlab("nohalo")
            P.I(f"s_cmp_eq_u32 s{sHALO}, 0")
            P.I(f"s_cbranch_scc1 {lh}")
            P.optional += 1
            P.raw("    s_waitcnt vmcnt(0)")
            if first:
                lp = self.newlab("hn"); ld = self.newlab("hnd")
                P.I(f"s_mov_b32 s{sCNT}, 0")
                P.label(lp)
                P.I(f"v_mov_b32 v252, 0")
                P.I(f"buffer_load_dword v253, v252, {srd(S_DBG)}, 0 offen sc1")
                P.raw("    s_waitcnt vmcnt(0)")
                P.I(f"v_readfirstlane_b32 s{sNONCE}, v253")
                P.I(f"s_cmp_lg_u32 s{sNONCE}, 0")
                P.I(f"s_cbranch_scc1 {ld}")
                P.I(f"s_add_u32 s{sCNT}, s{sCNT}, 1")
                P.I(f"s_cmp_lt_u32 s{sCNT}, 200000")
                P.I(f"s_cbranch_scc1 {lp}")
                P.label(ld)
            P.I(f"s_lshr_b32 s{sT1}, s{sRB}, 2")
            P.I(f"s_lshl_b32 s{sT1}, s{sT1}, 3")
            P.I(f"s_add_u32 s{sT1}, s{sT1}, s{sC}")
            P.I(f"s_lshl_b32 s{sT1}, s{sT1}, 2")
            P.I(f"s_add_u32 s{sT1}, s{sT1}, s{sLFL}")
            P.I(f"s_add_u32 s{sT1}, s{sT1}, {FLAGS2 + flag_phase * 0x400}")
            P.I(f"s_mov_b64 {sp(sEXEC)}, exec")
            P.I(f"s_mov_b64 exec, 1")
            P.I(f"v_mov_b32 v252, 0")
            P.I(f"v_mov_b32 v253, s{sNONCE}")
            P.I(f"buffer_store_dword v253, v252, {srd(S_WS)}, s{sT1} offen sc1")
            P.I(f"s_mov_b64 exec, {sp(sEXEC)}")
            P.optional -= 1
            P.label(lh)
            P.fence_hazards(2)
        self.signal_and_poll(flag_phase, poll_phase, pv, first=first)

    def poll_rb_prev(self, first=False):
        P = self.P
        P.I(f"v_and_b32 v250, 7, v{vLANE}")
        P.I(f"s_lshr_b32 s{sT1}, s{sRB}, 2")
        P.I(f"s_lshl_b32 s{sT1}, s{sT1}, 3")
        P.I(f"s_add_u32 s{sT1}, s{sT1}, {0x4000 - 8}")
        P.I(f"s_lshl_b32 s{sT2}, s{sRB}, 3")
        P.I(f"s_sub_u32 s{sT3}, s{sT2}, 8")
        P.I(f"s_and_b32 s{sT4}, s{sRB}, 3")
        P.I(f"s_cmp_eq_u32 s{sT4}, 0")
        P.I(f"s_cselect_b32 s{sT3}, s{sT1}, s{sT3}")
        P.I(f"s_cmp_eq_u32 s{sRB}, 0")
        P.I(f"s_cselect_b32 s{sT3}, s{sT2}, s{sT3}")
        if not first:
            P.I(f"v_add_u32 v251, s{sT2}, v250")
            P.I(f"v_add_u32 v250, s{sT3}, v250")
            P.I(f"v_and_b32 v249, 8, v{vLANE}")
            P.I(f"v_cmp_eq_u32 vcc, 0, v249")
            P.I(f"v_cndmask_b32 v251, v250, v251, vcc")
        else:
            P.I(f"s_lshr_b32 s{sT1}, s{sRB}, 2")
            P.I(f"s_lshl_b32 s{sT1}, s{sT1}, 5")
            P.I(f"v_and_b32 v251, 31, v{vLANE}")
            P.I(f"v_add_u32 v251, s{sT1}, v251")
            P.I(f"v_add_u32 v250, s{sT3}, v250")
            P.I(f"v_cmp_gt_u32 vcc, 32, v{vLANE}")
            P.I(f"v_cndmask_b32 v251, v250, v251, vcc")
        P.I(f"v_lshlrev_b32 v251, 2, v251")
        return 251
    def poll_rb(self):
        P = self.P
        P.I(f"v_and_b32 v251, 7, v{vLANE}")
        P.I(f"s_lshl_b32 s{sT1}, s{sRB}, 3")
        P.I(f"v_add_u32 v251, s{sT1}, v251")
        P.I(f"v_lshlrev_b32 v251, 2, v251")
        return 251
    def poll_pair(self):
        P = self.P
        P.I(f"v_and_b32 v251, 15, v{vLANE}")
        P.I(f"s_lshr_b32 s{sT1}, s{sRB}, 1")
        P.I(f"s_lshl_b32 s{sT1}, s{sT1}, 4")
        P.I(f"v_add_u32 v251, s{sT1}, v251")
        P.I(f"v_lshlrev_b32 v251, 2, v251")
        return 251

    def touch16(self, S, va, vd, base_const, use_l2m=True, extra_l2m=0):
        S.I(f"v_lshrrev_b32 v{va}, 4, v{vLANE}")
        S.I(f"v_lshlrev_b32 v{va}, 14, v{va}")
        S.I(f"v_and_b32 v{vd}, 15, v{vLANE}")
        S.I(f"v_lshl_add_u32 v{va}, v{vd}, 7, v{va}")
        S.I(f"s_lshl_b32 s{sT1}, s{sRB}, 16")
        S.I(f"s_lshl_b32 s{sT2}, s{sC}, 11")
        S.I(f"s_add_u32 s{sT1}, s{sT1}, s{sT2}")
        S.I(f"s_add_u32 s{sT1}, s{sT1}, s{sL2M}")
        S.I(f"s_add_u32 s{sT1}, s{sT1}, {base_const}")
        S.I(f"buffer_load_dword v{vd}, v{va}, {srd(S_WS)}, s{sT1} offen")
    def touch32(self, S, va, vd):
        S.I(f"v_lshrrev_b32 v{va}, 5, v{vLANE}")
        S.I(f"v_lshlrev_b32 v{va}, 15, v{va}")
        S.I(f"v_and_b32 v{vd}, 31, v{vLANE}")
        S.I(f"v_lshl_add_u32 v{va}, v{vd}, 7, v{va}")
        S.I(f"s_lshl_b32 s{sT1}, s{sRB}, 16")
        S.I(f"s_lshl_b32 s{sT2}, s{sC}, 12")
        S.I(f"s_add_u32 s{sT1}, s{sT1}, s{sT2}")
        S.I(f"s_add_u32 s{sT1}, s{sT1}, s{sL2M}")
        S.I(f"s_add_u32 s{sT1}, s{sT1}, {XMID}")
        S.I(f"buffer_load_dword v{vd}, v{va}, {srd(S_WS)}, s{sT1} offen")
    def touch_stats(self, S, va, vd, base_const):
        S.I(f"v_and_b32 v{va}, 31, v{vLANE}")
        S.I(f"v_lshlrev_b32 v{va}, 7, v{va}")
        S.I(f"s_lshl_b32 s{sT1}, s{sRB}, 12")
        S.I(f"s_add_u32 s{sT1}, s{sT1}, s{sLST}")
        S.I(f"s_add_u32 s{sT1}, s{sT1}, {base_const}")
        S.I(f"buffer_load_dword v{vd}, v{va}, {srd(S_WS)}, s{sT1} offen")
    def touch_h(self, S, va, vb, vd):
        S.I(f"s_lshr_b32 s{sT1}, s{sRB}, 1")
        S.I(f"s_mul_i32 s{sT1}, s{sT1}, {8 * 43}")
        S.I(f"s_add_u32 s{sT1}, s{sT1}, s{sP0}")
        S.I(f"s_lshl_b32 s{sT1}, s{sT1}, 10")
        S.I(f"s_add_u32 s{sT1}, s{sT1}, s{sLH}")
        S.I(f"s_add_u32 s{sT1}, s{sT1}, {HBUF}")
        for e in range(3):
            S.I(f"v_add_u32 v{va}, {64 * e}, v{vLANE}")
            S.I(f"v_mul_u32_u24 v{vb}, 43691, v{va}")
            S.I(f"v_lshrrev_b32 v{vb}, 20, v{vb}")
            S.I(f"v_mul_u32_u24 v{vd + e}, 24, v{vb}")
            S.I(f"v_sub_u32 v{va}, v{va}, v{vd + e}")
            S.I(f"v_lshlrev_b32 v{va}, 7, v{va}")
            S.I(f"v_mul_u32_u24 v{vb}, {43 * 1024}, v{vb}")
            S.I(f"v_add_u32 v{va}, v{va}, v{vb}")
            S.I(f"buffer_load_dword v{vd + e}, v{va}, {srd(S_WS)}, s{sT1} offen")

    def prologue(self):
        P = self.P; L = self.L
        P.I("s_cmp_ge_u32 s2, 256")
        P.I("s_cbranch_scc1 L_end")
        P.I("s_load_dwordx16 s[64:79], s[0:1], 0")
        P.I("s_load_dwordx4 s[84:87], s[0:1], 64")
        P.I(f"s_and_b32 s{sT0}, s2, 7")
        P.I(f"s_lshr_b32 s{sT1}, s2, 3")
        P.I(f"s_lshl_b32 s{sRB}, s{sT0}, 2")
        P.I(f"s_lshr_b32 s{sT2}, s{sT1}, 3")
        P.I(f"s_add_u32 s{sRB}, s{sRB}, s{sT2}")
        P.I(f"s_and_b32 s{sC}, s{sT1}, 7")
        P.I(f"v_lshrrev_b32 v1, 6, v0")
        P.I(f"v_and_b32 v{vLANE}, 63, v0")
        P.I(f"v_readfirstlane_b32 s{sW}, v1")
        P.I(f"v_lshlrev_b32 v{vL16}, 4, v{vLANE}")
        P.I(f"s_lshr_b32 s{sISL}, s{sW}, 2")
        P.I(f"s_and_b32 s{sW}, s{sW}, 3")
        P.wait_lg_all()
        def mk(b, ptr, size):
            P.I(f"s_mov_b32 s{b}, s{ptr}")
            P.I(f"s_and_b32 s{b+1}, s{ptr+1}, 0xffff")
            P.I(f"s_mov_b32 s{b+2}, {size}")
            P.I(f"s_mov_b32 s{b+3}, 0x20000")
        mk(S_X0, 64, 2048 * 512 * 2)
        mk(S_WQKV, 66, 512 * 1536 * 2)
        mk(S_WO, 68, 512 * 512 * 2)
        mk(S_WD, 76, 1376 * 512 * 2)
        mk(S_OUT, 78, 2048 * 512 * 2)
        mk(S_DBG, 84, 256)
        mk(S_WS, 86, WS_SIZE)
        P.I(f"s_cmp_lt_u32 s{sW}, 2")
        P.I(f"s_cselect_b32 s{S_W3}, s72, s74")
        P.I(f"s_cselect_b32 s{sT0}, s73, s75")
        P.I(f"s_and_b32 s{S_W3+1}, s{sT0}, 0xffff")
        P.I(f"s_mov_b32 s{S_W3+2}, {512 * 1376 * 2}")
        P.I(f"s_mov_b32 s{S_W3+3}, 0x20000")
        P.I(f"s_mul_i32 s{sW3072}, s{sW}, 3072")
        P.I(f"s_lshl_b32 s{sW1024}, s{sW}, 10")
        P.I(f"s_mul_i32 s{sW5120}, s{sW}, 5120")
        P.I(f"s_mov_b32 s{sONES}, 0x3f803f80")
        P.I(f"s_lshl_b32 s{sRT}, s{sRB}, 2")
        P.I(f"s_add_u32 s{sRT}, s{sRT}, s{sW}")
        for r in (sLAYER, sL2M, sLH, sLST, sLFL):
            P.I(f"s_mov_b32 s{r}, 0")
        P.I(f"s_and_b32 s{sT0}, s{sRB}, 1")
        P.I(f"s_lshl_b32 s{sT0}, s{sT0}, 3")
        P.I(f"s_add_u32 s{sT0}, s{sT0}, s{sC}")
        P.I(f"s_mul_i32 s{sT1}, s{sT0}, 3")
        P.I(f"s_lshl_b32 s{sT2}, s{sT0}, 1")
        P.I(f"s_add_u32 s{sT2}, s{sT2}, 11")
        P.I(f"s_cmp_le_u32 s{sT0}, 10")
        P.I(f"s_cselect_b32 s{sP0}, s{sT1}, s{sT2}")
        P.I(f"s_cselect_b32 s{sNP}, 3, 2")
        P.I(f"s_lshr_b32 s{sT0}, s{sRB}, 1")
        P.I(f"s_lshl_b32 s{sT0}, s{sT0}, 2")
        P.I(f"s_add_u32 s{sR32}, s{sT0}, s{sW}")
        P.I(f"s_lshl_b32 s{sT1}, s{sRB}, 2")
        P.I(f"s_sub_u32 s{sT2}, s{sT1}, 1")
        P.I(f"s_max_i32 s{sXT0}, s{sT2}, 0")
        P.I(f"s_getreg_b32 s{sXCC}, hwreg(HW_REG_XCC_ID, 0, 4)")
        P.I(f"s_mov_b32 s{sFAST}, 0")
        P.I(f"s_and_b32 s{sT0}, s{sRT}, 15")
        P.I(f"s_cmp_eq_u32 s{sT0}, 15")
        P.I(f"s_cselect_b32 s{sHALO}, 1, 0")
        P.I(f"s_cmp_lg_u32 s{sISL}, 0")
        P.I(f"s_cbranch_scc1 L_loader")
        a, b, c_ = 20, 21, 22
        L.I(f"v_lshrrev_b32 v{a}, 3, v{vLANE}")
        L.I(f"v_and_b32 v{b}, 6, v{a}")
        L.I(f"v_and_b32 v{c_}, 7, v{vLANE}")
        L.I(f"v_xor_b32 v{c_}, v{c_}, v{b}")
        L.I(f"v_lshlrev_b32 v{c_}, 4, v{c_}")
        L.I(f"s_lshl_b32 s{sT0}, s{sC}, 7")
        L.I(f"v_add_u32 v{c_}, s{sT0}, v{c_}")
        L.I(f"s_lshl_b32 s{sT1}, s{sW}, 3")
        L.I(f"v_add_u32 v{a}, s{sT1}, v{a}")
        L.I(f"v_mul_u32_u24 v{b}, 3072, v{a}")
        L.I(f"v_add_u32 v{vW1OFF}, v{b}, v{c_}")
        L.I(f"v_lshlrev_b32 v{b}, 10, v{a}")
        L.I(f"v_add_u32 v{vW2OFF}, v{b}, v{c_}")
        L.I(f"v_add_u32 v{vX1OFF}, s{sW1024}, v{vL16}")
        L.I(f"s_add_u32 s{sT0}, s{sW5120}, {XB}")
        L.I(f"v_add_u32 v{vLONE}, s{sT0}, v{vL16}")
        for j in range(4):
            L.I(f"v_mov_b32 v{vLONE + 2 + j}, 0x3f803f80")
        L.I(f"s_mov_b32 s{sMI0}, 0x00010001")
        L.I(f"s_mov_b32 s{sMI0 + 1}, 0x00010001")
        self.shuffle()
        if self.tlbwarm:
            lw = self.newlab("tlbw")
            P.I(f"s_cmp_lt_u32 s{sW}, 2")
            P.I(f"s_cbranch_scc1 {lw}")
            P.optional += 1
            P.I(f"v_lshlrev_b32 v30, {self.tlbwarm}, v{vLANE}")
            P.I(f"buffer_load_dword v31, v30, {srd(S_WS)}, 0 offen")
            P.I(f"v_lshlrev_b32 v30, 15, v{vLANE}")
            P.I(f"buffer_load_dword v32, v30, {srd(S_OUT)}, 0 offen")
            P.optional -= 1
            P.label(lw)
            P.fence_hazards(2)
        l = self.newlab("nonce")
        P.I(f"s_or_b32 s{sT0}, s2, s{sW}")
        P.I(f"s_cmp_lg_u32 s{sT0}, 0")
        P.I(f"s_cbranch_scc1 {l}")
        P.optional += 1
        P.I(f"s_memrealtime {sp(sTS)}")
        P.raw("    s_waitcnt lgkmcnt(0)")
        P.I(f"s_or_b32 s{sT1}, s{sTS}, 16")
        P.I(f"s_andn2_b32 s{sT1}, s{sT1}, 15")
        P.I(f"v_mov_b32 v20, s{sT1}")
        P.I(f"v_mov_b32 v21, 0")
        P.I(f"s_mov_b64 exec, 1")
        P.I(f"buffer_store_dword v20, v21, {srd(S_DBG)}, 0 offen sc1")
        P.I(f"s_mov_b64 exec, -1")
        P.optional -= 1
        P.label(l)
        P.fence_hazards(2)
        P.I(f"v_and_b32 v{a}, 15, v{vLANE}")
        P.I(f"v_lshlrev_b32 v{a}, 10, v{a}")
        P.I(f"v_lshrrev_b32 v{b}, 4, v{vLANE}")
        P.I(f"v_lshlrev_b32 v{b}, 3, v{b}")
        P.I(f"v_add_u32 v{a}, v{a}, v{b}")
        P.I(f"s_lshl_b32 s{sT0}, s{sRT}, 14")
        P.I(f"s_lshl_b32 s{sT1}, s{sC}, 7")
        P.I(f"s_add_u32 s{sT0}, s{sT0}, s{sT1}")
        for T in range(4):
            P.I(f"buffer_load_dwordx2 {V(vRES + 2 * T, 2)}, v{a}, {srd(S_X0)}, s{sT0} offen offset:{T * 32}")
        d = 23
        P.I(f"v_and_b32 v{a}, 15, v{vLANE}")
        P.I(f"v_lshrrev_b32 v{b}, 4, v{vLANE}")
        P.I(f"v_lshlrev_b32 v{b}, 2, v{b}")
        for r in range(4):
            P.I(f"v_add_u32 v{c_}, {r}, v{b}")
            P.I(f"v_cmp_ge_u32 {sp(sMCUR + 2 * r)}, v{a}, v{c_}")
        P.I(f"v_and_b32 v{d}, 1, v{a}")
        P.I(f"v_add_u32 v{c_}, v{b}, v{d}")
        P.I(f"v_cmp_ge_u32 {sp(sM01)}, v{a}, v{c_}")
        P.I(f"v_add_u32 v{c_}, 2, v{c_}")
        P.I(f"v_cmp_ge_u32 {sp(sM23)}, v{a}, v{c_}")
        P.I(f"v_cmp_eq_u32 {sp(sMI0)}, 0, v{a}")
        P.I(f"s_mov_b64 {sp(sMLO16)}, 0xffff")
        P.I(f"s_mov_b32 s{sK3}, {hex(f2u(GC0 * 0.044715))}")
        P.I(f"s_mov_b32 s{sK3+1}, {hex(f2u(GC0 * 0.044715))}")
        P.I(f"s_mov_b32 s{sONEF}, 1.0")
        P.I(f"s_mov_b32 s{sONEF+1}, 1.0")

    def shuffle(self):
        L = self.L
        STG = XB
        SRC = S_W3
        a, b, c_, d = 20, 21, 22, 23
        F0 = 84
        ACC, ONE = 64, 80
        lA = self.newlab("shA"); lB = self.newlab("shB"); lE = self.newlab("shE")
        L.I(f"s_lshl_b32 s{sW2B}, s{sC}, 16")
        L.I(f"s_add_u32 s{sW2B}, s{sW2B}, {W2S}")
        L.I(f"s_lshl_b32 s{sW3B}, s{sP0}, 16")
        L.I(f"s_add_u32 s{sW3B}, s{sW3B}, {W3S}")
        L.I(f"s_mul_i32 s{sW4B}, s{sC}, {43 * 4096}")
        L.I(f"s_add_u32 s{sW4B}, s{sW4B}, {W4S}")
        L.optional += 1
        L.I(f"s_cmp_lt_u32 s2, 86")
        L.I(f"s_cbranch_scc1 {lA}")
        L.I(f"s_cmp_lt_u32 s2, 204")
        L.I(f"s_cbranch_scc1 {lB}")
        for ks in range(6):
            self.ld_w1(ks)
        L.I(f"s_branch {lE}")
        L.label(lA)
        L.I(f"s_and_b32 s{sT0}, s2, 1")
        L.I(f"s_cmp_eq_u32 s{sT0}, 0")
        L.I(f"s_cselect_b32 s{SRC}, s72, s74")
        L.I(f"s_cselect_b32 s{sT1}, s73, s75")
        L.I(f"s_and_b32 s{SRC + 1}, s{sT1}, 0xffff")
        L.I(f"s_mov_b32 s{SRC + 2}, {512 * 1376 * 2}")
        L.I(f"s_mov_b32 s{SRC + 3}, 0x20000")
        L.I(f"v_lshrrev_b32 v{a}, 2, v{vLANE}")
        L.I(f"v_mul_u32_u24 v{a}, 2752, v{a}")
        L.I(f"v_and_b32 v{b}, 3, v{vLANE}")
        L.I(f"v_lshl_add_u32 v{a}, v{b}, 4, v{a}")
        L.I(f"s_lshr_b32 s{sSH1}, s2, 1")
        L.I(f"s_lshl_b32 s{sT1}, s{sSH1}, 6")
        L.I(f"s_mul_i32 s{sT2}, s{sW}, {32 * 2752}")
        L.I(f"s_add_u32 s{sT1}, s{sT1}, s{sT2}")
        L.I(f"s_lshl_b32 s{sT2}, s{sW}, 11")
        for i in range(4):
            for half in range(2):
                L.I(f"s_add_u32 m0, s{sT2}, {STG + i * 8192 + half * 1024}")
                L.I(f"s_add_u32 s{sBG}, s{sT1}, {(i * 128 + half * 16) * 2752}")
                L.I(f"buffer_load_dwordx4 v{a}, {srd(SRC)}, s{sBG} offen lds")
        L.I(f"v_lshrrev_b32 v{b}, 5, v{vLANE}")
        L.I(f"v_bfe_u32 v{c_}, v{vLANE}, 2, 2")
        L.I(f"v_lshl_add_u32 v{b}, v{b}, 2, v{c_}")
        L.I(f"v_lshlrev_b32 v{b}, 6, v{b}")
        L.I(f"v_bfe_u32 v{c_}, v{vLANE}, 4, 1")
        L.I(f"v_lshl_add_u32 v{b}, v{c_}, 5, v{b}")
        L.I(f"v_and_b32 v{c_}, 3, v{vLANE}")
        L.I(f"v_lshl_add_u32 v{b}, v{c_}, 3, v{b}")
        L.I(f"s_add_u32 s{sT2}, s{sT2}, {STG}")
        L.I(f"v_add_u32 v{b}, s{sT2}, v{b}")
        for r in range(16):
            L.I(f"v_mov_b32 v{ACC + r}, 0")
        for r in range(4):
            L.I(f"v_mov_b32 v{ONE + r}, 0x3f803f80")
        L.I(f"s_lshl_b32 s{sT1}, s{sSH1}, 16")
        L.I(f"s_and_b32 s{sT0}, s2, 1")
        L.I(f"s_lshl_b32 s{sT0}, s{sT0}, 10")
        L.I(f"s_add_u32 s{sT1}, s{sT1}, s{sT0}")
        L.I(f"s_lshl_b32 s{sT0}, s{sW}, 12")
        L.I(f"s_add_u32 s{sT1}, s{sT1}, s{sT0}")
        L.I(f"s_add_u32 s{sT1}, s{sT1}, {W3S}")
        L.I(f"s_mov_b32 s{sSH4}, s{sT1}")
        for ks in range(6):
            self.ld_w1(ks)
        L.I(f"s_mov_b32 s{sT1}, s{sSH4}")
        L.raw("    s_waitcnt vmcnt(18)")
        for i in range(4):
            for u in range(2):
                fr = F0 + 4 * (2 * i + u)
                for half in range(2):
                    L.I(f"ds_read_b64_tr_b16 {V(fr + 2 * half, 2)}, v{b} offset:{i * 8192 + u * 512 + half * 1024}")
        for i in range(4):
            for u in range(2):
                fr = F0 + 4 * (2 * i + u)
                L.I(f"v_mfma_f32_32x32x16_bf16 {V(ACC, 16)}, {V(fr, 4)}, {V(ONE, 4)}, {V(ACC, 16)}")
                L.I(f"s_add_u32 s{sBG}, s{sT1}, {i * 16384 + u * 2048}")
                L.I(f"buffer_store_dwordx4 {V(fr, 4)}, v{vL16}, {srd(S_WS)}, s{sBG} offen sc1")
        L.I(f"s_lshl_b32 s{sT1}, s2, 2")
        L.I(f"s_add_u32 s{sT1}, s{sT1}, s{sW}")
        L.I(f"s_lshl_b32 s{sT1}, s{sT1}, 7")
        L.I(f"s_add_u32 s{sT1}, s{sT1}, {CSBUF}")
        L.I(f"v_lshrrev_b32 v{a}, 5, v{vLANE}")
        L.I(f"v_lshlrev_b32 v{a}, 6, v{a}")
        L.I(f"s_mov_b32 s{sSH2}, 1")
        L.I(f"s_mov_b32 s{sSH3}, 1")
        L.I(f"s_mov_b64 exec, {sp(sSH2)}")
        for j in range(4):
            L.I(f"buffer_store_dwordx4 {V(ACC + 4 * j, 4)}, v{a}, {srd(S_WS)}, s{sT1} offen offset:{16 * j} sc1")
        L.I(f"s_mov_b64 exec, -1")
        L.I(f"s_branch {lE}")
        L.label(lB)
        L.I(f"s_sub_u32 s{sT0}, s2, 86")
        L.I(f"s_lshl_b32 s{sT0}, s{sT0}, 2")
        L.I(f"s_add_u32 s{sT0}, s{sT0}, s{sW}")
        L.I(f"s_sub_u32 s{sT1}, s{sT0}, 128")
        L.I(f"s_mul_i32 s{sT2}, s{sT1}, 1525")
        L.I(f"s_lshr_b32 s{sT2}, s{sT2}, 16")
        L.I(f"s_mul_i32 s{sT3}, s{sT2}, 43")
        L.I(f"s_sub_u32 s{sT3}, s{sT1}, s{sT3}")
        L.I(f"s_lshr_b32 s{sT4}, s{sT0}, 4")
        L.I(f"s_and_b32 s{sT5}, s{sT0}, 15")
        L.I(f"s_lshl_b32 s{sSH1}, s{sT0}, 12")
        L.I(f"s_add_u32 s{sSH1}, s{sSH1}, {W2S}")
        L.I(f"s_lshl_b32 s{sSH2}, s{sT1}, 12")
        L.I(f"s_add_u32 s{sSH2}, s{sSH2}, {W4S}")
        L.I(f"s_cmp_lt_u32 s{sT0}, 128")
        L.I(f"s_cselect_b32 s{sT2}, s{sT4}, s{sT2}")
        L.I(f"s_cselect_b32 s{sT3}, s{sT5}, s{sT3}")
        L.I(f"s_cselect_b32 s{sSH1}, s{sSH1}, s{sSH2}")
        L.I(f"s_cselect_b32 s{SRC}, s{S_WO}, s{S_WD}")
        L.I(f"s_cselect_b32 s{SRC + 1}, s{S_WO + 1}, s{S_WD + 1}")
        L.I(f"s_cselect_b32 s{SRC + 2}, s{S_WO + 2}, s{S_WD + 2}")
        L.I(f"s_cselect_b32 s{sSH3}, 10, 11")
        L.I(f"s_cselect_b32 s{sSH4}, 2, 1")
        L.I(f"s_lshl_b32 s{sSH4}, s{sSH4}, 10")
        L.I(f"s_mov_b32 s{SRC + 3}, 0x20000")
        L.I(f"s_lshl_b32 s{sT3}, s{sT3}, 15")
        L.I(f"s_lshl_b32 s{sT2}, s{sT2}, 7")
        L.I(f"s_add_u32 s{sT3}, s{sT3}, s{sT2}")
        L.I(f"v_lshrrev_b32 v{a}, 3, v{vLANE}")
        L.I(f"v_and_b32 v{b}, 6, v{a}")
        L.I(f"v_and_b32 v{c_}, 7, v{vLANE}")
        L.I(f"v_xor_b32 v{c_}, v{c_}, v{b}")
        L.I(f"v_lshlrev_b32 v{c_}, 4, v{c_}")
        L.I(f"v_lshl_add_u32 v{a}, v{a}, 10, v{c_}")
        L.I(f"s_lshl_b32 s{sT2}, s{sW}, 12")
        for j in range(4):
            L.I(f"s_add_u32 m0, s{sT2}, {STG + j * 1024}")
            L.I(f"s_add_u32 s{sBG}, s{sT3}, {j * 8192}")
            L.I(f"buffer_load_dwordx4 v{a}, {srd(SRC)}, s{sBG} offen lds")
        g_, r_, lb, q_ = 56, 57, 58, 59
        L.I(f"v_lshrrev_b32 v{g_}, 4, v{vLANE}")
        L.I(f"v_bfe_u32 v{r_}, v{vLANE}, 2, 2")
        L.I(f"v_and_b32 v{c_}, 1, v{g_}")
        L.I(f"v_lshl_add_u32 v{c_}, v{c_}, 2, v{r_}")
        L.I(f"v_and_b32 v{lb}, 6, v{c_}")
        L.I(f"v_lshlrev_b32 v{c_}, 7, v{c_}")
        L.I(f"v_lshrrev_b32 v{g_}, 1, v{g_}")
        L.I(f"v_lshlrev_b32 v{g_}, s{sSH3}, v{g_}")
        L.I(f"v_add_u32 v{c_}, v{c_}, v{g_}")
        L.I(f"v_and_b32 v{r_}, 1, v{vLANE}")
        L.I(f"v_lshl_add_u32 v{c_}, v{r_}, 3, v{c_}")
        L.I(f"s_add_u32 s{sT2}, s{sT2}, {STG}")
        L.I(f"v_add_u32 v{c_}, s{sT2}, v{c_}")
        L.I(f"v_bfe_u32 v{r_}, v{vLANE}, 1, 1")
        for T in range(4):
            L.I(f"v_xor_b32 v{q_}, {2 * T}, v{lb}")
            L.I(f"v_or_b32 v{q_}, v{q_}, v{r_}")
            L.I(f"v_lshl_add_u32 v{60 + 2 * T}, v{q_}, 4, v{c_}")
            L.I(f"v_add_u32 v{61 + 2 * T}, s{sSH4}, v{60 + 2 * T}")
        for ks in range(6):
            self.ld_w1(ks)
        L.raw("    s_waitcnt vmcnt(18)")
        for T in range(4):
            L.I(f"ds_read_b64_tr_b16 {V(F0 + 4 * T, 2)}, v{60 + 2 * T}")
            L.I(f"ds_read_b64_tr_b16 {V(F0 + 4 * T + 2, 2)}, v{61 + 2 * T}")
        L.I(f"s_cmp_ge_u32 s{sT0}, 472")
        L.I(f"s_cbranch_scc1 {lE}")
        for T in range(4):
            L.I(f"buffer_store_dwordx4 {V(F0 + 4 * T, 4)}, v{vL16}, {srd(S_WS)}, s{sSH1} offen offset:{T * 1024} sc1")
        L.label(lE)
        L.raw("    s_waitcnt lgkmcnt(0)")
        L.optional -= 1
        L.fence_hazards(4)
        L.vmq = []; L.lgq = []

    def emit_x(self, layout32, xbase_s, stbase_s, halo_l=None):
        P = self.P
        a, b, t, a2 = 240, 241, 242, 239
        s1, s1b, s2, s2b = 244, 245, 246, 247
        if not layout32:
            P.I(f"s_lshl_b32 s{sT1}, s{sRT}, 14")
            P.I(f"s_lshl_b32 s{sT2}, s{sC}, 11")
            P.I(f"s_add_u32 s{sT1}, s{sT1}, s{sT2}")
            P.I(f"s_add_u32 s{sT1}, s{sT1}, s{xbase_s}")
            av = vL16; ustride = 1024
        else:
            P.I(f"v_lshrrev_b32 v{a2}, 4, v{vLANE}")
            P.I(f"v_lshlrev_b32 v{a2}, 9, v{a2}")
            P.I(f"v_and_b32 v{b}, 15, v{vLANE}")
            P.I(f"v_lshl_add_u32 v{a2}, v{b}, 4, v{a2}")
            P.I(f"s_lshr_b32 s{sT1}, s{sRT}, 1")
            P.I(f"s_lshl_b32 s{sT1}, s{sT1}, 15")
            P.I(f"s_lshl_b32 s{sT2}, s{sC}, 12")
            P.I(f"s_add_u32 s{sT1}, s{sT1}, s{sT2}")
            P.I(f"s_and_b32 s{sT2}, s{sRT}, 1")
            P.I(f"s_lshl_b32 s{sT2}, s{sT2}, 8")
            P.I(f"s_add_u32 s{sT1}, s{sT1}, s{sT2}")
            P.I(f"s_add_u32 s{sT1}, s{sT1}, s{xbase_s}")
            av = a2; ustride = 2048
        self.stores([f"buffer_store_dwordx4 {V(vRES + 4 * u, 4)}, v{av}, {srd(S_WS)}, s{sT1} offen" + (f" offset:{u * ustride}" if u else "") for u in range(2)])
        for x in (s1, s1b, s2, s2b):
            P.I(f"v_mov_b32 v{x}, 0")
        for j in range(8):
            P.I(f"v_dot2c_f32_bf16 v{s1 if j % 2 == 0 else s1b}, s{sONES}, v{vRES + j}")
            P.I(f"v_dot2c_f32_bf16 v{s2 if j % 2 == 0 else s2b}, v{vRES + j}, v{vRES + j}")
        P.I(f"v_lshlrev_b32 v{a}, 6, v{vLANE}")
        P.I(f"s_lshl_b32 s{sT1}, s{sRT}, 10")
        P.I(f"s_lshl_b32 s{sT2}, s{sC}, 3")
        P.I(f"v_add_f32 v{s1}, v{s1}, v{s1b}")
        P.I(f"v_add_f32 v{s1b}, v{s2}, v{s2b}")
        P.I(f"s_add_u32 s{sT1}, s{sT1}, s{sT2}")
        P.I(f"s_add_u32 s{sT1}, s{sT1}, s{stbase_s}")
        for step in ("16", "32"):
            P.I(f"v_mov_b32 v{t}, v{s1}")
            P.I(f"v_mov_b32 v{t + 1}, v{s1b}")
            P.I(f"s_nop 0")
            P.I(f"v_permlane{step}_swap_b32 v{s1}, v{t}")
            P.I(f"v_permlane{step}_swap_b32 v{s1b}, v{t + 1}")
            P.I(f"v_add_f32 v{s1}, v{s1}, v{t}")
            P.I(f"v_add_f32 v{s1b}, v{s1b}, v{t + 1}")
        P.I(f"s_mov_b64 exec, {sp(sMLO16)}")
        self.stores([f"buffer_store_dwordx2 {V(s1, 2)}, v{a}, {srd(S_WS)}, s{sT1} offen"])
        P.I(f"s_mov_b64 exec, -1")
        if halo_l is not None:
            lh = self.newlab("nohc")
            P.I(f"s_cmp_eq_u32 s{sHALO}, 0")
            P.I(f"s_cbranch_scc1 {lh}")
            P.optional += 1
            P.I(f"s_lshr_b32 s{sT1}, s{sRB}, 2")
            P.I(f"s_lshl_b32 s{sT2}, s{sT1}, 14")
            P.I(f"s_lshl_b32 s{sT3}, s{sC}, 11")
            P.I(f"s_add_u32 s{sT2}, s{sT2}, s{sT3}")
            P.I(f"s_add_u32 s{sT2}, s{sT2}, {XHALO + halo_l * 0x20000}")
            for u in range(2):
                off = f" offset:{u * 1024}" if u else ""
                P.I(f"buffer_store_dwordx4 {V(vRES + 4 * u, 4)}, v{vL16}, {srd(S_WS)}, s{sT2} offen{off} sc1")
            P.I(f"s_lshl_b32 s{sT2}, s{sT1}, 10")
            P.I(f"s_lshl_b32 s{sT3}, s{sC}, 3")
            P.I(f"s_add_u32 s{sT2}, s{sT2}, s{sT3}")
            P.I(f"s_add_u32 s{sT2}, s{sT2}, {STHALO + halo_l * 0x2000}")
            P.I(f"s_mov_b64 exec, {sp(sMLO16)}")
            P.I(f"buffer_store_dwordx2 {V(s1, 2)}, v{a}, {srd(S_WS)}, s{sT2} offen sc1")
            P.I(f"s_mov_b64 exec, -1")
            P.optional -= 1
            P.label(lh)
            P.fence_hazards(2)

    def phase1(self, part):
        P = self.P; L = self.L
        vB1, vB1h, vX, vXh = 16, 17, 18, 19
        vST = 20
        accQ, accK, accV = 40, 60, 80
        XF = [100, 120]
        WF = [140, 152]
        vONES = 164
        a = 166
        c_, d, e_ = 168, 169, 170
        SI = 172
        CI = 182
        MJ, RJ = 190, 210
        PM, PMf = 230, 234
        if part == 'pre':
            P.I(f"v_lshrrev_b32 v{c_}, 4, v{vLANE}")
            P.I(f"v_bfe_u32 v{d}, v{vLANE}, 2, 2")
            P.I(f"v_and_b32 v{e_}, 1, v{c_}")
            P.I(f"v_lshl_add_u32 v{e_}, v{e_}, 2, v{d}")
            P.I(f"v_and_b32 v{d}, 6, v{e_}")
            P.I(f"s_lshl_b32 s{sT1}, s{sW}, 1")
            P.I(f"v_xor_b32 v{d}, s{sT1}, v{d}")
            P.I(f"v_bfe_u32 v{vB1}, v{vLANE}, 1, 1")
            P.I(f"v_or_b32 v{d}, v{d}, v{vB1}")
            P.I(f"v_lshlrev_b32 v{d}, 4, v{d}")
            P.I(f"v_lshl_add_u32 v{d}, v{e_}, 7, v{d}")
            P.I(f"v_lshrrev_b32 v{c_}, 1, v{c_}")
            P.I(f"v_mul_u32_u24 v{c_}, 3072, v{c_}")
            P.I(f"v_add_u32 v{d}, v{d}, v{c_}")
            P.I(f"v_and_b32 v{c_}, 1, v{vLANE}")
            P.I(f"v_lshl_add_u32 v{vB1}, v{c_}, 3, v{d}")
            P.I(f"v_add_u32 v{vB1h}, 0x10000, v{vB1}")
            P.I(f"v_add_u32 v{vX}, {XB}, v{vL16}")
            P.I(f"v_add_u32 v{vXh}, {XB + 0x10000}, v{vL16}")
            P.I(f"v_mov_b32 v{vONES}, 0x3f803f80")
            for r in range(60):
                P.I(f"v_mov_b32 v{accQ + r}, 0")
            P.I(f"v_and_b32 v{a}, 15, v{vLANE}")
            P.I(f"v_lshlrev_b32 v{a}, 6, v{a}")
            P.I(f"v_lshrrev_b32 v{c_}, 4, v{vLANE}")
            P.I(f"v_lshl_add_u32 v{a}, v{c_}, 4, v{a}")
            P.I(f"v_and_b32 v{c_}, 1, v{vLANE}")
            P.I(f"v_cmp_eq_u32 vcc, 0, v{c_}")
            P.I(f"v_mov_b32 v{d}, {NEG}")
            P.I(f"v_cndmask_b32 v{PM}, v{d}, 0, vcc")
            P.I(f"v_cndmask_b32 v{PM + 1}, 0, v{d}, vcc")
            P.I(f"v_mov_b32 v{PM + 2}, v{PM}")
            P.I(f"v_mov_b32 v{PM + 3}, v{PM + 1}")
            P.I(f"s_cmp_eq_u32 s{sRB}, 0")
            P.I(f"s_cselect_b32 s{sT1}, {NEG}, 0")
            for r in range(4):
                P.I(f"v_mov_b32 v{c_}, s{sT1}")
                P.I(f"v_cndmask_b32 v{c_}, v{c_}, 0, {sp(sMCUR + 2 * r)}")
                P.I(f"v_min_f32 v{PMf + r}, v{c_}, v{PM + r}")
            return
        if part == 'touch':
            lsk = self.newlab("ntch1")
            P.I(f"s_cmp_lg_u32 s{sW}, 1")
            P.I(f"s_cbranch_scc1 {lsk}")
            P.optional += 1
            self.touch16(P, 240, 241, OBUF)
            self.touch32(P, 242, 243)
            self.touch_stats(P, 244, 245, STMID)
            P.optional -= 1
            P.label(lsk)
            P.fence_hazards(2)
            return
        lST = 20; la, lc = 40, 41
        if part == 'lpre':
            L.I(f"s_lshl_b32 s{sXB0}, s{sXT0}, 14")
            L.I(f"s_add_u32 s{sXB0}, s{sXB0}, s{sL2M}")
            L.I(f"s_lshr_b32 s{sT1}, s{sRB}, 2")
            L.I(f"s_lshl_b32 s{sT1}, s{sT1}, 14")
            L.I(f"s_lshr_b32 s{sT2}, s{sL2M}, 4")
            L.I(f"s_add_u32 s{sT1}, s{sT1}, s{sT2}")
            L.I(f"s_add_u32 s{sT1}, s{sT1}, {XHALO - XIN - 0x4000}")
            L.I(f"s_and_b32 s{sT2}, s{sRB}, 3")
            L.I(f"s_cmp_eq_u32 s{sT2}, 0")
            L.I(f"s_cselect_b32 s{sT1}, s{sT1}, s{sXB0}")
            L.I(f"s_cmp_eq_u32 s{sRB}, 0")
            L.I(f"s_cselect_b32 s{sXB0}, s{sXB0}, s{sT1}")
            L.I(f"s_lshl_b32 s{sXB1}, s{sRB}, 16")
            L.I(f"s_add_u32 s{sXB1}, s{sXB1}, s{sL2M}")
            L.I(f"s_lshl_b32 s{sT1}, s{sXT0}, 10")
            L.I(f"s_add_u32 s{sT1}, s{sT1}, s{sLST}")
            L.I(f"s_add_u32 s{sT1}, s{sT1}, {STIN}")
            L.I(f"s_lshr_b32 s{sT2}, s{sRB}, 2")
            L.I(f"s_lshl_b32 s{sT2}, s{sT2}, 10")
            L.I(f"s_lshr_b32 s{sT3}, s{sL2M}, 8")
            L.I(f"s_add_u32 s{sT2}, s{sT2}, s{sT3}")
            L.I(f"s_add_u32 s{sT2}, s{sT2}, {STHALO - 0x400}")
            L.I(f"s_and_b32 s{sT3}, s{sRB}, 3")
            L.I(f"s_cmp_eq_u32 s{sT3}, 0")
            L.I(f"s_cselect_b32 s{sT2}, s{sT2}, s{sT1}")
            L.I(f"s_cmp_eq_u32 s{sRB}, 0")
            L.I(f"s_cselect_b32 s{sT1}, s{sT1}, s{sT2}")
            L.I(f"s_lshl_b32 s{sT2}, s{sRB}, 12")
            L.I(f"s_add_u32 s{sT2}, s{sT2}, s{sLST}")
            L.I(f"s_add_u32 s{sT2}, s{sT2}, {STIN}")
            L.I(f"s_cmp_eq_u32 s{sW}, 0")
            L.I(f"s_cselect_b32 s{sT5}, s{sT2}, s{sT1}")
            L.I(f"s_cselect_b32 s{sT3}, 63, 15")
            L.I(f"s_cselect_b32 s{sT4}, 64, 0")
            L.I(f"s_add_u32 s{sT4}, s{sT4}, {MISC}")
            L.I(f"v_and_b32 v{lc}, s{sT3}, v{vLANE}")
            L.I(f"v_lshlrev_b32 v{la}, 6, v{lc}")
            L.I(f"v_lshlrev_b32 v{lc}, 2, v{lc}")
            L.I(f"v_add_u32 v{lc}, s{sT4}, v{lc}")
            return
        def xdma(m):
            for t in range(5):
                L.I(f"s_add_u32 m0, s{sW5120}, {XB + m * 20480 + t * 1024}")
                if t == 0:
                    L.I(f"s_add_u32 s{sBG}, s{sXB0}, {XIN + m * 4096}")
                else:
                    L.I(f"s_add_u32 s{sBG}, s{sXB1}, {XIN + (t - 1) * 16384 + m * 4096}")
                L.I(f"buffer_load_dwordx4 v{vX1OFF}, {srd(S_WS)}, s{sBG} offen sc1 lds", tag=('X1', m))
        xdma(0)
        lsk = self.newlab("nostat")
        L.I(f"s_cmp_gt_u32 s{sW}, 1")
        L.I(f"s_cbranch_scc1 {lsk}")
        L.optional += 1
        for j in range(4):
            L.I(f"buffer_load_dwordx4 {V(lST + 4 * j, 4)}, v{la}, {srd(S_WS)}, s{sT5} offen offset:{16 * j} sc1")
        L.optional -= 1
        L.label(lsk)
        L.fence_hazards(2)
        for m in range(1, 4):
            xdma(m)
        L.I(f"v_mov_b32 v42, {MISC + 4096}")
        L.I(f"ds_read_b32 v43, v42 offset:4")
        L.I(f"v_readfirstlane_b32 s{sNONCE}, v43")
        def fs_flag():
            lfs = self.newlab("nofs")
            L.I(f"s_or_b32 s{sT1}, s{sLAYER}, s{sW}")
            L.I(f"s_cmp_lg_u32 s{sT1}, 0")
            L.I(f"s_cbranch_scc1 {lfs}")
            L.optional += 1
            L.I(f"s_lshl_b32 s{sT1}, s2, 2")
            L.I(f"s_add_u32 s{sT1}, s{sT1}, {FLAGS3}")
            L.I(f"v_mov_b32 v42, 0")
            L.I(f"s_mov_b64 exec, 1")
            L.I(f"buffer_store_dword v43, v42, {srd(S_WS)}, s{sT1} offen sc1")
            L.I(f"s_mov_b64 exec, -1")
            L.optional -= 1
            L.label(lfs)
            L.fence_hazards(2)
        def fs_poll():
            lsk = self.newlab("nofsp")
            L.I(f"s_cmp_lg_u32 s{sLAYER}, 0")
            L.I(f"s_cbranch_scc1 {lsk}")
            L.optional += 1
            lp = self.newlab("fsp"); ld = self.newlab("fspd")
            L.I(f"v_lshlrev_b32 v42, 2, v{vLANE}")
            L.I(f"s_mov_b32 s{sT1}, {FLAGS3}")
            L.I(f"s_mov_b32 s{sCNT}, 0")
            L.label(lp)
            for j in range(4):
                L.I(f"buffer_load_dword v{44 + j}, v42, {srd(S_WS)}, s{sT1} offen offset:{256 * j} sc1")
            L.raw("    s_waitcnt vmcnt(0)")
            L.I(f"v_xor_b32 v44, s{sNONCE}, v44")
            L.I(f"v_xor_b32 v45, s{sNONCE}, v45")
            L.I(f"v_xor_b32 v46, s{sNONCE}, v46")
            L.I(f"v_xor_b32 v47, s{sNONCE}, v47")
            L.I(f"v_or_b32 v44, v44, v45")
            L.I(f"v_or_b32 v46, v46, v47")
            L.I(f"v_or_b32 v44, v44, v46")
            L.I(f"v_cmp_ne_u32 vcc, 0, v44")
            L.I(f"s_cmp_eq_u64 vcc, 0")
            L.I(f"s_cbranch_scc1 {ld}")
            L.I(f"s_add_u32 s{sCNT}, s{sCNT}, 1")
            L.I(f"s_cmp_lt_u32 s{sCNT}, 200000")
            L.I(f"s_cbranch_scc1 {lp}")
            L.label(ld)
            lc2 = self.newlab("nocs")
            L.I(f"s_cmp_lg_u32 s{sW}, 0")
            L.I(f"s_cbranch_scc1 {lc2}")
            L.I(f"v_lshrrev_b32 v42, 5, v{vLANE}")
            L.I(f"v_lshlrev_b32 v42, 9, v42")
            L.I(f"v_and_b32 v43, 31, v{vLANE}")
            L.I(f"v_lshl_add_u32 v42, v43, 2, v42")
            L.I(f"s_lshl_b32 s{sT1}, s{sP0}, 10")
            L.I(f"s_add_u32 s{sT1}, s{sT1}, {CSBUF}")
            for F in range(3):
                for part in range(4):
                    L.I(f"buffer_load_dword v{44 + 4 * F + part}, v42, {srd(S_WS)}, s{sT1} offen offset:{F * 1024 + part * 128} sc1")
            L.I(f"v_lshlrev_b32 v43, 2, v{vLANE}")
            L.I(f"v_add_u32 v43, {MISC + 1024}, v43")
            L.raw("    s_waitcnt vmcnt(0)")
            for F in range(3):
                q = 44 + 4 * F
                L.I(f"v_add_f32 v{q}, v{q}, v{q + 1}")
                L.I(f"v_add_f32 v{q + 2}, v{q + 2}, v{q + 3}")
                L.I(f"v_add_f32 v{q}, v{q}, v{q + 2}")
                L.I(f"ds_write_b32 v43, v{q} offset:{F * 256}")
            L.raw("    s_waitcnt lgkmcnt(0)")
            L.label(lc2)
            L.optional -= 1
            L.label(lsk)
            L.fence_hazards(2)
        def stats_finish():
            lsk = self.newlab("nostat2")
            L.I(f"s_cmp_gt_u32 s{sW}, 1")
            L.I(f"s_cbranch_scc1 {lsk}")
            L.optional += 1
            for j in range(4):
                pass
            L.I(f"v_pk_add_f32 {V(lST, 2)}, {V(lST, 2)}, {V(lST + 2, 2)}")
            L.I(f"v_pk_add_f32 {V(lST + 4, 2)}, {V(lST + 4, 2)}, {V(lST + 6, 2)}")
            L.I(f"v_pk_add_f32 {V(lST + 8, 2)}, {V(lST + 8, 2)}, {V(lST + 10, 2)}")
            L.I(f"v_pk_add_f32 {V(lST + 12, 2)}, {V(lST + 12, 2)}, {V(lST + 14, 2)}")
            L.I(f"v_pk_add_f32 {V(lST, 2)}, {V(lST, 2)}, {V(lST + 4, 2)}")
            L.I(f"v_pk_add_f32 {V(lST + 8, 2)}, {V(lST + 8, 2)}, {V(lST + 12, 2)}")
            L.I(f"v_pk_add_f32 {V(lST, 2)}, {V(lST, 2)}, {V(lST + 8, 2)}")
            L.I(f"v_mul_f32 v{lST}, {hex(f2u(-1.0/512))}, v{lST}")
            L.I(f"v_mul_f32 v{lST + 1}, {hex(f2u(1.0/512))}, v{lST + 1}")
            L.I(f"v_fma_f32 v{lST + 1}, -v{lST}, v{lST}, v{lST + 1}")
            L.I(f"v_max_f32 v{lST + 1}, 0, v{lST + 1}")
            L.I(f"v_add_f32 v{lST + 1}, {hex(f2u(1e-5))}, v{lST + 1}")
            L.I(f"v_rsq_f32 v{lST + 1}, v{lST + 1}")
            L.I(f"ds_write_b32 v{lc}, v{lST}")
            L.I(f"ds_write_b32 v{lc}, v{lST + 1} offset:512")
            L.raw("    s_waitcnt lgkmcnt(0)")
            L.optional -= 1
            L.label(lsk)
            L.fence_hazards(2)

        def loads(ks):
            bf = ks & 1
            Ld = []
            def wread(mat):
                base = self.w1_page(ks) * PAGE + mat * 1024
                for half in range(2):
                    off = base + half * 6144
                    reg = vB1 if off < 65536 else vB1h
                    Ld.append(f"ds_read_b64_tr_b16 {V(WF[bf] + 4 * mat + 2 * half, 2)}, v{reg} offset:{off & 0xffff}")
            def xread(t):
                off = (ks * 5 + t) * 1024
                reg = vX if off < 65536 else vXh
                Ld.append(f"ds_read_b128 {V(XF[bf] + 4 * t, 4)}, v{reg} offset:{off & 0xffff}")
            wread(1); xread(1); wread(2); wread(0); xread(0); xread(2); xread(3); xread(4)
            return Ld
        def mfmas(ks):
            bf = ks & 1
            M = []
            for t in (1, 2, 3, 4, 0):
                x = V(XF[bf] + 4 * t, 4)
                M.append(f"v_mfma_f32_16x16x32_bf16 {V(accK + 4 * t, 4)}, {V(WF[bf] + 4, 4)}, {x}, {V(accK + 4 * t, 4)}")
                M.append(f"v_mfma_f32_16x16x32_bf16 {V(accV + 4 * t, 4)}, {x}, {V(WF[bf] + 8, 4)}, {V(accV + 4 * t, 4)}")
                M.append(f"v_mfma_f32_16x16x32_bf16 {V(accQ + 4 * t, 4)}, {V(WF[bf], 4)}, {x}, {V(accQ + 4 * t, 4)}")
            return M
        def xwait(m):
            L.wait_vm_tag(lambda t: t[0] == 'X1' and t[1] <= m)
            L.I(f"s_mov_b64 exec, {sp(sMI0)}")
            L.I(f"ds_write_b128 v{vLONE}, {V(vLONE + 2, 4)} offset:{m * 20480}")
            L.I(f"s_mov_b64 exec, -1")
            L.wait_lg_all()
        def stage_barrier(u):
            self.wait_units('W1', u + 2)
            if u == 3:
                L.raw("    s_waitcnt vmcnt(6)")
            if (u + 1) % 4 == 0:
                xwait((u + 1) >> 2)
            P.wait_lg_all()
            self.bar()
            if u <= 9:
                self.ld_w1(u + 5); self.ld_w1(u + 6)
            elif u == 11:
                for k in range(0, 6): self.ld_w2(k)
            elif u == 13:
                for k in range(6, 12): self.ld_w2(k)
            if u == 3:
                fs_flag()
                stats_finish()
            if u == 9:
                fs_poll()
            self.ts(3 + (u >> 1), fine=3)
        self.wait_units('W1', 1)
        xwait(0)
        self.bar()
        for x in loads(0):
            P.I(x)
        for ks in range(16):
            M = mfmas(ks)
            bf = ks & 1
            if ks & 1 and ks < 15:
                stage_barrier(ks)
            nxt = loads(ks + 1) if ks + 1 < 16 else []
            for n, m in enumerate(M):
                if n == 0:
                    P.need(regs(WF[bf], 12) + regs(XF[bf] + 4, 4) + regs(XF[bf], 4))
                if n == 3:
                    P.need(regs(XF[bf] + 8, 12))
                P.I(m)
                if nxt:
                    P.I(nxt.pop(0))
                elif ks + 1 < 16 or True:
                    pass
                if n in (11,):
                    pass
                if 7 <= n <= 10:
                    pass
        P.I(f"v_and_b32 v{c_}, 15, v{vLANE}")
        P.I(f"v_lshl_add_u32 v{c_}, v{c_}, 2, 0")
        P.I(f"v_add_u32 v{c_}, {MISC}, v{c_}")
        P.I(f"v_lshrrev_b32 v{d}, 4, v{vLANE}")
        P.I(f"v_lshlrev_b32 v{d}, 4, v{d}")
        P.I(f"v_add_u32 v{d}, {MISC}, v{d}")
        for t in range(5):
            P.I(f"ds_read2_b32 {V(SI + 2 * t, 2)}, v{c_} offset0:{t * 16} offset1:{128 + t * 16}")
        for t in range(5):
            P.I(f"ds_read_b128 {V(MJ + 4 * t, 4)}, v{d} offset:{t * 64}")
            P.I(f"ds_read_b128 {V(RJ + 4 * t, 4)}, v{d} offset:{512 + t * 64}")
        P.wait_lg_all()
        self.bar()
        for t in range(1, 5):
            P.I(f"v_mul_f32 v{CI + 2 * (t - 1)}, {hex(f2u(0.25 * 1.4426950408889634))}, v{SI + 2 * t + 1}")
        for k in range(12, 16):
            self.ld_w2(k)
        for u in range(4):
            self.ld_w3(u)
        self.ts(2)
        csQ, csK, csV = 100, 104, 108
        for r in range(4):
            P.I(f"v_mov_b32_dpp v{csQ + r}, v{accQ + r} row_newbcast:0 row_mask:0xf bank_mask:0xf")
            P.I(f"v_mov_b32_dpp v{csK + r}, v{accK + r} row_newbcast:0 row_mask:0xf bank_mask:0xf")
        P.I(f"v_mov_b32 v{csV}, v{accV}")
        P.I(f"v_mov_b32 v{csV + 1}, v{accV}")
        Qp, Kp, Vp = 20, 30, 110
        BL = "op_sel:[0,0,0] op_sel_hi:[1,0,1]"
        for t in range(5):
            for j in range(2):
                P.I(f"v_pk_fma_f32 {V(accK + 4 * t + 2 * j, 2)}, {V(csK + 2 * j, 2)}, {V(SI + 2 * t, 2)}, {V(accK + 4 * t + 2 * j, 2)} {BL}")
        P.I(f"v_permlane16_swap_b32 v{csV}, v{csV + 1}")
        for t in range(1, 5):
            for j in range(2):
                P.I(f"v_pk_fma_f32 {V(accQ + 4 * t + 2 * j, 2)}, {V(csQ + 2 * j, 2)}, {V(SI + 2 * t, 2)}, {V(accQ + 4 * t + 2 * j, 2)} {BL}")
        P.I(f"v_mov_b32 v{csV + 1}, v{csV}")
        for t in range(5):
            for j in range(2):
                P.I(f"v_pk_mul_f32 {V(accK + 4 * t + 2 * j, 2)}, {V(accK + 4 * t + 2 * j, 2)}, {V(SI + 2 * t, 2)} op_sel:[0,1] op_sel_hi:[1,1]")
        P.I(f"v_permlane32_swap_b32 v{csV}, v{csV + 1}")
        for t in range(1, 5):
            for j in range(2):
                P.I(f"v_cvt_pk_bf16_f32 v{Qp + 2 * (t - 1) + j}, v{accQ + 4 * t + 2 * j}, v{accQ + 4 * t + 2 * j + 1}")
        for t in range(5):
            for j in range(2):
                P.I(f"v_cvt_pk_bf16_f32 v{Kp + 2 * t + j}, v{accK + 4 * t + 2 * j}, v{accK + 4 * t + 2 * j + 1}")
        SP, SC = 40, 60
        for t in range(1, 5):
            q = V(Qp + 2 * (t - 1), 2)
            P.I(f"v_mfma_f32_16x16x16_bf16 {V(SP + 4 * t, 4)}, {V(Kp + 2 * (t - 1), 2)}, {q}, 0")
            P.I(f"v_mfma_f32_16x16x16_bf16 {V(SC + 4 * t, 4)}, {V(Kp + 2 * t, 2)}, {q}, 0")
        for t in range(5):
            for j in range(2):
                P.I(f"v_pk_fma_f32 {V(accV + 4 * t + 2 * j, 2)}, {V(MJ + 4 * t + 2 * j, 2)}, {V(csV, 2)}, {V(accV + 4 * t + 2 * j, 2)} {BL}")
        for t in range(5):
            for j in range(2):
                P.I(f"v_pk_mul_f32 {V(accV + 4 * t + 2 * j, 2)}, {V(accV + 4 * t + 2 * j, 2)}, {V(RJ + 4 * t + 2 * j, 2)}")
        for t in range(5):
            for j in range(2):
                P.I(f"v_cvt_pk_bf16_f32 v{Vp + 2 * t + j}, v{accV + 4 * t + 2 * j}, v{accV + 4 * t + 2 * j + 1}")
        Z = 120
        MX = [0, 140, 142, 144, 146]; TM = [0, 148, 149, 150, 151]; SM = [0, 152, 153, 154, 155]
        def z(t, r): return Z + 4 * (t - 1) + r
        for t in range(1, 5):
            for r in range(4):
                P.I(f"v_cndmask_b32 v{z(t, r)}, v{SP + 4 * t + r}, v{SC + 4 * t + r}, {sp(sMCUR + 2 * r)}")
        for t in range(1, 5):
            pm = PMf if t == 1 else PM
            for j in range(2):
                P.I(f"v_pk_fma_f32 {V(z(t, 2 * j), 2)}, {V(z(t, 2 * j), 2)}, {V(CI + 2 * (t - 1), 2)}, {V(pm + 2 * j, 2)} {BL}")
        for t in range(1, 5):
            P.I(f"v_max3_f32 v{MX[t]}, v{z(t, 0)}, v{z(t, 1)}, v{z(t, 2)}")
        for t in range(1, 5):
            P.I(f"v_max_f32 v{MX[t]}, v{MX[t]}, v{z(t, 3)}")
        for step in ("16", "32"):
            for t in range(1, 5):
                P.I(f"v_mov_b32 v{TM[t]}, v{MX[t]}")
            for t in range(1, 5):
                P.I(f"v_permlane{step}_swap_b32 v{MX[t]}, v{TM[t]}")
            for t in range(1, 5):
                P.I(f"v_max_f32 v{MX[t]}, v{MX[t]}, v{TM[t]}")
        for t in range(1, 5):
            for j in range(2):
                P.I(f"v_pk_add_f32 {V(z(t, 2 * j), 2)}, {V(z(t, 2 * j), 2)}, {V(MX[t], 2)} op_sel_hi:[1,0] neg_lo:[0,1] neg_hi:[0,1]")
        for t in range(1, 5):
            for r in range(4):
                P.I(f"v_exp_f32 v{z(t, r)}, v{z(t, r)}")
        PB = 40
        pk = [0, 156, 158, 160, 162]
        for t in range(1, 5):
            P.I(f"v_add_f32 v{SM[t]}, v{z(t, 0)}, v{z(t, 1)}")
            P.I(f"v_add_f32 v{TM[t]}, v{z(t, 2)}, v{z(t, 3)}")
        for t in range(1, 5):
            P.I(f"v_cvt_pk_bf16_f32 v{pk[t]}, v{z(t, 0)}, v{z(t, 1)}")
            P.I(f"v_cvt_pk_bf16_f32 v{pk[t] + 1}, v{z(t, 2)}, v{z(t, 3)}")
            P.I(f"v_add_f32 v{SM[t]}, v{SM[t]}, v{TM[t]}")
        for t in range(1, 5):
            P.I(f"v_cndmask_b32 v{PB + 4 * t + 0}, v{pk[t]}, 0, {sp(sM01)}")
            P.I(f"v_cndmask_b32 v{PB + 4 * t + 1}, v{pk[t] + 1}, 0, {sp(sM23)}")
            P.I(f"v_cndmask_b32 v{PB + 4 * t + 2}, 0, v{pk[t]}, {sp(sM01)}")
            P.I(f"v_cndmask_b32 v{PB + 4 * t + 3}, 0, v{pk[t] + 1}, {sp(sM23)}")
        O = 60
        for t in range(1, 5):
            P.I(f"v_mfma_f32_16x16x32_bf16 {V(O + 4 * t, 4)}, {V(Vp + 2 * (t - 1), 4)}, {V(PB + 4 * t, 4)}, 0")
        for step in ("16", "32"):
            for t in range(1, 5):
                P.I(f"v_mov_b32 v{TM[t]}, v{SM[t]}")
            for t in range(1, 5):
                P.I(f"v_permlane{step}_swap_b32 v{SM[t]}, v{TM[t]}")
            for t in range(1, 5):
                P.I(f"v_add_f32 v{SM[t]}, v{SM[t]}, v{TM[t]}")
        for t in range(1, 5):
            P.I(f"v_rcp_f32 v{MX[t]}, v{SM[t]}")
        P.I(f"s_and_b32 s{sT1}, s{sW}, 1")
        P.I(f"s_lshl_b32 s{sT1}, s{sT1}, 3")
        P.I(f"v_add_u32 v{c_}, s{sT1}, v{vL16}")
        P.I(f"s_lshl_b32 s{sT1}, s{sRB}, 16")
        P.I(f"s_lshl_b32 s{sT2}, s{sC}, 11")
        P.I(f"s_add_u32 s{sT1}, s{sT1}, s{sT2}")
        P.I(f"s_lshr_b32 s{sT2}, s{sW}, 1")
        P.I(f"s_lshl_b32 s{sT2}, s{sT2}, 10")
        P.I(f"s_add_u32 s{sT1}, s{sT1}, s{sT2}")
        P.I(f"s_add_u32 s{sT1}, s{sT1}, s{sL2M}")
        P.I(f"s_add_u32 s{sT1}, s{sT1}, {OBUF}")
        Op = 84
        for t in range(1, 5):
            for j in range(2):
                P.I(f"v_pk_mul_f32 {V(O + 4 * t + 2 * j, 2)}, {V(O + 4 * t + 2 * j, 2)}, {V(MX[t], 2)} op_sel_hi:[1,0]")
            P.I(f"v_cvt_pk_bf16_f32 v{Op + 2 * t}, v{O + 4 * t}, v{O + 4 * t + 1}")
            P.I(f"v_cvt_pk_bf16_f32 v{Op + 2 * t + 1}, v{O + 4 * t + 2}, v{O + 4 * t + 3}")
        lines = []
        for t in range(1, 5):
            if t > 1:
                lines.append(f"s_add_u32 s{sT2}, s{sT1}, {16384 * (t - 1)}")
            lines.append(f"buffer_store_dwordx2 {V(Op + 2 * t, 2)}, v{c_}, {srd(S_WS)}, s{sT1 if t == 1 else sT2} offen")
        self.stores(lines)

    def gemm_res(self, which, part):
        P = self.P; L = self.L
        nks = 16 if which == 2 else 43
        page = (lambda k: self.W2_PAGES[k]) if which == 2 else self.w4_page
        vB = 16
        acc = 32
        WR = 48; NR = 8; LA = 6
        a, b, c_, d, e_ = 80, 81, 82, 83, 84
        XR = 96; NX = 32
        if part == 'pre':
            P.I(f"v_mov_b32 v{vB}, v{vL16}")
            P.I(f"v_add_u32 v{vB + 1}, 0x10000, v{vL16}")
            P.I(f"v_add_u32 v{vB + 2}, 0x20000, v{vL16}")
            for r in range(16):
                P.I(f"v_mov_b32 v{acc + r}, 0")
            if which == 2:
                P.I(f"s_lshl_b32 s{sT5}, s{sRT}, 14")
                P.I(f"s_add_u32 s{sT5}, s{sT5}, s{sL2M}")
                P.I(f"s_add_u32 s{sT5}, s{sT5}, {OBUF}")
            else:
                P.I(f"s_mul_i32 s{sT5}, s{sRT}, {43 * 1024}")
                P.I(f"s_add_u32 s{sT5}, s{sT5}, s{sLH}")
                P.I(f"s_add_u32 s{sT5}, s{sT5}, {HBUF}")
            return
        self._xn = 0
        def xload():
            k = self._xn
            if k >= nks: return
            self._xn += 1
            if k % 4 == 0:
                P.I(f"s_add_u32 s{sT1}, s{sT5}, {(k // 4) * 4096}")
            off = f" offset:{(k % 4) * 1024}" if k % 4 else ""
            P.I(f"buffer_load_dwordx4 {V(XR + 4 * (k % NX), 4)}, v{vL16}, {srd(S_WS)}, s{sT1} offen{off} sc1", tag=(f'X{which}', k))
        for _ in range(self.init24):
            xload()
        half_off = 2048 if which == 2 else 1024
        frags = [(k, T) for k in range(nks) for T in range(4)]
        def reads(n):
            k, T = frags[n]
            Ld = []
            off = page(k) * PAGE + T * 1024
            Ld.append(f"ds_read_b128 {V(WR + 4 * (n % NR), 4)}, v{vB + (off >> 16)} offset:{off & 0xffff}")
            return Ld
        def hook(k):
            if which == 2 and k == 5:
                self.bar()
                self.ld_w3(4); self.ld_w3(5); self.ld_w4(0); self.ld_w4(1)
                if self.touch:
                    lsk = self.newlab("ntch")
                    L.I(f"s_cmp_lg_u32 s{sW}, 3")
                    L.I(f"s_cbranch_scc1 {lsk}")
                    L.optional += 1
                    self.touch_h(L, 60, 61, 62)
                    self.touch16(L, 60, 66, XIN + 0x200000)
                    self.touch_stats(L, 60, 67, STIN + 0x20000)
                    L.optional -= 1
                    L.label(lsk)
                    L.fence_hazards(2)
            if which == 4:
                if k == 8:
                    self.bar()
                    for kk in range(38, 43):
                        self.ld_w4(kk)
                if k == 28:
                    self.wait_units('W4', 42)
                    self.bar()
                    lsk = self.newlab("lnow1")
                    L.I(f"s_cmp_lg_u32 s{sLAYER}, 0")
                    L.I(f"s_cbranch_scc1 {lsk}")
                    L.optional += 1
                    if not self.latew1:
                        for ks in range(6):
                            self.ld_w1(ks)
                    L.optional -= 1
                    L.label(lsk)
                    L.fence_hazards(2)
        for n in range(LA):
            if frags[n][1] == 0:
                hook(frags[n][0])
            for x in reads(n):
                P.I(x)
        for n, (k, T) in enumerate(frags):
            rd = []
            if n + LA < len(frags):
                if frags[n + LA][1] == 0:
                    hook(frags[n + LA][0])
                rd = reads(n + LA)
            xr = XR + 4 * (k % NX)
            if T in (0, 2):
                P.need([f"v{WR + 4 * ((n + j) % NR) + i}" for j in range(2) for i in range(4)] + regs(xr, 4))
            if T == 0 and which == 2 and k in (0, 2, 4, 6, 8, 10, 12):
                self.ts(9 + k // 2, fine=4)
            if T == 0 and which == 4 and k in (0, 4, 8, 16, 24, 32, 40):
                self.ts(9 + (0, 4, 8, 16, 24, 32, 40).index(k), fine=5)
            P.I(f"v_mfma_f32_16x16x32_bf16 {V(acc + 4 * T, 4)}, {V(WR + 4 * (n % NR), 4)}, {V(xr, 4)}, {V(acc + 4 * T, 4)}")
            for x in rd:
                P.I(x)
            if (T == 1 or (T == 3 and k % 2 == 0 and self._xn < k + 12)) and self._xn <= k + NX - 1:
                xload()
        P.wait_lg_all()
        self.bar()
        self.ts(4 if which == 2 else 8)
        t0 = 80
        for T in range(4):
            for j in range(2):
                rr = vRES + 2 * T + j
                tt = t0 + 2 * ((2 * T + j) % 4)
                P.I(f"v_lshlrev_b32 v{tt}, 16, v{rr}")
                P.I(f"v_and_b32 v{tt + 1}, 0xffff0000, v{rr}")
                P.I(f"v_pk_add_f32 {V(tt, 2)}, {V(tt, 2)}, {V(acc + 4 * T + 2 * j, 2)}")
                P.I(f"v_cvt_pk_bf16_f32 v{rr}, v{tt}, v{tt + 1}")
        if which == 2:
            P.I(f"s_add_u32 s{sT3}, s{sL2M}, {XMID}")
            P.I(f"s_add_u32 s{sT4}, s{sLST}, {STMID}")
            self.emit_x(True, sT3, sT4)
        else:
            self.lfin = self.newlab("final")
            P.I(f"s_cmp_lg_u32 s{sLAYER}, 0")
            P.I(f"s_cbranch_scc1 {self.lfin}")
            L.I(f"s_cmp_lg_u32 s{sLAYER}, 0")
            L.I(f"s_cbranch_scc1 L_lend")
            if self.latew1:
                for ks in range(6):
                    self.ld_w1(ks)
            P.I(f"s_add_u32 s{sT3}, s{sL2M}, {XIN + 0x200000}")
            P.I(f"s_add_u32 s{sT4}, s{sLST}, {STIN + 0x20000}")
            self.emit_x(False, sT3, sT4, halo_l=1)

    def final_store(self):
        P = self.P
        P.label(self.lfin)
        P.fence_hazards(4)
        a, b = 80, 81
        P.I(f"v_and_b32 v{a}, 15, v{vLANE}")
        P.I(f"v_lshlrev_b32 v{a}, 10, v{a}")
        P.I(f"v_lshrrev_b32 v{b}, 4, v{vLANE}")
        P.I(f"v_lshlrev_b32 v{b}, 3, v{b}")
        P.I(f"v_add_u32 v{a}, v{a}, v{b}")
        P.I(f"s_lshl_b32 s{sT0}, s{sRT}, 14")
        P.I(f"s_lshl_b32 s{sT1}, s{sC}, 7")
        P.I(f"s_add_u32 s{sT0}, s{sT0}, s{sT1}")
        for T in range(4):
            P.I(f"buffer_store_dwordx2 {V(vRES + 2 * T, 2)}, v{a}, {srd(S_OUT)}, s{sT0} offen offset:{T * 32}")
        self.ts(9)

    def phase3(self, part):
        P = self.P; L = self.L
        vB3 = 16
        vST = 20
        tmps = 28
        WR = 32
        NRW = 12
        XR = 80
        NXR = 18
        acc = 152
        a, b = 28, 29
        if part == 'pre':
            P.I(f"v_mov_b32 v{vB3}, v{vL16}")
            P.I(f"v_add_u32 v{vB3 + 1}, 0x10000, v{vL16}")
            P.I(f"v_add_u32 v{vB3 + 2}, 0x20000, v{vL16}")
            for r in range(96):
                P.I(f"v_mov_b32 v{acc + r}, 0")
            P.I(f"v_and_b32 v{a}, 31, v{vLANE}")
            P.I(f"v_lshlrev_b32 v{a}, 6, v{a}")
            P.I(f"v_lshrrev_b32 v{b}, 5, v{vLANE}")
            P.I(f"v_lshl_add_u32 v{a}, v{b}, 5, v{a}")
            P.I(f"s_lshl_b32 s{sT5}, s{sR32}, 11")
            P.I(f"s_add_u32 s{sT5}, s{sT5}, s{sLST}")
            P.I(f"s_add_u32 s{sT5}, s{sT5}, {STMID}")
            P.I(f"s_lshl_b32 s{sT4}, s{sR32}, 15")
            P.I(f"s_add_u32 s{sT4}, s{sT4}, s{sL2M}")
            P.I(f"s_add_u32 s{sT4}, s{sT4}, {XMID}")
            return
        self._xn = 0
        def xload():
            n = self._xn
            if n >= 32: return
            self._xn += 1
            if n % 4 == 0:
                P.I(f"s_add_u32 s{sT3}, s{sT4}, {(n // 4) * 4096}")
            off = f" offset:{(n % 4) * 1024}" if n % 4 else ""
            P.I(f"buffer_load_dwordx4 {V(XR + 4 * (n % NXR), 4)}, v{vL16}, {srd(S_WS)}, s{sT3} offen{off} sc1", tag=('X3', n))
        for n in range(self.init3):
            xload()
        P.I(f"buffer_load_dwordx4 {V(vST, 4)}, v{a}, {srd(S_WS)}, s{sT5} offen sc1")
        P.I(f"buffer_load_dwordx4 {V(vST + 4, 4)}, v{a}, {srd(S_WS)}, s{sT5} offen offset:16 sc1")
        frags = [(n, F, mat) for n in range(32) for F in range(3) for mat in range(2)]
        LA = 8
        def wread(i):
            n, F, mat = frags[i]
            p, u = n >> 1, n & 1
            off = self.w3_page(p) * PAGE + F * 4096 + u * 2048 + mat * 1024
            return f"ds_read_b128 {V(WR + 4 * (i % NRW), 4)}, v{vB3 + (off >> 16)} offset:{off & 0xffff}"
        def stage(j):
            self.wait_units('W3', 2 * j + 3)
            self.bar()
            if j <= 2:
                self.ld_w3(6 + 2 * j); self.ld_w3(7 + 2 * j)
            elif j in (3, 4):
                self.ld_w3(6 + 2 * j); self.ld_w3(7 + 2 * j)
            elif j == 5:
                for k in range(2, 11): self.ld_w4(k)
            elif j == 6:
                for k in range(11, 17): self.ld_w4(k)
        for i in range(LA):
            P.I(wread(i))
        for i, (n, F, mat) in enumerate(frags):
            nx = []
            if i + LA < len(frags):
                n2, F2, m2 = frags[i + LA]
                if F2 == 0 and m2 == 0 and n2 % 4 == 0 and n2 >= 4:
                    stage(n2 // 4 - 1)
                nx = [wread(i + LA)]
            if i % 2 == 0:
                P.need(regs(WR + 4 * (i % NRW), 4) + regs(WR + 4 * ((i + 1) % NRW), 4) + regs(XR + 4 * (n % NXR), 4))
            if F == 0 and mat == 0 and n in (0, 4, 8, 12, 16, 24, 28):
                self.ts(9 + (0, 4, 8, 12, 16, 24, 28).index(n), fine=6)
            ac = acc + 16 * (2 * F + mat)
            P.I(f"v_mfma_f32_32x32x16_bf16 {V(ac, 16)}, {V(WR + 4 * (i % NRW), 4)}, {V(XR + 4 * (n % NXR), 4)}, {V(ac, 16)}")
            for x in nx:
                P.I(x)
            if F == 1 and mat == 0 and self._xn <= n + NXR - 1:
                xload()
            if F == 2 and mat == 0 and self._xn < n + 12 and self._xn <= n + NXR - 1:
                xload()
            if n == 6 and F == 0 and mat == 0:
                self._st = []
                S_ = self._st
                for j in (2, 4, 6):
                    S_.append(f"v_add_f32 v{vST}, v{vST}, v{vST + j}")
                    S_.append(f"v_add_f32 v{vST + 1}, v{vST + 1}, v{vST + j + 1}")
                S_.append(f"v_mov_b32 v{a}, v{vST}")
                S_.append(f"v_mov_b32 v{b}, v{vST + 1}")
                S_.append(f"v_nop")
                S_.append(f"v_permlane32_swap_b32 v{vST}, v{a}")
                S_.append(f"v_permlane32_swap_b32 v{vST + 1}, v{b}")
                S_.append(f"v_add_f32 v{vST}, v{vST}, v{a}")
                S_.append(f"v_add_f32 v{vST + 1}, v{vST + 1}, v{b}")
                S_.append(f"v_mul_f32 v{vST}, {hex(f2u(-1.0/512))}, v{vST}")
                S_.append(f"v_mul_f32 v{vST + 1}, {hex(f2u(1.0/512))}, v{vST + 1}")
                S_.append(f"v_fma_f32 v{vST + 1}, -v{vST}, v{vST}, v{vST + 1}")
                S_.append(f"v_max_f32 v{vST + 1}, 0, v{vST + 1}")
                S_.append(f"v_add_f32 v{vST + 1}, {hex(f2u(1e-5))}, v{vST + 1}")
                S_.append(f"v_rsq_f32 v{vST + 2}, v{vST + 1}")
                S_.append(f"v_nop")
                S_.append(f"v_mul_f32 v{vST + 3}, v{vST + 2}, v{vST + 2}")
                S_.append(f"v_mul_f32 v{vST + 4}, {hex(f2u(GC0))}, v{vST + 2}")
                S_.append(f"v_mul_f32 v{vST + 5}, v{vST + 3}, v{vST + 2}")
                S_.append(f"v_mul_f32 v{vST + 5}, {hex(f2u(GC0 * 0.044715))}, v{vST + 5}")
            if n >= 6 and getattr(self, '_st', None):
                P.I(self._st.pop(0))
        assert not self._st
        P.wait_lg_all()
        self.bar()
        for k in range(17, 38):
            self.ld_w4(k)
        self.ts(6)
        va = 30
        P.I(f"v_bfe_u32 v{a}, v{vLANE}, 4, 1")
        P.I(f"v_mul_u32_u24 v{a}, {43 * 1024}, v{a}")
        P.I(f"v_lshrrev_b32 v{b}, 5, v{vLANE}")
        P.I(f"v_lshl_add_u32 v{a}, v{b}, 8, v{a}")
        P.I(f"v_lshlrev_b32 v{b}, 6, v{b}")
        P.I(f"v_add_u32 v31, {MISC + 1024}, v{b}")
        P.I(f"v_and_b32 v{b}, 15, v{vLANE}")
        P.I(f"v_lshl_add_u32 v{va}, v{b}, 4, v{a}")
        P.I(f"s_lshl_b32 s{sT1}, s{sR32}, 1")
        P.I(f"s_mul_i32 s{sT1}, s{sT1}, 43")
        P.I(f"s_add_u32 s{sT1}, s{sT1}, s{sP0}")
        P.I(f"s_lshl_b32 s{sT1}, s{sT1}, 10")
        P.I(f"s_add_u32 s{sT1}, s{sT1}, s{sLH}")
        P.I(f"s_add_u32 s{sT1}, s{sT1}, {HBUF}")
        CS = 32
        HP = 96
        T0 = 120
        def csreads(F):
            for mat in range(2):
                for j in range(4):
                    P.I(f"ds_read_b128 {V(CS + 32 * (F & 1) + 16 * mat + 4 * j, 4)}, v31 offset:{F * 256 + mat * 128 + j * 16}")
        NM = f"{V(vST, 2)}"
        csreads(0)
        lskip = self.newlab("nof2")
        for F in range(3):
            if F == 2:
                P.I(f"s_cmp_lt_u32 s{sNP}, 3")
                P.I(f"s_cbranch_scc1 {lskip}")
                P.optional += 1
            if F + 1 < 3 and F == 0:
                csreads(1)
            if F == 1:
                pass
            G = acc + 16 * (2 * F); U = acc + 16 * (2 * F + 1)
            cg = CS + 32 * (F & 1); cu = cg + 16
            if F == 2:
                csreads(2)
            for pr in range(8):
                P.I(f"v_pk_fma_f32 {V(G + 2 * pr, 2)}, {V(cg + 2 * pr, 2)}, {NM}, {V(G + 2 * pr, 2)} op_sel:[0,0,0] op_sel_hi:[1,0,1]")
            for pr in range(8):
                P.I(f"v_pk_fma_f32 {V(U + 2 * pr, 2)}, {V(cu + 2 * pr, 2)}, {NM}, {V(U + 2 * pr, 2)} op_sel:[0,0,0] op_sel_hi:[1,0,1]")
            for grp in range(2):
                prs = [4 * grp + j for j in range(4)]
                def T(j, k): return T0 + 8 * j + 2 * k
                for j, pr in enumerate(prs):
                    P.I(f"v_pk_mul_f32 {V(T(j,0),2)}, {V(G + 2 * pr, 2)}, {V(G + 2 * pr, 2)}")
                for j, pr in enumerate(prs):
                    P.I(f"v_pk_fma_f32 {V(T(j,0),2)}, {V(T(j,0),2)}, {V(vST + 4, 2)}, {V(vST + 4, 2)} op_sel:[0,1,0] op_sel_hi:[1,1,0]")
                for j, pr in enumerate(prs):
                    P.I(f"v_pk_mul_f32 {V(T(j,0),2)}, {V(T(j,0),2)}, {V(G + 2 * pr, 2)}")
                for j, pr in enumerate(prs):
                    P.I(f"v_exp_f32 v{T(j,0)}, v{T(j,0)}")
                    P.I(f"v_exp_f32 v{T(j,0)+1}, v{T(j,0)+1}")
                for j, pr in enumerate(prs):
                    P.I(f"v_pk_mul_f32 {V(T(j,1),2)}, {V(G + 2 * pr, 2)}, {V(U + 2 * pr, 2)}")
                for j, pr in enumerate(prs):
                    P.I(f"v_pk_add_f32 {V(T(j,0),2)}, {V(T(j,0),2)}, {sp(sONEF)}")
                for j, pr in enumerate(prs):
                    P.I(f"v_pk_mul_f32 {V(T(j,1),2)}, {V(T(j,1),2)}, {V(vST + 2, 2)} op_sel:[0,1] op_sel_hi:[1,1]")
                for j, pr in enumerate(prs):
                    P.I(f"v_rcp_f32 v{T(j,0)}, v{T(j,0)}")
                    P.I(f"v_rcp_f32 v{T(j,0)+1}, v{T(j,0)+1}")
                for j, pr in enumerate(prs):
                    P.I(f"v_pk_mul_f32 {V(T(j,1),2)}, {V(T(j,1),2)}, {V(T(j,0),2)}")
                for j, pr in enumerate(prs):
                    P.I(f"v_cvt_pk_bf16_f32 v{HP + 8 * F + pr}, v{T(j,1)}, v{T(j,1)+1}")
            self.stores([f"buffer_store_dwordx4 {V(HP + 8 * F + 4 * AB, 4)}, v{va}, {srd(S_WS)}, s{sT1} offen offset:{F * 1024 + AB * 512}" for AB in range(2)])
            if F == 2:
                P.optional -= 1
                P.label(lskip)
                P.fence_hazards(2)

    def set_layer1(self, P):
        P.I(f"s_mov_b32 s{sLAYER}, 1")
        P.I(f"s_mov_b32 s{sL2M}, 0x200000")
        P.I(f"s_mov_b32 s{sLH}, 0x600000")
        P.I(f"s_mov_b32 s{sLST}, 0x20000")
        P.I(f"s_mov_b32 s{sLFL}, 0x1000")

    def build(self):
        P = self.P; L = self.L
        self.prologue()
        P.I(f"s_mov_b32 s{sT3}, {XIN}")
        P.I(f"s_mov_b32 s{sT4}, {STIN}")
        self.ts(0)
        self.emit_x(False, sT3, sT4, halo_l=0)
        self.finish_phase(0, 0, lambda: self.poll_rb_prev(True), lambda: self.phase1('pre'), first=True)
        P.label("L_layer")
        P.fence_hazards(4)
        L.label("L_llayer")
        L.fence_hazards(2)
        L.vmq = [{'regs': set(), 'tag': ('W1', ks), 'definite': True} for ks in range(6) for _ in range(3)]
        P.vmq = []
        self.phase1('lpre')
        if self.touch: self.phase1('touch')
        self.bar()
        P.I(f"v_mov_b32 v252, {MISC + 4096}")
        P.I(f"ds_read_b32 v253, v252")
        P.I(f"v_readfirstlane_b32 s{sFAST}, v253")
        self.ts(1)
        self.phase1('body')
        self.finish_phase(1, 1, self.poll_rb, lambda: self.gemm_res(2, 'pre'))
        self.wait_units('W2', 15)
        self.bar()
        self.ts(3)
        self.gemm_res(2, 'body')
        self.finish_phase(2, 2, self.poll_pair, lambda: self.phase3('pre'))
        self.wait_units('W3', 1)
        self.bar()
        self.ts(5)
        self.phase3('body')
        self.finish_phase(3, 3, self.poll_pair, lambda: self.gemm_res(4, 'pre'))
        self.wait_units('W4', 37)
        self.bar()
        self.ts(7)
        self.gemm_res(4, 'body')
        self.finish_phase(4, 4, self.poll_rb_prev, lambda: self.phase1('pre'))
        self.set_layer1(P)
        P.I("s_branch L_layer")
        self.set_layer1(L)
        L.I("s_branch L_llayer")
        self.final_store()
        P.label("L_end")
        P.I("s_endpgm")
        L.label("L_lend")
        L.wait_vm_all()
        L.I("s_endpgm")

    def text(self):
        hdr = open('cdna_kernels/' + NAME + '.s.ref').read().split('\n')
        head = [l for l in hdr if l.startswith(';') and '@launch' not in l and 'Override' not in l and 'grid=ceil' not in l]
        s = "\n".join(head) + "\n"
        s += f"; @launch grid=(256,1,1) block=(512,1,1) lds={LDS_BYTES}\n"
        s += '.amdgcn_target "amdgcn-amd-amdhsa--gfx950"\n.text\n'
        s += f".globl {NAME}_kernel\n.p2align 8\n.type {NAME}_kernel,@function\n{NAME}_kernel:\n"
        s += self.P.text()
        s += "L_loader:\n    s_nop 1\n"
        s += self.L.text()
        s += f""".section .rodata,"a"
.p2align 6
.amdhsa_kernel {NAME}_kernel
  .amdhsa_next_free_vgpr 256
  .amdhsa_next_free_sgpr 102
  .amdhsa_accum_offset 256
  .amdhsa_group_segment_fixed_size 0
  .amdhsa_kernarg_size 80
  .amdhsa_user_sgpr_count 2
  .amdhsa_user_sgpr_kernarg_segment_ptr 1
  .amdhsa_system_sgpr_workgroup_id_x 1
.end_amdhsa_kernel
"""
        return s

if __name__ == "__main__":
    import argparse
    ap = argparse.ArgumentParser()
    ap.add_argument('-o', default='cdna_kernels/' + NAME + '.s')
    ap.add_argument('--profile', type=int, default=0)
    ap.add_argument('--drop', default='')
    ap.add_argument('--slow', action='store_true')
    ap.add_argument('--init24', type=int, default=0)
    ap.add_argument('--notouch', action='store_true')
    ap.add_argument('--tlbwarm', type=int, default=0)
    ap.add_argument('--latew1', action='store_true')
    ap.add_argument('--init3', type=int, default=0)
    a = ap.parse_args()
    g = Gen(profile=a.profile, drop=a.drop.split(',') if a.drop else (), force_slow=a.slow)
    if a.notouch: g.touch = False
    g.tlbwarm = a.tlbwarm
    g.latew1 = a.latew1
    if a.init24: g.init24 = a.init24
    if a.init3: g.init3 = a.init3
    g.build()
    open(a.o, 'w').write(g.text())
    print("compute instrs:", g.P.ninstr, "nops:", g.P.nops, " loader instrs:", g.L.ninstr,
          " barriers:", sum(1 for l in g.P.out if 's_barrier' in l), sum(1 for l in g.L.out if 's_barrier' in l))
```

```python
import sys, struct
from asmlib import Prog

NAME = "interleave_layers__sliding_local_dilated__geglu_ffn__prompt"

def f2u(x):
    return struct.unpack('<I', struct.pack('<f', x))[0]

XIN   = 0x000000
XMID  = 0x400000
OBUF  = 0x800000
HBUF  = 0xC00000
STIN  = 0x1800000
STMID = 0x1840000
FLAGS = 0x1900000
FLAGS2 = FLAGS + 0x10000
XHALO = 0x1920000
STHALO = 0x1960000
TSBUF = 0x1A00000
CSBUF = 0x1BF0000
FLAGS3 = 0x1918000
FLAGS4 = 0x1914000
W2S = 0x1C00000
W4S = 0x1C80000
W3S = 0x2000000
WS_SIZE = 0x2400000

S_WS, S_X0, S_WQKV, S_WO, S_W3, S_WD, S_OUT, S_DBG = 8, 12, 16, 20, 24, 32, 36, 40
sRB, sC, sW, sNONCE, sLAYER = 44, 45, 46, 47, 48
sL2M, sLH, sLST, sLFL = 49, 50, 51, 52
sT0, sT1, sT2, sT3, sT4, sT5 = 53, 54, 55, 56, 57, 58
sW3072, sW1024, sW5120, sONES = 59, 60, 61, 62
sRT = 63
sMCUR = 64
sM01, sM23, sMI0, sMLO16 = 72, 74, 76, 78
sP0, sNP, sR32, sCNT = 80, 81, 82, 83
sK3 = 84
sONEF = 86
sTS = 88
sXT0 = 90
sISL = 91
sEXEC = 92
sBG = 96
sXB0, sXB1 = 97, 98
sW2B, sW3B, sW4B = 64, 65, 66
sSH1, sSH2, sSH3, sSH4 = 67, 68, 69, 70
sSTS = 71
sW4OK = 78
CSL = None
sFAST, sXCC, sHALO = 99, 100, 101
def srd(b): return f"s[{b}:{b+3}]"
def sp(b): return f"s[{b}:{b+1}]"

vL16 = 1
vRES = 2
vLANE = 15
vW1OFF, vW2OFF = 10, 11
vW3OFF = 12
vX1OFF = 16
vLONE = 120
vX0 = 130
vZERO, vDUM = 126, 127
vXW = 119
S_NULL = 28

def V(b, n=1):
    return f"v{b}" if n == 1 else f"v[{b}:{b+n-1}]"
def regs(base, n): return [f"v{base + i}" for i in range(n)]

PAGE = 4096
XB = 18 * PAGE
MISC = 38 * PAGE
LDS_BYTES = 40 * PAGE
NEG = hex(f2u(-3.0e38))
GC0 = -2.0 * 0.7978845608028654 * 1.4426950408889634


class Gen:
    def __init__(self, profile=0, drop=(), force_slow=False):
        self.force_slow = force_slow
        self.init24 = 10
        self.init3 = 8
        self.touch = True
        self.pull = False
        self.earlytouch = False
        self.prefetch = False
        self.tlbwarm = 0
        self.latew1 = False
        self.dbgfast = False
        self.P = Prog()
        self.L = Prog()
        self.P.drop = set(drop); self.L.drop = set(drop)
        self.profile = profile
        self.lab = 0

    def newlab(self, s):
        self.lab += 1
        return f"L_{s}_{self.lab}"

    def bar(self):
        self.P.barrier()
        self.L.barrier()

    def w1_page(self, ks): return (ks % 6) * 3
    W2_PAGES = [12, 13, 14, 15, 16, 17, 0, 1, 2, 3, 4, 5, 6, 7, 8, 9]
    def w3_page(self, u):
        if u < 6: return 18 + 3 * u
        if u < 12: return 3 * (u - 6)
        return 18 + 3 * (u - 12)
    def w4_page(self, k):
        if k < 2: return 36 + k
        if k < 8: return 30 + (k - 2)
        if k < 26: return k - 8
        if k < 38: return 18 + (k - 26)
        return [36, 37, 30, 31, 32][k - 38]

    def dma_group(self, voffs, srd_b, soff_imm, m0_base_s, m0_imm, tag):
        L = self.L
        L.I(f"s_add_u32 m0, s{m0_base_s}, {m0_imm}")
        L.I(f"s_mov_b32 s{sBG}, {soff_imm}")
        for e, voff in enumerate(voffs):
            off = f" offset:{e * 1024}" if e else ""
            L.I(f"buffer_load_dwordx4 v{voff}, {srd(srd_b)}, s{sBG} offen{off} lds", tag=tag)
    def ld_w1(self, ks): self.dma_group([vW1OFF] * 3, S_WQKV, ks * 98304, sW3072, self.w1_page(ks) * PAGE, ('W1', ks))
    def lin(self, base_s, goff, lds_off, tag):
        L = self.L
        L.I(f"s_add_u32 m0, s{sW1024}, {lds_off}")
        L.I(f"s_add_u32 s{sBG}, s{base_s}, {goff}")
        L.I(f"buffer_load_dwordx4 v{vX1OFF}, {srd(S_WS)}, s{sBG} offen lds", tag=tag)
    def ld_w2(self, ks): self.lin(sW2B, ks * 4096, self.W2_PAGES[ks] * PAGE, ('W2', ks))
    def ld_w3(self, u):
        for F in range(3):
            self.lin(sW3B, F * 65536 + u * 4096, self.w3_page(u) * PAGE + F * 4096, ('W3', u))
    def ld_w4(self, k): self.lin(sW4B, k * 4096, self.w4_page(k) * PAGE, ('W4', k))
    def wait_units(self, name, upto):
        self.L.wait_vm_tag(lambda t: t[0] == name and t[1] <= upto)

    def ts(self, idx, fine=False):
        if not self.profile:
            return
        if self.profile >= 3:
            keep = {3: (1, 2), 4: (3, 4), 5: (7, 8), 6: (5, 6), 7: (0, 1, 2)}[self.profile]
            if fine != self.profile and not (fine is False and idx in keep):
                return
        elif fine:
            return
        P = self.P
        l = self.newlab("ts")
        P.I(f"s_cmp_lg_u32 s{sW}, 0")
        P.I(f"s_cbranch_scc1 {l}")
        P.optional += 1
        P.I(f"{'s_memtime' if self.profile in (2, 3, 4, 5, 6) else 's_memrealtime'} {sp(sTS)}")
        P.raw("    s_waitcnt lgkmcnt(0)")
        P.I(f"s_mov_b64 {sp(sEXEC)}, exec")
        P.I(f"s_mov_b64 exec, 1")
        P.I(f"v_mov_b32 v254, s{sTS}")
        P.I(f"v_mov_b32 v255, s{sTS+1}")
        P.I(f"s_lshl_b32 s95, s2, 8")
        P.I(f"s_lshl_b32 s94, s{sLAYER}, 7")
        P.I(f"s_add_u32 s95, s95, s94")
        P.I(f"s_add_u32 s95, s95, {TSBUF + idx * 8}")
        P.I(f"v_mov_b32 v253, 0")
        P.I(f"buffer_store_dwordx2 v[254:255], v253, {srd(S_WS)}, s95 offen")
        P.I(f"s_mov_b64 exec, {sp(sEXEC)}")
        P.optional -= 1
        P.label(l)
        P.fence_hazards(2)

    def stores(self, lines):
        P = self.P
        ls = self.newlab("slow"); lj = self.newlab("join")
        for t in lines:
            from asmlib import classify
            if t.startswith('buffer_store'):
                P.need(sorted(classify(t).rd))
        P.fence_hazards(8)
        P.I(f"s_cmp_eq_u32 s{sFAST}, 0")
        P.I(f"s_cbranch_scc1 {ls}")
        for t in lines:
            P.I(t, tag=('ST', 0) if t.startswith('buffer_store') else None)
        P.raw(f"    s_branch {lj}")
        P.label(ls)
        for t in lines:
            P.raw("    " + t + (" sc1" if t.startswith('buffer_store') else ""))
        P.label(lj)
        P.fence_hazards(2)

    def lts(self, idx, wave=0):
        if self.profile != 7:
            return
        L = self.L
        l = self.newlab("lts")
        L.I(f"s_cmp_lg_u32 s{sW}, {wave}")
        L.I(f"s_cbranch_scc1 {l}")
        L.I(f"s_cmp_lg_u32 s{sLAYER}, 0")
        L.I(f"s_cbranch_scc1 {l}")
        L.optional += 1
        L.I(f"s_memrealtime {sp(sTS)}")
        L.raw("    s_waitcnt lgkmcnt(0)")
        L.I(f"s_mov_b64 exec, 1")
        L.I(f"v_mov_b32 v254, s{sTS}")
        L.I(f"v_mov_b32 v255, s{sTS+1}")
        L.I(f"s_lshl_b32 s95, s2, 8")
        L.I(f"s_add_u32 s95, s95, {TSBUF + idx * 8}")
        L.I(f"v_mov_b32 v253, 0")
        L.I(f"buffer_store_dwordx2 v[254:255], v253, {srd(S_WS)}, s95 offen")
        L.I(f"s_mov_b64 exec, -1")
        L.optional -= 1
        L.label(l)
        L.fence_hazards(2)

    def signal_and_poll(self, flag_phase, poll_phase, poll_off_v, first=False):
        P = self.P
        l = self.newlab("w0skip")
        P.I(f"s_cmp_lg_u32 s{sW}, 0")
        P.I(f"s_cbranch_scc1 {l}")
        P.optional += 1
        if first:
            lp = self.newlab("npoll"); ld = self.newlab("ndone")
            P.I(f"s_mov_b32 s{sCNT}, 0")
            P.label(lp)
            P.I(f"v_mov_b32 v252, 0")
            P.I(f"buffer_load_dword v253, v252, {srd(S_DBG)}, 0 offen sc1")
            P.raw("    s_waitcnt vmcnt(0)")
            P.I(f"v_readfirstlane_b32 s{sNONCE}, v253")
            P.I(f"s_cmp_lg_u32 s{sNONCE}, 0")
            P.I(f"s_cbranch_scc1 {ld}")
            P.I(f"s_sleep 1")
            P.I(f"s_add_u32 s{sCNT}, s{sCNT}, 1")
            P.I(f"s_cmp_lt_u32 s{sCNT}, 100000")
            P.I(f"s_cbranch_scc1 {lp}")
            P.label(ld)
        P.I(f"s_lshl_b32 s{sT1}, s{sRB}, 3")
        P.I(f"s_add_u32 s{sT1}, s{sT1}, s{sC}")
        P.I(f"s_lshl_b32 s{sT1}, s{sT1}, 2")
        P.I(f"s_add_u32 s{sT1}, s{sT1}, s{sLFL}")
        P.I(f"s_add_u32 s{sT1}, s{sT1}, {FLAGS + flag_phase * 0x400}")
        P.I(f"s_mov_b64 {sp(sEXEC)}, exec")
        P.I(f"s_mov_b64 exec, 1")
        P.I(f"v_mov_b32 v252, 0")
        if first:
            P.I(f"s_or_b32 s{sT2}, s{sNONCE}, s{sXCC}")
            P.I(f"v_mov_b32 v253, s{sT2}")
            P.I(f"buffer_store_dword v253, v252, {srd(S_WS)}, s{sT1} offen sc1")
        else:
            P.I(f"v_mov_b32 v253, s{sNONCE}")
            lsl = self.newlab("fslow"); lfj = self.newlab("fjoin")
            P.I(f"s_cmp_eq_u32 s{sFAST}, 0")
            P.I(f"s_cbranch_scc1 {lsl}")
            P.I(f"buffer_store_dword v253, v252, {srd(S_WS)}, s{sT1} offen")
            P.I(f"s_branch {lfj}")
            P.label(lsl)
            P.I(f"buffer_store_dword v253, v252, {srd(S_WS)}, s{sT1} offen sc1")
            P.label(lfj)
        P.I(f"s_mov_b64 exec, {sp(sEXEC)}")
        lp = self.newlab("poll"); ld = self.newlab("pdone")
        P.I(f"s_add_u32 s{sT1}, s{sLFL}, {FLAGS + poll_phase * 0x400}")
        P.I(f"s_mov_b32 s{sCNT}, 0")
        P.label(lp)
        P.I(f"buffer_load_dword v253, v{poll_off_v}, {srd(S_WS)}, s{sT1} offen sc1")
        P.raw("    s_waitcnt vmcnt(0)")
        P.I(f"v_and_b32 v252, -16, v253")
        P.I(f"v_cmp_ne_u32 vcc, s{sNONCE}, v252")
        P.I(f"s_cmp_eq_u64 vcc, 0")
        P.I(f"s_cbranch_scc1 {ld}")
        P.I(f"s_add_u32 s{sCNT}, s{sCNT}, 1")
        P.I(f"s_cmp_lt_u32 s{sCNT}, 200000")
        P.I(f"s_cbranch_scc1 {lp}")
        P.label(ld)
        if first:
            P.I(f"v_and_b32 v252, 15, v253")
            P.I(f"v_cmp_ne_u32 vcc, s{sXCC}, v252")
            P.I(f"s_cmp_eq_u32 vcc_lo, 0")
            P.I(f"s_cselect_b32 s{sT2}, {0 if self.force_slow else 1}, 0")
            P.I(f"v_mov_b32 v252, {MISC + 4096}")
            P.I(f"v_mov_b32 v253, s{sT2}")
            P.I(f"ds_write_b32 v252, v253")
            P.I(f"v_mov_b32 v253, s{sNONCE}")
            P.I(f"ds_write_b32 v252, v253 offset:4")
            P.raw("    s_waitcnt lgkmcnt(0)")
        P.optional -= 1
        P.label(l)
        P.fence_hazards(4)

    def finish_phase(self, flag_phase, poll_phase, poll_setup, pre, first=False, lpost=None):
        P = self.P
        if flag_phase in (1, 2, 3): self.ts(10 + 2 * (flag_phase - 1))
        pre()
        pv = poll_setup()
        P.wait_vm_tag(lambda t: t[0] == 'ST')
        self.bar()
        if lpost: lpost()
        if flag_phase in (1, 2, 3): self.ts(11 + 2 * (flag_phase - 1))
        if flag_phase in (0, 4):
            lh = self.newlab("nohalo")
            P.I(f"s_cmp_eq_u32 s{sHALO}, 0")
            P.I(f"s_cbranch_scc1 {lh}")
            P.optional += 1
            P.raw("    s_waitcnt vmcnt(0)")
            if first:
                lp = self.newlab("hn"); ld = self.newlab("hnd")
                P.I(f"s_mov_b32 s{sCNT}, 0")
                P.label(lp)
                P.I(f"v_mov_b32 v252, 0")
                P.I(f"buffer_load_dword v253, v252, {srd(S_DBG)}, 0 offen sc1")
                P.raw("    s_waitcnt vmcnt(0)")
                P.I(f"v_readfirstlane_b32 s{sNONCE}, v253")
                P.I(f"s_cmp_lg_u32 s{sNONCE}, 0")
                P.I(f"s_cbranch_scc1 {ld}")
                P.I(f"s_add_u32 s{sCNT}, s{sCNT}, 1")
                P.I(f"s_cmp_lt_u32 s{sCNT}, 200000")
                P.I(f"s_cbranch_scc1 {lp}")
                P.label(ld)
            P.I(f"s_lshr_b32 s{sT1}, s{sRB}, 2")
            P.I(f"s_lshl_b32 s{sT1}, s{sT1}, 3")
            P.I(f"s_add_u32 s{sT1}, s{sT1}, s{sC}")
            P.I(f"s_lshl_b32 s{sT1}, s{sT1}, 2")
            P.I(f"s_add_u32 s{sT1}, s{sT1}, s{sLFL}")
            P.I(f"s_add_u32 s{sT1}, s{sT1}, {FLAGS2 + flag_phase * 0x400}")
            P.I(f"s_mov_b64 {sp(sEXEC)}, exec")
            P.I(f"s_mov_b64 exec, 1")
            P.I(f"v_mov_b32 v252, 0")
            P.I(f"v_mov_b32 v253, s{sNONCE}")
            P.I(f"buffer_store_dword v253, v252, {srd(S_WS)}, s{sT1} offen sc1")
            P.I(f"s_mov_b64 exec, {sp(sEXEC)}")
            P.optional -= 1
            P.label(lh)
            P.fence_hazards(2)
        self.signal_and_poll(flag_phase, poll_phase, pv, first=first)

    def poll_rb_prev(self, first=False):
        P = self.P
        P.I(f"v_and_b32 v250, 7, v{vLANE}")
        P.I(f"s_lshr_b32 s{sT1}, s{sRB}, 2")
        P.I(f"s_lshl_b32 s{sT1}, s{sT1}, 3")
        P.I(f"s_add_u32 s{sT1}, s{sT1}, {0x4000 - 8}")
        P.I(f"s_lshl_b32 s{sT2}, s{sRB}, 3")
        P.I(f"s_sub_u32 s{sT3}, s{sT2}, 8")
        P.I(f"s_and_b32 s{sT4}, s{sRB}, 3")
        P.I(f"s_cmp_eq_u32 s{sT4}, 0")
        P.I(f"s_cselect_b32 s{sT3}, s{sT1}, s{sT3}")
        P.I(f"s_cmp_eq_u32 s{sRB}, 0")
        P.I(f"s_cselect_b32 s{sT3}, s{sT2}, s{sT3}")
        if not first:
            P.I(f"v_add_u32 v251, s{sT2}, v250")
            P.I(f"v_add_u32 v250, s{sT3}, v250")
            P.I(f"v_and_b32 v249, 8, v{vLANE}")
            P.I(f"v_cmp_eq_u32 vcc, 0, v249")
            P.I(f"v_cndmask_b32 v251, v250, v251, vcc")
        else:
            P.I(f"s_lshr_b32 s{sT1}, s{sRB}, 2")
            P.I(f"s_lshl_b32 s{sT1}, s{sT1}, 5")
            P.I(f"v_and_b32 v251, 31, v{vLANE}")
            P.I(f"v_add_u32 v251, s{sT1}, v251")
            P.I(f"v_add_u32 v250, s{sT3}, v250")
            P.I(f"v_cmp_gt_u32 vcc, 32, v{vLANE}")
            P.I(f"v_cndmask_b32 v251, v250, v251, vcc")
        P.I(f"v_lshlrev_b32 v251, 2, v251")
        return 251
    def poll_rb(self):
        P = self.P
        P.I(f"v_and_b32 v251, 7, v{vLANE}")
        P.I(f"s_lshl_b32 s{sT1}, s{sRB}, 3")
        P.I(f"v_add_u32 v251, s{sT1}, v251")
        P.I(f"v_lshlrev_b32 v251, 2, v251")
        return 251
    def poll_pair(self):
        P = self.P
        P.I(f"v_and_b32 v251, 15, v{vLANE}")
        P.I(f"s_lshr_b32 s{sT1}, s{sRB}, 1")
        P.I(f"s_lshl_b32 s{sT1}, s{sT1}, 4")
        P.I(f"v_add_u32 v251, s{sT1}, v251")
        P.I(f"v_lshlrev_b32 v251, 2, v251")
        return 251

    def touch16(self, S, va, vd, base_const, use_l2m=True, extra_l2m=0):
        S.I(f"v_lshrrev_b32 v{va}, 4, v{vLANE}")
        S.I(f"v_lshlrev_b32 v{va}, 14, v{va}")
        S.I(f"v_and_b32 v{vd}, 15, v{vLANE}")
        S.I(f"v_lshl_add_u32 v{va}, v{vd}, 7, v{va}")
        S.I(f"s_lshl_b32 s{sT1}, s{sRB}, 16")
        S.I(f"s_lshl_b32 s{sT2}, s{sC}, 11")
        S.I(f"s_add_u32 s{sT1}, s{sT1}, s{sT2}")
        S.I(f"s_add_u32 s{sT1}, s{sT1}, s{sL2M}")
        S.I(f"s_add_u32 s{sT1}, s{sT1}, {base_const}")
        S.I(f"buffer_load_dword v{vd}, v{va}, {srd(S_WS)}, s{sT1} offen")
    def touch32(self, S, va, vd):
        S.I(f"v_lshrrev_b32 v{va}, 5, v{vLANE}")
        S.I(f"v_lshlrev_b32 v{va}, 15, v{va}")
        S.I(f"v_and_b32 v{vd}, 31, v{vLANE}")
        S.I(f"v_lshl_add_u32 v{va}, v{vd}, 7, v{va}")
        S.I(f"s_lshl_b32 s{sT1}, s{sRB}, 16")
        S.I(f"s_lshl_b32 s{sT2}, s{sC}, 12")
        S.I(f"s_add_u32 s{sT1}, s{sT1}, s{sT2}")
        S.I(f"s_add_u32 s{sT1}, s{sT1}, s{sL2M}")
        S.I(f"s_add_u32 s{sT1}, s{sT1}, {XMID}")
        S.I(f"buffer_load_dword v{vd}, v{va}, {srd(S_WS)}, s{sT1} offen")
    def touch_stats(self, S, va, vd, base_const):
        S.I(f"v_and_b32 v{va}, 31, v{vLANE}")
        S.I(f"v_lshlrev_b32 v{va}, 7, v{va}")
        S.I(f"s_lshl_b32 s{sT1}, s{sRB}, 12")
        S.I(f"s_add_u32 s{sT1}, s{sT1}, s{sLST}")
        S.I(f"s_add_u32 s{sT1}, s{sT1}, {base_const}")
        S.I(f"buffer_load_dword v{vd}, v{va}, {srd(S_WS)}, s{sT1} offen")
    def touch_h(self, S, va, vb, vd):
        S.I(f"s_lshr_b32 s{sT1}, s{sRB}, 1")
        S.I(f"s_mul_i32 s{sT1}, s{sT1}, {8 * 43}")
        S.I(f"s_add_u32 s{sT1}, s{sT1}, s{sP0}")
        S.I(f"s_lshl_b32 s{sT1}, s{sT1}, 10")
        S.I(f"s_add_u32 s{sT1}, s{sT1}, s{sLH}")
        S.I(f"s_add_u32 s{sT1}, s{sT1}, {HBUF}")
        for e in range(3):
            S.I(f"v_add_u32 v{va}, {64 * e}, v{vLANE}")
            S.I(f"v_mul_u32_u24 v{vb}, 43691, v{va}")
            S.I(f"v_lshrrev_b32 v{vb}, 20, v{vb}")
            S.I(f"v_mul_u32_u24 v{vd + e}, 24, v{vb}")
            S.I(f"v_sub_u32 v{va}, v{va}, v{vd + e}")
            S.I(f"v_lshlrev_b32 v{va}, 7, v{va}")
            S.I(f"v_mul_u32_u24 v{vb}, {43 * 1024}, v{vb}")
            S.I(f"v_add_u32 v{va}, v{va}, v{vb}")
            S.I(f"buffer_load_dword v{vd + e}, v{va}, {srd(S_WS)}, s{sT1} offen")

    def prologue(self):
        P = self.P; L = self.L
        P.I("s_cmp_ge_u32 s2, 256")
        P.I("s_cbranch_scc1 L_end")
        P.I("s_load_dwordx16 s[64:79], s[0:1], 0")
        P.I("s_load_dwordx4 s[84:87], s[0:1], 64")
        P.I(f"s_and_b32 s{sT0}, s2, 7")
        P.I(f"s_lshr_b32 s{sT1}, s2, 3")
        P.I(f"s_lshl_b32 s{sRB}, s{sT0}, 2")
        P.I(f"s_lshr_b32 s{sT2}, s{sT1}, 3")
        P.I(f"s_add_u32 s{sRB}, s{sRB}, s{sT2}")
        P.I(f"s_and_b32 s{sC}, s{sT1}, 7")
        P.I(f"v_lshrrev_b32 v1, 6, v0")
        P.I(f"v_and_b32 v{vLANE}, 63, v0")
        P.I(f"v_readfirstlane_b32 s{sW}, v1")
        P.I(f"v_lshlrev_b32 v{vL16}, 4, v{vLANE}")
        P.I(f"s_lshr_b32 s{sISL}, s{sW}, 2")
        P.I(f"s_and_b32 s{sW}, s{sW}, 3")
        P.wait_lg_all()
        def mk(b, ptr, size):
            P.I(f"s_mov_b32 s{b}, s{ptr}")
            P.I(f"s_and_b32 s{b+1}, s{ptr+1}, 0xffff")
            P.I(f"s_mov_b32 s{b+2}, {size}")
            P.I(f"s_mov_b32 s{b+3}, 0x20000")
        mk(S_X0, 64, 2048 * 512 * 2)
        mk(S_WQKV, 66, 512 * 1536 * 2)
        mk(S_WO, 68, 512 * 512 * 2)
        mk(S_WD, 76, 1376 * 512 * 2)
        mk(S_OUT, 78, 2048 * 512 * 2)
        mk(S_DBG, 84, 256)
        mk(S_WS, 86, WS_SIZE)
        P.I(f"s_cmp_lt_u32 s{sW}, 2")
        P.I(f"s_cselect_b32 s{S_W3}, s72, s74")
        P.I(f"s_cselect_b32 s{sT0}, s73, s75")
        P.I(f"s_and_b32 s{S_W3+1}, s{sT0}, 0xffff")
        P.I(f"s_mov_b32 s{S_W3+2}, {512 * 1376 * 2}")
        P.I(f"s_mov_b32 s{S_W3+3}, 0x20000")
        if self.tlbwarm:
            T = 28
            P.I(f"s_lshr_b32 s{sT0}, s2, 3")
            P.I(f"s_lshl_b32 s{sT0}, s{sT0}, 3")
            P.I(f"s_lshl_b32 s{sT1}, s{sISL}, 2")
            P.I(f"s_add_u32 s{sT0}, s{sT0}, s{sT1}")
            P.I(f"s_add_u32 s{sT0}, s{sT0}, s{sW}")
            P.I(f"s_and_b32 s{sT0}, s{sT0}, 63")
            P.I(f"s_mov_b32 s{T}, s{S_WS}")
            P.I(f"s_mov_b32 s{T + 1}, s{S_WS + 1}")
            P.I(f"s_lshl_b32 s{sT1}, s{sT0}, 20")
            for lo, (bl, bh) in ((36, (S_X0, S_X0 + 1)), (38, (S_WQKV, S_WQKV + 1)), (40, (S_WO, S_WO + 1)), (41, (72, 73)), (43, (74, 75)), (45, (S_WD, S_WD + 1)), (47, (S_OUT, S_OUT + 1)), (49, (S_WS, S_WS + 1))):
                P.I(f"s_sub_u32 s{sT2}, s{sT0}, {lo}")
                P.I(f"s_lshl_b32 s{sT2}, s{sT2}, 20")
                P.I(f"s_cmp_ge_u32 s{sT0}, {lo}")
                P.I(f"s_cselect_b32 s{T}, s{bl}, s{T}")
                P.I(f"s_cselect_b32 s{T + 1}, s{bh}, s{T + 1}")
                P.I(f"s_cselect_b32 s{sT1}, s{sT2}, s{sT1}")
            P.I(f"s_and_b32 s{T + 1}, s{T + 1}, 0xffff")
            P.I(f"s_mov_b32 s{T + 2}, 0x2400000")
            P.I(f"s_mov_b32 s{T + 3}, 0x20000")
            P.I(f"v_mov_b32 v14, 0")
            P.I(f"s_mov_b64 exec, 1")
            P.I(f"buffer_load_dword v13, v14, {srd(T)}, s{sT1} offen")
            P.I(f"s_mov_b64 exec, -1")
            P.vmq = []
        P.I(f"s_mul_i32 s{sW3072}, s{sW}, 3072")
        P.I(f"s_lshl_b32 s{sW1024}, s{sW}, 10")
        P.I(f"s_mul_i32 s{sW5120}, s{sW}, 5120")
        P.I(f"s_mov_b32 s{sONES}, 0x3f803f80")
        P.I(f"s_lshl_b32 s{sRT}, s{sRB}, 2")
        P.I(f"s_add_u32 s{sRT}, s{sRT}, s{sW}")
        for r in (sLAYER, sL2M, sLH, sLST, sLFL):
            P.I(f"s_mov_b32 s{r}, 0")
        P.I(f"s_and_b32 s{sT0}, s{sRB}, 1")
        P.I(f"s_lshl_b32 s{sT0}, s{sT0}, 3")
        P.I(f"s_add_u32 s{sT0}, s{sT0}, s{sC}")
        P.I(f"s_mul_i32 s{sT1}, s{sT0}, 3")
        P.I(f"s_lshl_b32 s{sT2}, s{sT0}, 1")
        P.I(f"s_add_u32 s{sT2}, s{sT2}, 11")
        P.I(f"s_cmp_le_u32 s{sT0}, 10")
        P.I(f"s_cselect_b32 s{sP0}, s{sT1}, s{sT2}")
        P.I(f"s_cselect_b32 s{sNP}, 3, 2")
        P.I(f"s_lshr_b32 s{sT0}, s{sRB}, 1")
        P.I(f"s_lshl_b32 s{sT0}, s{sT0}, 2")
        P.I(f"s_add_u32 s{sR32}, s{sT0}, s{sW}")
        P.I(f"s_lshl_b32 s{sT1}, s{sRB}, 2")
        P.I(f"s_sub_u32 s{sT2}, s{sT1}, 1")
        P.I(f"s_max_i32 s{sXT0}, s{sT2}, 0")
        P.I(f"s_getreg_b32 s{sXCC}, hwreg(HW_REG_XCC_ID, 0, 4)")
        P.I(f"s_mov_b32 s{sFAST}, 0")
        P.I(f"s_and_b32 s{sT0}, s{sRT}, 15")
        P.I(f"s_cmp_eq_u32 s{sT0}, 15")
        P.I(f"s_cselect_b32 s{sHALO}, 1, 0")
        P.I(f"s_cmp_lg_u32 s{sISL}, 0")
        P.I(f"s_cbranch_scc1 L_loader")
        a, b, c_ = 20, 21, 22
        L.I(f"v_lshrrev_b32 v{a}, 3, v{vLANE}")
        L.I(f"v_and_b32 v{b}, 6, v{a}")
        L.I(f"v_and_b32 v{c_}, 7, v{vLANE}")
        L.I(f"v_xor_b32 v{c_}, v{c_}, v{b}")
        L.I(f"v_lshlrev_b32 v{c_}, 4, v{c_}")
        L.I(f"s_lshl_b32 s{sT0}, s{sC}, 7")
        L.I(f"v_add_u32 v{c_}, s{sT0}, v{c_}")
        L.I(f"s_lshl_b32 s{sT1}, s{sW}, 3")
        L.I(f"v_add_u32 v{a}, s{sT1}, v{a}")
        L.I(f"v_mul_u32_u24 v{b}, 3072, v{a}")
        L.I(f"v_add_u32 v{vW1OFF}, v{b}, v{c_}")
        L.I(f"v_lshlrev_b32 v{b}, 10, v{a}")
        L.I(f"v_add_u32 v{vW2OFF}, v{b}, v{c_}")
        L.I(f"v_add_u32 v{vX1OFF}, s{sW1024}, v{vL16}")
        L.I(f"s_add_u32 s{sT0}, s{sW5120}, {XB}")
        L.I(f"v_add_u32 v{vLONE}, s{sT0}, v{vL16}")
        for j in range(4):
            L.I(f"v_mov_b32 v{vLONE + 2 + j}, 0x3f803f80")
        L.I(f"s_mov_b32 s{sMI0}, 0x00010001")
        L.I(f"s_mov_b32 s{sMI0 + 1}, 0x00010001")
        L.I(f"s_mov_b32 s{S_NULL}, s{S_WS}")
        L.I(f"s_mov_b32 s{S_NULL + 1}, s{S_WS + 1}")
        L.I(f"s_mov_b32 s{S_NULL + 2}, 0")
        L.I(f"s_mov_b32 s{S_NULL + 3}, 0x20000")
        L.I(f"v_mov_b32 v{vZERO}, 0")
        for r in (45, 50, 54, 115):
            L.I(f"v_mov_b32 v{r}, 0")
        L.I(f"v_lshrrev_b32 v{a}, 4, v{vLANE}")
        L.I(f"v_lshlrev_b32 v{a}, 10, v{a}")
        L.I(f"v_and_b32 v{b}, 15, v{vLANE}")
        L.I(f"v_lshl_add_u32 v{a}, v{b}, 4, v{a}")
        L.I(f"s_lshl_b32 s{sT0}, s{sW}, 8")
        L.I(f"v_add_u32 v{a}, s{sT0}, v{a}")
        L.I(f"s_lshl_b32 s{sT1}, s{sRB}, 16")
        L.I(f"s_sub_u32 s{sT1}, s{sT1}, 16384")
        L.I(f"s_lshl_b32 s{sT2}, s{sXT0}, 14")
        for j in range(20):
            if j < 4:
                L.I(f"s_add_u32 s{sBG}, s{sT2}, {j * 4096}")
            else:
                L.I(f"s_add_u32 s{sBG}, s{sT1}, {j * 4096}")
            L.I(f"buffer_load_dwordx4 {V(vX0 + 4 * j, 4)}, v{a}, {srd(S_X0)}, s{sBG} offen")
        for ks in range(6):
            self.ld_w1(ks)
        self.shuffle('issue')
        self.lts(10)
        L.I(f"v_bfe_u32 v{a}, v{vLANE}, 2, 2")
        L.I(f"v_mul_u32_u24 v{a}, 5120, v{a}")
        L.I(f"v_lshrrev_b32 v{b}, 4, v{vLANE}")
        L.I(f"v_lshl_add_u32 v{a}, v{b}, 4, v{a}")
        L.I(f"v_and_b32 v{b}, 1, v{vLANE}")
        L.I(f"v_lshl_add_u32 v{a}, v{b}, 9, v{a}")
        L.I(f"v_bfe_u32 v{b}, v{vLANE}, 1, 1")
        L.I(f"v_lshl_add_u32 v{a}, v{b}, 3, v{a}")
        L.I(f"s_mul_i32 s{sT0}, s{sW}, 20480")
        L.I(f"s_add_u32 s{sT0}, s{sT0}, {XB}")
        L.I(f"v_add_u32 v{vXW}, s{sT0}, v{a}")
        lx = self.newlab("x0late")
        L.I(f"s_cmp_gt_u32 s{sW}, 1")
        L.I(f"s_cbranch_scc1 {lx}")
        L.optional += 1
        self.x0_to_lds()
        L.optional -= 1
        L.label(lx)
        L.fence_hazards(2)
        self.lts(11)
        ln = self.newlab("lnn")
        L.I(f"s_cmp_lg_u32 s{sW}, 2")
        L.I(f"s_cbranch_scc1 {ln}")
        L.optional += 1
        lp = self.newlab("lnp"); ld = self.newlab("lnd")
        L.I(f"s_mov_b32 s{sCNT}, 0")
        L.label(lp)
        L.I(f"buffer_load_dword v{b}, v{vZERO}, {srd(S_DBG)}, 0 offen sc1")
        L.raw("    s_waitcnt vmcnt(0)")
        L.I(f"v_readfirstlane_b32 s{sNONCE}, v{b}")
        L.I(f"s_cmp_lg_u32 s{sNONCE}, 0")
        L.I(f"s_cbranch_scc1 {ld}")
        L.I(f"s_add_u32 s{sCNT}, s{sCNT}, 1")
        L.I(f"s_cmp_lt_u32 s{sCNT}, 200000")
        L.I(f"s_cbranch_scc1 {lp}")
        L.label(ld)
        L.I(f"v_mov_b32 v{c_}, {MISC + 4096}")
        L.I(f"ds_write_b32 v{c_}, v{b} offset:4")
        L.optional -= 1
        L.label(ln)
        L.fence_hazards(2)
        L.raw("    s_waitcnt lgkmcnt(0)")
        L.vmq = []; L.lgq = []
        l = self.newlab("nonce")
        P.I(f"s_or_b32 s{sT0}, s2, s{sW}")
        P.I(f"s_cmp_lg_u32 s{sT0}, 0")
        P.I(f"s_cbranch_scc1 {l}")
        P.optional += 1
        P.I(f"s_memrealtime {sp(sTS)}")
        P.raw("    s_waitcnt lgkmcnt(0)")
        P.I(f"s_or_b32 s{sT1}, s{sTS}, 16")
        P.I(f"s_andn2_b32 s{sT1}, s{sT1}, 15")
        P.I(f"v_mov_b32 v20, s{sT1}")
        P.I(f"v_mov_b32 v21, 0")
        P.I(f"s_mov_b64 exec, 1")
        P.I(f"buffer_store_dword v20, v21, {srd(S_DBG)}, 0 offen sc1")
        P.I(f"s_mov_b64 exec, -1")
        P.optional -= 1
        P.label(l)
        P.fence_hazards(2)
        P.I(f"v_and_b32 v{a}, 15, v{vLANE}")
        P.I(f"v_lshlrev_b32 v{a}, 10, v{a}")
        P.I(f"v_lshrrev_b32 v{b}, 4, v{vLANE}")
        P.I(f"v_lshlrev_b32 v{b}, 3, v{b}")
        P.I(f"v_add_u32 v{a}, v{a}, v{b}")
        P.I(f"s_lshl_b32 s{sT0}, s{sRT}, 14")
        P.I(f"s_lshl_b32 s{sT1}, s{sC}, 7")
        P.I(f"s_add_u32 s{sT0}, s{sT0}, s{sT1}")
        for T in range(4):
            P.I(f"buffer_load_dwordx2 {V(vRES + 2 * T, 2)}, v{a}, {srd(S_X0)}, s{sT0} offen offset:{T * 32}")
        P.I(f"v_mov_b32 v248, 0")
        if self.prefetch:
            for base, ptr in ((24, 72), (28, 74)):
                P.I(f"s_mov_b32 s{base}, s{ptr}")
                P.I(f"s_and_b32 s{base + 1}, s{ptr + 1}, 0xffff")
                P.I(f"s_mov_b32 s{base + 2}, {512 * 1376 * 2}")
                P.I(f"s_mov_b32 s{base + 3}, 0x20000")
            P.I(f"s_lshl_b32 s{sT0}, s2, 2")
            P.I(f"s_add_u32 s{sT0}, s{sT0}, s{sW}")
            n = 0
            for sr, chunk in ((S_WQKV, 1536), (24, 1376), (28, 1376), (S_WD, 1376), (S_WO, 512)):
                P.I(f"s_mul_i32 s{sT1}, s{sT0}, {chunk}")
                for o in range(0, chunk, 1024):
                    P.raw(f"    buffer_load_dwordx4 v[200:203], v{vL16}, {srd(sr)}, s{sT1} offen offset:{o}")
                    P.vmq.append({'regs': set(), 'tag': None, 'definite': True})
        if self.earlytouch:
            for wv in (1, 2, 3):
                lsk = self.newlab("et")
                P.I(f"s_cmp_lg_u32 s{sW}, {wv}")
                P.I(f"s_cbranch_scc1 {lsk}")
                P.optional += 1
                if wv == 3:
                    P.I(f"s_mov_b32 s{sL2M}, 0x200000")
                    P.I(f"s_mov_b32 s{sLH}, 0x600000")
                    P.I(f"s_mov_b32 s{sLST}, 0x20000")
                if wv in (1, 3):
                    self.touch16(P, 210, 211, OBUF)
                    self.touch32(P, 212, 213)
                    self.touch_stats(P, 214, 215, STMID)
                if wv in (2, 3):
                    self.touch_h(P, 216, 217, 218)
                if wv == 2:
                    self.touch16(P, 222, 223, XIN + 0x200000)
                    self.touch_stats(P, 224, 225, STIN + 0x20000)
                if wv == 3:
                    P.I(f"s_mov_b32 s{sL2M}, 0")
                    P.I(f"s_mov_b32 s{sLH}, 0")
                    P.I(f"s_mov_b32 s{sLST}, 0")
                P.optional -= 1
                P.label(lsk)
                P.fence_hazards(2)
        d = 23
        P.I(f"v_and_b32 v{a}, 15, v{vLANE}")
        P.I(f"v_lshrrev_b32 v{b}, 4, v{vLANE}")
        P.I(f"v_lshlrev_b32 v{b}, 2, v{b}")
        for r in range(4):
            P.I(f"v_add_u32 v{c_}, {r}, v{b}")
            P.I(f"v_cmp_ge_u32 {sp(sMCUR + 2 * r)}, v{a}, v{c_}")
        P.I(f"v_and_b32 v{d}, 1, v{a}")
        P.I(f"v_add_u32 v{c_}, v{b}, v{d}")
        P.I(f"v_cmp_ge_u32 {sp(sM01)}, v{a}, v{c_}")
        P.I(f"v_add_u32 v{c_}, 2, v{c_}")
        P.I(f"v_cmp_ge_u32 {sp(sM23)}, v{a}, v{c_}")
        P.I(f"v_cmp_eq_u32 {sp(sMI0)}, 0, v{a}")
        P.I(f"s_mov_b64 {sp(sMLO16)}, 0xffff")
        P.I(f"s_mov_b32 s{sK3}, {hex(f2u(GC0 * 0.044715))}")
        P.I(f"s_mov_b32 s{sK3+1}, {hex(f2u(GC0 * 0.044715))}")
        P.I(f"s_mov_b32 s{sONEF}, 1.0")
        P.I(f"s_mov_b32 s{sONEF+1}, 1.0")

    def fs_lanes(self):
        L = self.L
        L.I(f"s_lshl_b32 s{sT1}, s{sC}, 4")
        L.I(f"s_add_u32 s{sT1}, s{sT1}, 344")
        L.I(f"v_add_u32 v45, s{sT1}, v{vLANE}")
        L.I(f"s_lshl_b32 s{sT1}, s{sP0}, 3")
        L.I(f"s_sub_u32 s{sT1}, s{sT1}, 16")
        L.I(f"v_min_u32 v47, 39, v{vLANE}")
        L.I(f"v_add_u32 v47, s{sT1}, v47")
        L.I(f"v_cmp_lt_u32 vcc, 15, v{vLANE}")
        L.I(f"v_cndmask_b32 v45, v45, v47, vcc")
        L.I(f"v_lshlrev_b32 v45, 2, v45")
        L.I(f"s_mul_i32 s{sT1}, s{sC}, 43")
        L.I(f"s_add_u32 s{sT1}, s{sT1}, {344 + 128}")
        L.I(f"v_min_u32 v115, 42, v{vLANE}")
        L.I(f"v_add_u32 v115, s{sT1}, v115")
        L.I(f"v_lshlrev_b32 v115, 2, v115")

    def w4_ready(self, part):
        L = self.L
        lsk = self.newlab("w4ok")
        L.I(f"s_cmp_lg_u32 s{sLAYER}, 0")
        L.I(f"s_cbranch_scc1 {lsk}")
        L.optional += 1
        if part == 'issue':
            L.I(f"s_mov_b32 s{sT1}, {FLAGS3}")
            L.raw(f"    buffer_load_dword v46, v115, {srd(S_WS)}, s{sT1} offen sc1")
        else:
            lp = self.newlab("w4p")
            L.raw("    s_waitcnt vmcnt(6)")
            L.I(f"s_mov_b32 s{sCNT}, 0")
            L.label(lp)
            L.I(f"v_cmp_ne_u32 vcc, s{sNONCE}, v46")
            L.I(f"s_cmp_eq_u64 vcc, 0")
            L.I(f"s_cbranch_scc1 {lsk}")
            L.I(f"s_add_u32 s{sCNT}, s{sCNT}, 1")
            L.I(f"s_cmp_ge_u32 s{sCNT}, 200000")
            L.I(f"s_cbranch_scc1 {lsk}")
            L.I(f"s_mov_b32 s{sT1}, {FLAGS3}")
            L.raw(f"    buffer_load_dword v46, v115, {srd(S_WS)}, s{sT1} offen sc1")
            L.raw("    s_waitcnt vmcnt(0)")
            L.I(f"s_branch {lp}")
        L.optional -= 1
        L.label(lsk)
        L.fence_hazards(2)

    def l2_pull(self, base_s, part_s_expr, nlines_per_wg, srd_b=None):
        L = self.L
        per = nlines_per_wg // 4
        part_s_expr(L, sT1)
        L.I(f"s_lshl_b32 s{sT1}, s{sT1}, 2")
        L.I(f"s_add_u32 s{sT1}, s{sT1}, s{sW}")
        L.I(f"s_mul_i32 s{sT1}, s{sT1}, {per * 128}")
        L.I(f"s_add_u32 s{sT1}, s{sT1}, s{base_s}")
        L.I(f"v_lshlrev_b32 v116, 7, v{vLANE}")
        n = 0
        while n < per:
            k = min(64, per - n)
            if k < 64:
                L.I(f"v_min_u32 v117, {k - 1}, v{vLANE}")
                L.I(f"v_lshlrev_b32 v117, 7, v117")
                va = 117
            else:
                va = 116
            if n:
                L.I(f"s_add_u32 s{sT1}, s{sT1}, 8192")
            L.raw(f"    buffer_load_dword v{vDUM}, v{va}, {srd(S_WS)}, s{sT1} offen")
            L.vmq.append({'regs': set(), 'tag': None, 'definite': L.optional == 0})
            n += k

    def x0_to_lds(self):
        L = self.L
        L.I(f"v_cmp_gt_u32 vcc, 16, v{vLANE}")
        for j in range(20):
            if j == 0:
                for r in range(4):
                    L.I(f"v_cndmask_b32 v{vX0 + r}, v{vX0 + r}, v{vLONE + 2}, vcc")
            off = (j >> 2) * 1024 + (j & 3) * 64
            L.I(f"ds_write_b64 v{vXW}, {V(vX0 + 4 * j, 2)} offset:{off}")
            L.I(f"ds_write_b64 v{vXW}, {V(vX0 + 4 * j + 2, 2)} offset:{off + 256}")
        L.raw("    s_waitcnt lgkmcnt(0)")

    def w1_touch(self):
        L = self.L
        b, c_ = 21, 22
        L.I(f"s_and_b32 s{sT0}, s{sRB}, 3")
        L.I(f"s_lshl_b32 s{sT0}, s{sT0}, 2")
        L.I(f"s_add_u32 s{sT0}, s{sT0}, s{sW}")
        L.I(f"s_mul_i32 s{sT0}, s{sT0}, 96")
        L.I(f"s_lshl_b32 s{sT1}, s{sC}, 7")
        b, c_ = 116, 117
        for e in range(2):
            L.I(f"v_and_b32 v{b}, {63 if e == 0 else 31}, v{vLANE}")
            L.I(f"v_add_u32 v{b}, s{sT0}, v{b}")
            if e: L.I(f"v_add_u32 v{b}, 64, v{b}")
            L.I(f"v_mul_u32_u24 v{c_}, 21846, v{b}")
            L.I(f"v_lshrrev_b32 v{c_}, 16, v{c_}")
            L.I(f"v_mul_u32_u24 v118, 3, v{c_}")
            L.I(f"v_sub_u32 v{b}, v{b}, v118")
            L.I(f"v_lshlrev_b32 v{b}, 10, v{b}")
            L.I(f"v_mul_u32_u24 v{c_}, 3072, v{c_}")
            L.I(f"v_add_u32 v{b}, v{b}, v{c_}")
            L.raw(f"    buffer_load_dword v{vDUM}, v{b}, {srd(S_WQKV)}, s{sT1} offen")
            L.vmq.append({'regs': set(), 'tag': None, 'definite': L.optional == 0})

    def shuffle(self, part):
        L = self.L
        STG = 28 * PAGE
        SRC = S_W3
        a, b, c_ = 24, 25, 26
        F0 = 84
        ACC, ONE = 64, 80
        if part == 'issue':
            lA = self.newlab("shA"); lB = self.newlab("shB"); lE = self.newlab("shE")
            L.I(f"s_lshl_b32 s{sW2B}, s{sC}, 16")
            L.I(f"s_add_u32 s{sW2B}, s{sW2B}, {W2S}")
            L.I(f"s_lshl_b32 s{sW3B}, s{sP0}, 16")
            L.I(f"s_add_u32 s{sW3B}, s{sW3B}, {W3S}")
            L.I(f"s_mul_i32 s{sW4B}, s{sC}, {43 * 4096}")
            L.I(f"s_add_u32 s{sW4B}, s{sW4B}, {W4S}")
            L.optional += 1
            L.I(f"s_cmp_lt_u32 s2, 86")
            L.I(f"s_cbranch_scc1 {lA}")
            L.I(f"s_cmp_lt_u32 s2, 204")
            L.I(f"s_cbranch_scc1 {lB}")
            L.I(f"s_branch {lE}")
            L.label(lA)
            L.I(f"s_and_b32 s{sT0}, s2, 1")
            L.I(f"s_cmp_eq_u32 s{sT0}, 0")
            L.I(f"s_cselect_b32 s{SRC}, s72, s74")
            L.I(f"s_cselect_b32 s{sT1}, s73, s75")
            L.I(f"s_and_b32 s{SRC + 1}, s{sT1}, 0xffff")
            L.I(f"s_mov_b32 s{SRC + 2}, {512 * 1376 * 2}")
            L.I(f"s_mov_b32 s{SRC + 3}, 0x20000")
            L.I(f"v_lshrrev_b32 v{a}, 2, v{vLANE}")
            L.I(f"v_mul_u32_u24 v{a}, 2752, v{a}")
            L.I(f"v_and_b32 v{b}, 3, v{vLANE}")
            L.I(f"v_lshl_add_u32 v{a}, v{b}, 4, v{a}")
            L.I(f"s_lshr_b32 s{sSH1}, s2, 1")
            L.I(f"s_lshl_b32 s{sT1}, s{sSH1}, 6")
            L.I(f"s_mul_i32 s{sT2}, s{sW}, {32 * 2752}")
            L.I(f"s_add_u32 s{sT1}, s{sT1}, s{sT2}")
            L.I(f"s_lshl_b32 s{sT2}, s{sW}, 11")
            for i in range(4):
                for half in range(2):
                    L.I(f"s_add_u32 m0, s{sT2}, {STG + i * 8192 + half * 1024}")
                    L.I(f"s_add_u32 s{sBG}, s{sT1}, {(i * 128 + half * 16) * 2752}")
                    L.I(f"buffer_load_dwordx4 v{a}, {srd(SRC)}, s{sBG} offen lds")
            L.I(f"v_lshrrev_b32 v{b}, 5, v{vLANE}")
            L.I(f"v_bfe_u32 v{c_}, v{vLANE}, 2, 2")
            L.I(f"v_lshl_add_u32 v{b}, v{b}, 2, v{c_}")
            L.I(f"v_lshlrev_b32 v{b}, 6, v{b}")
            L.I(f"v_bfe_u32 v{c_}, v{vLANE}, 4, 1")
            L.I(f"v_lshl_add_u32 v{b}, v{c_}, 5, v{b}")
            L.I(f"v_and_b32 v{c_}, 3, v{vLANE}")
            L.I(f"v_lshl_add_u32 v{b}, v{c_}, 3, v{b}")
            L.I(f"s_add_u32 s{sT2}, s{sT2}, {STG}")
            L.I(f"v_add_u32 v{b}, s{sT2}, v{b}")
            L.I(f"s_lshl_b32 s{sT1}, s{sSH1}, 16")
            L.I(f"s_and_b32 s{sT0}, s2, 1")
            L.I(f"s_lshl_b32 s{sT0}, s{sT0}, 10")
            L.I(f"s_add_u32 s{sT1}, s{sT1}, s{sT0}")
            L.I(f"s_lshl_b32 s{sT0}, s{sW}, 12")
            L.I(f"s_add_u32 s{sT1}, s{sT1}, s{sT0}")
            L.I(f"s_add_u32 s{sSH1}, s{sT1}, {W3S}")
            L.I(f"s_branch {lE}")
            L.label(lB)
            L.I(f"s_sub_u32 s{sT0}, s2, 86")
            L.I(f"s_lshl_b32 s{sT0}, s{sT0}, 2")
            L.I(f"s_add_u32 s{sT0}, s{sT0}, s{sW}")
            L.I(f"s_sub_u32 s{sT1}, s{sT0}, 128")
            L.I(f"s_mul_i32 s{sT2}, s{sT1}, 1525")
            L.I(f"s_lshr_b32 s{sT2}, s{sT2}, 16")
            L.I(f"s_mul_i32 s{sT3}, s{sT2}, 43")
            L.I(f"s_sub_u32 s{sT3}, s{sT1}, s{sT3}")
            L.I(f"s_lshr_b32 s{sT4}, s{sT0}, 4")
            L.I(f"s_and_b32 s{sT5}, s{sT0}, 15")
            L.I(f"s_lshl_b32 s{sSH1}, s{sT0}, 12")
            L.I(f"s_add_u32 s{sSH1}, s{sSH1}, {W2S}")
            L.I(f"s_lshl_b32 s{sSH2}, s{sT1}, 12")
            L.I(f"s_add_u32 s{sSH2}, s{sSH2}, {W4S}")
            L.I(f"s_cmp_lt_u32 s{sT0}, 128")
            L.I(f"s_cselect_b32 s{sT2}, s{sT4}, s{sT2}")
            L.I(f"s_cselect_b32 s{sT3}, s{sT5}, s{sT3}")
            L.I(f"s_cselect_b32 s{sSH1}, s{sSH1}, s{sSH2}")
            L.I(f"s_cselect_b32 s{SRC}, s{S_WO}, s{S_WD}")
            L.I(f"s_cselect_b32 s{SRC + 1}, s{S_WO + 1}, s{S_WD + 1}")
            L.I(f"s_cselect_b32 s{SRC + 2}, s{S_WO + 2}, s{S_WD + 2}")
            L.I(f"s_cselect_b32 s{sSH3}, 10, 11")
            L.I(f"s_cselect_b32 s{sSH4}, 2, 1")
            L.I(f"s_lshl_b32 s{sSH4}, s{sSH4}, 10")
            L.I(f"s_mov_b32 s{SRC + 3}, 0x20000")
            L.I(f"s_lshl_b32 s{sT3}, s{sT3}, 15")
            L.I(f"s_lshl_b32 s{sT2}, s{sT2}, 7")
            L.I(f"s_add_u32 s{sT3}, s{sT3}, s{sT2}")
            L.I(f"v_lshrrev_b32 v{a}, 3, v{vLANE}")
            L.I(f"v_and_b32 v{b}, 6, v{a}")
            L.I(f"v_and_b32 v{c_}, 7, v{vLANE}")
            L.I(f"v_xor_b32 v{c_}, v{c_}, v{b}")
            L.I(f"v_lshlrev_b32 v{c_}, 4, v{c_}")
            L.I(f"v_lshl_add_u32 v{a}, v{a}, 10, v{c_}")
            L.I(f"s_lshl_b32 s{sT2}, s{sW}, 12")
            for j in range(4):
                L.I(f"s_add_u32 m0, s{sT2}, {STG + j * 1024}")
                L.I(f"s_add_u32 s{sBG}, s{sT3}, {j * 8192}")
                L.I(f"buffer_load_dwordx4 v{a}, {srd(SRC)}, s{sBG} offen lds")
            g_, r_, lb, q_ = 56, 57, 58, 59
            L.I(f"v_lshrrev_b32 v{g_}, 4, v{vLANE}")
            L.I(f"v_bfe_u32 v{r_}, v{vLANE}, 2, 2")
            L.I(f"v_and_b32 v{c_}, 1, v{g_}")
            L.I(f"v_lshl_add_u32 v{c_}, v{c_}, 2, v{r_}")
            L.I(f"v_and_b32 v{lb}, 6, v{c_}")
            L.I(f"v_lshlrev_b32 v{c_}, 7, v{c_}")
            L.I(f"v_lshrrev_b32 v{g_}, 1, v{g_}")
            L.I(f"v_lshlrev_b32 v{g_}, s{sSH3}, v{g_}")
            L.I(f"v_add_u32 v{c_}, v{c_}, v{g_}")
            L.I(f"v_and_b32 v{r_}, 1, v{vLANE}")
            L.I(f"v_lshl_add_u32 v{c_}, v{r_}, 3, v{c_}")
            L.I(f"s_add_u32 s{sT2}, s{sT2}, {STG}")
            L.I(f"v_add_u32 v{c_}, s{sT2}, v{c_}")
            L.I(f"v_bfe_u32 v{r_}, v{vLANE}, 1, 1")
            for T in range(4):
                L.I(f"v_xor_b32 v{q_}, {2 * T}, v{lb}")
                L.I(f"v_or_b32 v{q_}, v{q_}, v{r_}")
                L.I(f"v_lshl_add_u32 v{60 + 2 * T}, v{q_}, 4, v{c_}")
                L.I(f"v_add_u32 v{61 + 2 * T}, s{sSH4}, v{60 + 2 * T}")
            L.label(lE)
            L.optional -= 1
            L.fence_hazards(2)
            return
        lA = self.newlab("spA"); lB = self.newlab("spB"); lE = self.newlab("spE")
        L.optional += 1
        L.I(f"s_cmp_lt_u32 s2, 86")
        L.I(f"s_cbranch_scc1 {lA}")
        L.I(f"s_cmp_lt_u32 s2, 204")
        L.I(f"s_cbranch_scc1 {lB}")
        L.I(f"s_branch {lE}")
        L.label(lA)
        for r in range(16):
            L.I(f"v_mov_b32 v{ACC + r}, 0")
        for r in range(4):
            L.I(f"v_mov_b32 v{ONE + r}, 0x3f803f80")
        for i in range(4):
            for u in range(2):
                fr = F0 + 4 * (2 * i + u)
                for half in range(2):
                    L.I(f"ds_read_b64_tr_b16 {V(fr + 2 * half, 2)}, v{b} offset:{i * 8192 + u * 512 + half * 1024}")
        for i in range(4):
            for u in range(2):
                fr = F0 + 4 * (2 * i + u)
                L.I(f"v_mfma_f32_32x32x16_bf16 {V(ACC, 16)}, {V(fr, 4)}, {V(ONE, 4)}, {V(ACC, 16)}")
                L.I(f"s_add_u32 s{sBG}, s{sSH1}, {i * 16384 + u * 2048}")
                L.I(f"buffer_store_dwordx4 {V(fr, 4)}, v{vL16}, {srd(S_WS)}, s{sBG} offen sc1")
        L.I(f"s_lshl_b32 s{sT1}, s2, 2")
        L.I(f"s_add_u32 s{sT1}, s{sT1}, s{sW}")
        L.I(f"s_lshl_b32 s{sT1}, s{sT1}, 7")
        L.I(f"s_add_u32 s{sT1}, s{sT1}, {CSBUF}")
        L.I(f"v_lshrrev_b32 v{a}, 5, v{vLANE}")
        L.I(f"v_lshlrev_b32 v{a}, 6, v{a}")
        L.I(f"s_mov_b32 s{sSH2}, 1")
        L.I(f"s_mov_b32 s{sSH3}, 1")
        L.I(f"s_mov_b64 exec, {sp(sSH2)}")
        for j in range(4):
            L.I(f"buffer_store_dwordx4 {V(ACC + 4 * j, 4)}, v{a}, {srd(S_WS)}, s{sT1} offen offset:{16 * j} sc1")
        L.I(f"s_mov_b64 exec, -1")
        L.I(f"s_branch {lE}")
        L.label(lB)
        for T in range(4):
            L.I(f"ds_read_b64_tr_b16 {V(F0 + 4 * T, 2)}, v{60 + 2 * T}")
            L.I(f"ds_read_b64_tr_b16 {V(F0 + 4 * T + 2, 2)}, v{61 + 2 * T}")
        for T in range(4):
            L.I(f"buffer_store_dwordx4 {V(F0 + 4 * T, 4)}, v{vL16}, {srd(S_WS)}, s{sSH1} offen offset:{T * 1024} sc1")
        L.label(lE)
        L.raw("    s_waitcnt lgkmcnt(0)")
        L.optional -= 1
        L.fence_hazards(4)

    def emit_x(self, layout32, xbase_s, stbase_s, halo_l=None, stats_only=False):
        P = self.P
        a, b, t, a2 = 240, 241, 242, 239
        s1, s1b, s2, s2b = 244, 245, 246, 247
        if not layout32:
            P.I(f"s_lshl_b32 s{sT1}, s{sRT}, 14")
            P.I(f"s_lshl_b32 s{sT2}, s{sC}, 11")
            P.I(f"s_add_u32 s{sT1}, s{sT1}, s{sT2}")
            P.I(f"s_add_u32 s{sT1}, s{sT1}, s{xbase_s}")
            av = vL16; ustride = 1024
        else:
            P.I(f"v_lshrrev_b32 v{a2}, 4, v{vLANE}")
            P.I(f"v_lshlrev_b32 v{a2}, 9, v{a2}")
            P.I(f"v_and_b32 v{b}, 15, v{vLANE}")
            P.I(f"v_lshl_add_u32 v{a2}, v{b}, 4, v{a2}")
            P.I(f"s_lshr_b32 s{sT1}, s{sRT}, 1")
            P.I(f"s_lshl_b32 s{sT1}, s{sT1}, 15")
            P.I(f"s_lshl_b32 s{sT2}, s{sC}, 12")
            P.I(f"s_add_u32 s{sT1}, s{sT1}, s{sT2}")
            P.I(f"s_and_b32 s{sT2}, s{sRT}, 1")
            P.I(f"s_lshl_b32 s{sT2}, s{sT2}, 8")
            P.I(f"s_add_u32 s{sT1}, s{sT1}, s{sT2}")
            P.I(f"s_add_u32 s{sT1}, s{sT1}, s{xbase_s}")
            av = a2; ustride = 2048
        if not stats_only:
            self.stores([f"buffer_store_dwordx4 {V(vRES + 4 * u, 4)}, v{av}, {srd(S_WS)}, s{sT1} offen" + (f" offset:{u * ustride}" if u else "") for u in range(2)])
        for x in (s1, s1b, s2, s2b):
            P.I(f"v_mov_b32 v{x}, 0")
        for j in range(8):
            P.I(f"v_dot2c_f32_bf16 v{s1 if j % 2 == 0 else s1b}, s{sONES}, v{vRES + j}")
            P.I(f"v_dot2c_f32_bf16 v{s2 if j % 2 == 0 else s2b}, v{vRES + j}, v{vRES + j}")
        P.I(f"v_lshlrev_b32 v{a}, 6, v{vLANE}")
        P.I(f"s_lshl_b32 s{sT1}, s{sRT}, 10")
        P.I(f"s_lshl_b32 s{sT2}, s{sC}, 3")
        P.I(f"v_add_f32 v{s1}, v{s1}, v{s1b}")
        P.I(f"v_add_f32 v{s1b}, v{s2}, v{s2b}")
        P.I(f"s_add_u32 s{sT1}, s{sT1}, s{sT2}")
        P.I(f"s_add_u32 s{sT1}, s{sT1}, s{stbase_s}")
        for step in ("16", "32"):
            P.I(f"v_mov_b32 v{t}, v{s1}")
            P.I(f"v_mov_b32 v{t + 1}, v{s1b}")
            P.I(f"s_nop 0")
            P.I(f"v_permlane{step}_swap_b32 v{s1}, v{t}")
            P.I(f"v_permlane{step}_swap_b32 v{s1b}, v{t + 1}")
            P.I(f"v_add_f32 v{s1}, v{s1}, v{t}")
            P.I(f"v_add_f32 v{s1b}, v{s1b}, v{t + 1}")
        P.I(f"s_mov_b64 exec, {sp(sMLO16)}")
        self.stores([f"buffer_store_dwordx2 {V(s1, 2)}, v{a}, {srd(S_WS)}, s{sT1} offen"])
        P.I(f"s_mov_b64 exec, -1")
        if halo_l is not None:
            lh = self.newlab("nohc")
            P.I(f"s_cmp_eq_u32 s{sHALO}, 0")
            P.I(f"s_cbranch_scc1 {lh}")
            P.optional += 1
            P.I(f"s_lshr_b32 s{sT1}, s{sRB}, 2")
            P.I(f"s_lshl_b32 s{sT2}, s{sT1}, 14")
            P.I(f"s_lshl_b32 s{sT3}, s{sC}, 11")
            P.I(f"s_add_u32 s{sT2}, s{sT2}, s{sT3}")
            P.I(f"s_add_u32 s{sT2}, s{sT2}, {XHALO + halo_l * 0x20000}")
            for u in range(2):
                if stats_only: break
                off = f" offset:{u * 1024}" if u else ""
                P.I(f"buffer_store_dwordx4 {V(vRES + 4 * u, 4)}, v{vL16}, {srd(S_WS)}, s{sT2} offen{off} sc1")
            P.I(f"s_lshl_b32 s{sT2}, s{sT1}, 10")
            P.I(f"s_lshl_b32 s{sT3}, s{sC}, 3")
            P.I(f"s_add_u32 s{sT2}, s{sT2}, s{sT3}")
            P.I(f"s_add_u32 s{sT2}, s{sT2}, {STHALO + halo_l * 0x2000}")
            P.I(f"s_mov_b64 exec, {sp(sMLO16)}")
            P.I(f"buffer_store_dwordx2 {V(s1, 2)}, v{a}, {srd(S_WS)}, s{sT2} offen sc1")
            P.I(f"s_mov_b64 exec, -1")
            P.optional -= 1
            P.label(lh)
            P.fence_hazards(2)

    def phase1(self, part):
        P = self.P; L = self.L
        vB1, vB1h, vX, vXh = 16, 17, 18, 19
        vST = 20
        accQ, accK, accV = 40, 60, 80
        XF = [100, 120]
        WF = [140, 152]
        vONES = 164
        a = 166
        c_, d, e_ = 168, 169, 170
        SI = 172
        CI = 182
        MJ, RJ = 190, 210
        PM, PMf = 230, 234
        if part == 'pre':
            P.I(f"v_lshrrev_b32 v{c_}, 4, v{vLANE}")
            P.I(f"v_bfe_u32 v{d}, v{vLANE}, 2, 2")
            P.I(f"v_and_b32 v{e_}, 1, v{c_}")
            P.I(f"v_lshl_add_u32 v{e_}, v{e_}, 2, v{d}")
            P.I(f"v_and_b32 v{d}, 6, v{e_}")
            P.I(f"s_lshl_b32 s{sT1}, s{sW}, 1")
            P.I(f"v_xor_b32 v{d}, s{sT1}, v{d}")
            P.I(f"v_bfe_u32 v{vB1}, v{vLANE}, 1, 1")
            P.I(f"v_or_b32 v{d}, v{d}, v{vB1}")
            P.I(f"v_lshlrev_b32 v{d}, 4, v{d}")
            P.I(f"v_lshl_add_u32 v{d}, v{e_}, 7, v{d}")
            P.I(f"v_lshrrev_b32 v{c_}, 1, v{c_}")
            P.I(f"v_mul_u32_u24 v{c_}, 3072, v{c_}")
            P.I(f"v_add_u32 v{d}, v{d}, v{c_}")
            P.I(f"v_and_b32 v{c_}, 1, v{vLANE}")
            P.I(f"v_lshl_add_u32 v{vB1}, v{c_}, 3, v{d}")
            P.I(f"v_add_u32 v{vB1h}, 0x10000, v{vB1}")
            P.I(f"v_add_u32 v{vX}, {XB}, v{vL16}")
            P.I(f"v_add_u32 v{vXh}, {XB + 0x10000}, v{vL16}")
            P.I(f"v_mov_b32 v{vONES}, 0x3f803f80")
            for r in range(60):
                P.I(f"v_mov_b32 v{accQ + r}, 0")
            P.I(f"v_and_b32 v{a}, 15, v{vLANE}")
            P.I(f"v_lshlrev_b32 v{a}, 6, v{a}")
            P.I(f"v_lshrrev_b32 v{c_}, 4, v{vLANE}")
            P.I(f"v_lshl_add_u32 v{a}, v{c_}, 4, v{a}")
            P.I(f"v_and_b32 v{c_}, 1, v{vLANE}")
            P.I(f"v_cmp_eq_u32 vcc, 0, v{c_}")
            P.I(f"v_mov_b32 v{d}, {NEG}")
            P.I(f"v_cndmask_b32 v{PM}, v{d}, 0, vcc")
            P.I(f"v_cndmask_b32 v{PM + 1}, 0, v{d}, vcc")
            P.I(f"v_mov_b32 v{PM + 2}, v{PM}")
            P.I(f"v_mov_b32 v{PM + 3}, v{PM + 1}")
            P.I(f"s_cmp_eq_u32 s{sRB}, 0")
            P.I(f"s_cselect_b32 s{sT1}, {NEG}, 0")
            for r in range(4):
                P.I(f"v_mov_b32 v{c_}, s{sT1}")
                P.I(f"v_cndmask_b32 v{c_}, v{c_}, 0, {sp(sMCUR + 2 * r)}")
                P.I(f"v_min_f32 v{PMf + r}, v{c_}, v{PM + r}")
            return
        if part == 'touch':
            lsk = self.newlab("ntch1")
            P.I(f"s_cmp_lg_u32 s{sW}, 1")
            P.I(f"s_cbranch_scc1 {lsk}")
            P.optional += 1
            self.touch16(P, 240, 241, OBUF)
            self.touch32(P, 242, 243)
            self.touch_stats(P, 244, 245, STMID)
            P.optional -= 1
            P.label(lsk)
            P.fence_hazards(2)
            return
        lST = 20; la, lc = 40, 41
        if part == 'lpre':
            L.I(f"s_lshl_b32 s{sXB0}, s{sXT0}, 14")
            L.I(f"s_add_u32 s{sXB0}, s{sXB0}, s{sL2M}")
            L.I(f"s_lshr_b32 s{sT1}, s{sRB}, 2")
            L.I(f"s_lshl_b32 s{sT1}, s{sT1}, 14")
            L.I(f"s_lshr_b32 s{sT2}, s{sL2M}, 4")
            L.I(f"s_add_u32 s{sT1}, s{sT1}, s{sT2}")
            L.I(f"s_add_u32 s{sT1}, s{sT1}, {XHALO - XIN - 0x4000}")
            L.I(f"s_and_b32 s{sT2}, s{sRB}, 3")
            L.I(f"s_cmp_eq_u32 s{sT2}, 0")
            L.I(f"s_cselect_b32 s{sT1}, s{sT1}, s{sXB0}")
            L.I(f"s_cmp_eq_u32 s{sRB}, 0")
            L.I(f"s_cselect_b32 s{sXB0}, s{sXB0}, s{sT1}")
            L.I(f"s_lshl_b32 s{sXB1}, s{sRB}, 16")
            L.I(f"s_add_u32 s{sXB1}, s{sXB1}, s{sL2M}")
            L.I(f"s_lshl_b32 s{sT1}, s{sXT0}, 10")
            L.I(f"s_add_u32 s{sT1}, s{sT1}, s{sLST}")
            L.I(f"s_add_u32 s{sT1}, s{sT1}, {STIN}")
            L.I(f"s_lshr_b32 s{sT2}, s{sRB}, 2")
            L.I(f"s_lshl_b32 s{sT2}, s{sT2}, 10")
            L.I(f"s_lshr_b32 s{sT3}, s{sL2M}, 8")
            L.I(f"s_add_u32 s{sT2}, s{sT2}, s{sT3}")
            L.I(f"s_add_u32 s{sT2}, s{sT2}, {STHALO - 0x400}")
            L.I(f"s_and_b32 s{sT3}, s{sRB}, 3")
            L.I(f"s_cmp_eq_u32 s{sT3}, 0")
            L.I(f"s_cselect_b32 s{sT2}, s{sT2}, s{sT1}")
            L.I(f"s_cmp_eq_u32 s{sRB}, 0")
            L.I(f"s_cselect_b32 s{sT1}, s{sT1}, s{sT2}")
            L.I(f"s_lshl_b32 s{sT2}, s{sRB}, 12")
            L.I(f"s_add_u32 s{sT2}, s{sT2}, s{sLST}")
            L.I(f"s_add_u32 s{sT2}, s{sT2}, {STIN}")
            L.I(f"s_cmp_eq_u32 s{sW}, 0")
            L.I(f"s_cselect_b32 s{sSTS}, s{sT2}, s{sT1}")
            L.I(f"s_cselect_b32 s{sT3}, 63, 15")
            L.I(f"s_cselect_b32 s{sT4}, 64, 0")
            L.I(f"s_add_u32 s{sT4}, s{sT4}, {MISC}")
            L.I(f"v_and_b32 v{lc}, s{sT3}, v{vLANE}")
            L.I(f"v_lshlrev_b32 v{la}, 6, v{lc}")
            L.I(f"v_lshlrev_b32 v{lc}, 2, v{lc}")
            L.I(f"v_add_u32 v{lc}, s{sT4}, v{lc}")
            return
        def xdma(m):
            for t in range(5):
                L.I(f"s_add_u32 m0, s{sW5120}, {XB + m * 20480 + t * 1024}")
                if t == 0:
                    L.I(f"s_add_u32 s{sBG}, s{sXB0}, {XIN + m * 4096}")
                else:
                    L.I(f"s_add_u32 s{sBG}, s{sXB1}, {XIN + (t - 1) * 16384 + m * 4096}")
                L.I(f"buffer_load_dwordx4 v{vX1OFF}, {srd(S_WS)}, s{sBG} offen sc1 lds", tag=('X1', m))
        def raw_emit(fn):
            from asmlib import Prog
            keep = self.L
            tmp = Prog(); tmp.drop = keep.drop
            self.L = tmp
            fn(tmp)
            self.L = keep
            keep.fence_hazards(2)
            for line in tmp.out: keep.raw(line)
            keep.fence_hazards(2)
        def dummies(n, tagf):
            for k in range(n):
                L.raw(f"    buffer_load_dword v{vDUM}, v{vZERO}, {srd(S_NULL)}, 0 offen")
                L.vmq.append({'regs': set(), 'tag': tagf(k), 'definite': True})
        def stats_issue():
            lsk = self.newlab("nostat")
            L.I(f"s_cmp_gt_u32 s{sW}, 1")
            L.I(f"s_cbranch_scc1 {lsk}")
            L.optional += 1
            for j in range(4):
                L.I(f"buffer_load_dwordx4 {V(lST + 4 * j, 4)}, v{la}, {srd(S_WS)}, s{sSTS} offen offset:{16 * j} sc1")
            L.optional -= 1
            L.label(lsk)
            L.fence_hazards(2)
        l0 = self.newlab("x0path"); lj = self.newlab("x0join")
        L.I(f"s_cmp_eq_u32 s{sLAYER}, 0")
        L.I(f"s_cbranch_scc1 {l0}")
        xdma(0)
        stats_issue()
        for m in range(1, 4):
            xdma(m)
        L.raw(f"    s_branch {lj}")
        L.label(l0)
        for k in range(20):
            L.raw(f"    buffer_load_dword v{vDUM}, v{vZERO}, {srd(S_NULL)}, 0 offen")
        L.label(lj)
        L.fence_hazards(2)
        L.I(f"v_mov_b32 v42, {MISC + 4096}")
        L.I(f"ds_read_b32 v43, v42 offset:4")
        L.I(f"v_readfirstlane_b32 s{sNONCE}, v43")
        def late35():
            l0 = self.newlab("l35"); lj = self.newlab("l35j")
            L.I(f"s_cmp_eq_u32 s{sLAYER}, 0")
            L.I(f"s_cbranch_scc1 {l0}")
            dummies(9, lambda k: ('W1', 3 + k // 3))
            L.raw(f"    s_branch {lj}")
            L.label(l0)
            raw_emit(lambda T: [self.ld_w1(k) for k in (3, 4, 5)])
            L.label(lj)
            L.fence_hazards(2)
        def first_layer(fn, cond_w=None):
            lsk = self.newlab("fl")
            L.I(f"s_cmp_lg_u32 s{sLAYER}, 0")
            L.I(f"s_cbranch_scc1 {lsk}")
            if cond_w is not None:
                L.I(f"{cond_w[0]} s{sW}, {cond_w[1]}")
                L.I(f"s_cbranch_scc1 {lsk}")
            L.optional += 1
            fn()
            L.optional -= 1
            L.label(lsk)
            L.fence_hazards(2)
        def flag_store(off_s, val_s, add):
            L.I(f"s_add_u32 s{sT1}, s{off_s}, {add}")
            L.I(f"v_mov_b32 v44, s{val_s}")
            L.I(f"s_mov_b64 exec, 1")
            L.I(f"buffer_store_dword v44, v{vZERO}, {srd(S_WS)}, s{sT1} offen sc1")
            L.I(f"s_mov_b64 exec, -1")
        def fs_flag():
            def f():
                L.raw("    s_waitcnt vmcnt(6)")
                L.I(f"s_lshl_b32 s{sT2}, s2, 2")
                L.I(f"s_add_u32 s{sT2}, s{sT2}, s{sW}")
                L.I(f"s_lshl_b32 s{sT2}, s{sT2}, 2")
                flag_store(sT2, sNONCE, FLAGS3)
            first_layer(f)
        def f0_flag():
            def f():
                L.I(f"s_lshl_b32 s{sT2}, s{sRB}, 3")
                L.I(f"s_add_u32 s{sT2}, s{sT2}, s{sC}")
                L.I(f"s_lshl_b32 s{sT2}, s{sT2}, 2")
                L.I(f"s_or_b32 s{sT3}, s{sNONCE}, s{sXCC}")
                flag_store(sT2, sT3, FLAGS)
                lh = self.newlab("nofh")
                L.I(f"s_and_b32 s{sT2}, s{sRB}, 3")
                L.I(f"s_cmp_lg_u32 s{sT2}, 3")
                L.I(f"s_cbranch_scc1 {lh}")
                L.I(f"s_lshr_b32 s{sT2}, s{sRB}, 2")
                L.I(f"s_lshl_b32 s{sT2}, s{sT2}, 3")
                L.I(f"s_add_u32 s{sT2}, s{sT2}, s{sC}")
                L.I(f"s_lshl_b32 s{sT2}, s{sT2}, 2")
                flag_store(sT2, sNONCE, FLAGS2)
                L.label(lh)
            first_layer(f, ("s_cmp_lg_u32", 2))
        def poll_loads(kind):
            if kind == 'fs':
                L.I(f"s_mov_b32 s{sT1}, {FLAGS3}")
                L.I(f"buffer_load_dword v46, v45, {srd(S_WS)}, s{sT1} offen sc1")
            else:
                L.I(f"s_mov_b32 s{sT1}, {FLAGS4}")
                L.I(f"buffer_load_dword v51, v50, {srd(S_WS)}, s{sT1} offen sc1")
                L.I(f"buffer_load_dword v55, v54, {srd(S_WS)}, s{sT1} offen sc1")
        def polls_issue(kind):
            def f():
                if kind == 'f0':
                    L.I(f"s_lshl_b32 s{sT1}, s{sRB}, 5")
                    L.I(f"v_and_b32 v50, 31, v{vLANE}")
                    L.I(f"v_add_u32 v50, s{sT1}, v50")
                    L.I(f"s_sub_u32 s{sT2}, s{sT1}, 32")
                    L.I(f"s_cmp_eq_u32 s{sRB}, 0")
                    L.I(f"s_cselect_b32 s{sT2}, s{sT1}, s{sT2}")
                    L.I(f"v_and_b32 v52, 7, v{vLANE}")
                    L.I(f"v_lshlrev_b32 v52, 2, v52")
                    L.I(f"v_add_u32 v52, 3, v52")
                    L.I(f"v_add_u32 v52, s{sT2}, v52")
                    L.I(f"v_cmp_gt_u32 vcc, 32, v{vLANE}")
                    L.I(f"v_cndmask_b32 v50, v52, v50, vcc")
                    L.I(f"v_lshlrev_b32 v50, 2, v50")
                    L.I(f"s_lshr_b32 s{sT1}, s{sRB}, 2")
                    L.I(f"s_lshl_b32 s{sT1}, s{sT1}, 7")
                    L.I(f"v_and_b32 v54, 31, v{vLANE}")
                    L.I(f"v_lshlrev_b32 v54, 2, v54")
                    L.I(f"v_add_u32 v54, s{sT1}, v54")
                    L.I(f"v_lshlrev_b32 v54, 2, v54")
                else:
                    self.fs_lanes()
                poll_loads(kind)
            first_layer(f, ("s_cmp_gt_u32", 1) if kind == 'f0' else None)
        def polls_check(kind):
            rs = {'v46'} if kind == 'fs' else {'v51', 'v55'}
            def f():
                lc0 = self.newlab("pchk"); ld = self.newlab("pok")
                L.raw("    s_waitcnt vmcnt(6)")
                L.I(f"s_mov_b32 s{sCNT}, 0")
                L.label(lc0)
                L.vmq = [e for e in L.vmq if not (e['regs'] & rs)]
                if kind == 'fs':
                    L.I(f"v_cmp_ne_u32 vcc, s{sNONCE}, v46")
                    L.I(f"s_cmp_eq_u64 vcc, 0")
                else:
                    L.I(f"v_and_b32 v52, -16, v51")
                    L.I(f"v_xor_b32 v52, s{sNONCE}, v52")
                    L.I(f"v_and_b32 v53, -16, v55")
                    L.I(f"v_xor_b32 v53, s{sNONCE}, v53")
                    L.I(f"v_or_b32 v52, v52, v53")
                    L.I(f"v_cmp_ne_u32 vcc, 0, v52")
                    L.I(f"s_cmp_eq_u64 vcc, 0")
                L.I(f"s_cbranch_scc1 {ld}")
                L.I(f"s_add_u32 s{sCNT}, s{sCNT}, 1")
                L.I(f"s_cmp_ge_u32 s{sCNT}, 200000")
                L.I(f"s_cbranch_scc1 {ld}")
                poll_loads(kind)
                L.raw("    s_waitcnt vmcnt(0)")
                L.I(f"s_branch {lc0}")
                L.label(ld)
                L.vmq = [e for e in L.vmq if not (e['regs'] & rs)]
                l1 = self.newlab("nl0")
                if kind == 'f0':
                    stats_issue_inner()
                    L.I(f"s_cmp_lg_u32 s{sW}, 0")
                    L.I(f"s_cbranch_scc1 {l1}")
                    L.I(f"v_and_b32 v52, 15, v55")
                    L.I(f"v_cmp_ne_u32 vcc, s{sXCC}, v52")
                    L.I(f"s_cmp_eq_u32 vcc_lo, 0")
                    L.I(f"s_cselect_b32 s{sT2}, {0 if self.force_slow else 1}, 0")
                    L.I(f"v_mov_b32 v52, {MISC + 4096}")
                    L.I(f"v_mov_b32 v53, s{sT2}")
                    L.I(f"ds_write_b32 v52, v53")
                    L.raw("    s_waitcnt lgkmcnt(0)")
                else:
                    L.I(f"s_cmp_lg_u32 s{sW}, 0")
                    L.I(f"s_cbranch_scc1 {l1}")
                    L.I(f"v_lshrrev_b32 v52, 5, v{vLANE}")
                    L.I(f"v_lshlrev_b32 v52, 9, v52")
                    L.I(f"v_and_b32 v53, 31, v{vLANE}")
                    L.I(f"v_lshl_add_u32 v52, v53, 2, v52")
                    L.I(f"s_lshl_b32 s{sT1}, s{sP0}, 10")
                    L.I(f"s_add_u32 s{sT1}, s{sT1}, {CSBUF}")
                    for F in range(3):
                        for part in range(4):
                            L.I(f"buffer_load_dword v{56 + 4 * F + part}, v52, {srd(S_WS)}, s{sT1} offen offset:{F * 1024 + part * 128} sc1")
                L.label(l1)
            first_layer(f, ("s_cmp_gt_u32", 1) if kind == 'f0' else None)
        def stats_issue_inner():
            lsk = self.newlab("nostat0")
            L.I(f"s_cmp_gt_u32 s{sW}, 1")
            L.I(f"s_cbranch_scc1 {lsk}")
            for j in range(4):
                L.I(f"buffer_load_dwordx4 {V(lST + 4 * j, 4)}, v{la}, {srd(S_WS)}, s{sSTS} offen offset:{16 * j} sc1")
            L.label(lsk)
        def cs_finish():
            def f():
                L.I(f"v_lshlrev_b32 v53, 2, v{vLANE}")
                L.I(f"v_add_u32 v53, {MISC + 1024}, v53")
                for F in range(3):
                    q = 56 + 4 * F
                    L.I(f"v_add_f32 v{q}, v{q}, v{q + 1}")
                    L.I(f"v_add_f32 v{q + 2}, v{q + 2}, v{q + 3}")
                    L.I(f"v_add_f32 v{q}, v{q}, v{q + 2}")
                    L.I(f"ds_write_b32 v53, v{q} offset:{F * 256}")
                L.raw("    s_waitcnt lgkmcnt(0)")
            first_layer(f, ("s_cmp_lg_u32", 0))
        def stats_finish():
            lsk = self.newlab("nostat2")
            L.I(f"s_cmp_gt_u32 s{sW}, 1")
            L.I(f"s_cbranch_scc1 {lsk}")
            L.optional += 1
            for j in range(4):
                pass
            L.I(f"v_pk_add_f32 {V(lST, 2)}, {V(lST, 2)}, {V(lST + 2, 2)}")
            L.I(f"v_pk_add_f32 {V(lST + 4, 2)}, {V(lST + 4, 2)}, {V(lST + 6, 2)}")
            L.I(f"v_pk_add_f32 {V(lST + 8, 2)}, {V(lST + 8, 2)}, {V(lST + 10, 2)}")
            L.I(f"v_pk_add_f32 {V(lST + 12, 2)}, {V(lST + 12, 2)}, {V(lST + 14, 2)}")
            L.I(f"v_pk_add_f32 {V(lST, 2)}, {V(lST, 2)}, {V(lST + 4, 2)}")
            L.I(f"v_pk_add_f32 {V(lST + 8, 2)}, {V(lST + 8, 2)}, {V(lST + 12, 2)}")
            L.I(f"v_pk_add_f32 {V(lST, 2)}, {V(lST, 2)}, {V(lST + 8, 2)}")
            L.I(f"v_mul_f32 v{lST}, {hex(f2u(-1.0/512))}, v{lST}")
            L.I(f"v_mul_f32 v{lST + 1}, {hex(f2u(1.0/512))}, v{lST + 1}")
            L.I(f"v_fma_f32 v{lST + 1}, -v{lST}, v{lST}, v{lST + 1}")
            L.I(f"v_max_f32 v{lST + 1}, 0, v{lST + 1}")
            L.I(f"v_add_f32 v{lST + 1}, {hex(f2u(1e-5))}, v{lST + 1}")
            L.I(f"v_rsq_f32 v{lST + 1}, v{lST + 1}")
            L.I(f"ds_write_b32 v{lc}, v{lST}")
            L.I(f"ds_write_b32 v{lc}, v{lST + 1} offset:512")
            L.raw("    s_waitcnt lgkmcnt(0)")
            L.optional -= 1
            L.label(lsk)
            L.fence_hazards(2)

        def loads(ks):
            bf = ks & 1
            Ld = []
            def wread(mat):
                base = self.w1_page(ks) * PAGE + mat * 1024
                for half in range(2):
                    off = base + half * 6144
                    reg = vB1 if off < 65536 else vB1h
                    Ld.append(f"ds_read_b64_tr_b16 {V(WF[bf] + 4 * mat + 2 * half, 2)}, v{reg} offset:{off & 0xffff}")
            def xread(t):
                off = (ks * 5 + t) * 1024
                reg = vX if off < 65536 else vXh
                Ld.append(f"ds_read_b128 {V(XF[bf] + 4 * t, 4)}, v{reg} offset:{off & 0xffff}")
            wread(1); xread(1); wread(2); wread(0); xread(0); xread(2); xread(3); xread(4)
            return Ld
        def mfmas(ks):
            bf = ks & 1
            M = []
            for t in (1, 2, 3, 4, 0):
                x = V(XF[bf] + 4 * t, 4)
                M.append(f"v_mfma_f32_16x16x32_bf16 {V(accK + 4 * t, 4)}, {V(WF[bf] + 4, 4)}, {x}, {V(accK + 4 * t, 4)}")
                M.append(f"v_mfma_f32_16x16x32_bf16 {V(accV + 4 * t, 4)}, {x}, {V(WF[bf] + 8, 4)}, {V(accV + 4 * t, 4)}")
                M.append(f"v_mfma_f32_16x16x32_bf16 {V(accQ + 4 * t, 4)}, {V(WF[bf], 4)}, {x}, {V(accQ + 4 * t, 4)}")
            return M
        def xwait(m):
            L.wait_vm_tag(lambda t: t[0] == 'X1' and t[1] <= m)
            L.I(f"s_mov_b64 exec, {sp(sMI0)}")
            L.I(f"ds_write_b128 v{vLONE}, {V(vLONE + 2, 4)} offset:{m * 20480}")
            L.I(f"s_mov_b64 exec, -1")
            L.wait_lg_all()
        def stage_barrier(u):
            self.wait_units('W1', u + 2)
            if (u + 1) % 4 == 0:
                xwait((u + 1) >> 2)
            P.wait_lg_all()
            self.bar()
            if u <= 9:
                self.ld_w1(u + 5); self.ld_w1(u + 6)
            elif u == 11:
                for k in range(0, 6): self.ld_w2(k)
            elif u == 13:
                for k in range(6, 12): self.ld_w2(k)
            self.lts(3 + (u >> 1))
            if u == 1:
                fs_flag()
            if u == 3:
                first_layer(lambda: self.x0_to_lds(), ("s_cmp_lt_u32", 2))
            if u == 5:
                polls_issue('f0')
            if u == 7:
                polls_check('f0'); self.lts(12); polls_issue('fs')
            if u == 9:
                self.lts(14); polls_check('fs'); self.lts(15)
                if self.pull:
                    def part(S, d):
                        S.I(f"s_lshr_b32 s{d}, s{sRB}, 1")
                        S.I(f"s_and_b32 s{d}, s{d}, 1")
                    self.l2_pull(sW3B, part, 768)
            if u == 11:
                stats_finish()
            if u == 13:
                cs_finish()
            self.ts(3 + (u >> 1), fine=3)
        self.wait_units('W1', 1)
        xwait(0)
        self.bar()
        first_layer(lambda: (L.raw('    s_waitcnt vmcnt(20)'), self.shuffle('process'), self.w1_touch()))
        self.lts(13)
        for x in loads(0):
            P.I(x)
        for ks in range(16):
            M = mfmas(ks)
            bf = ks & 1
            if ks & 1 and ks < 15:
                stage_barrier(ks)
            nxt = loads(ks + 1) if ks + 1 < 16 else []
            for n, m in enumerate(M):
                if n == 0:
                    P.need(regs(WF[bf], 12) + regs(XF[bf] + 4, 4) + regs(XF[bf], 4))
                if n == 3:
                    P.need(regs(XF[bf] + 8, 12))
                P.I(m)
                if nxt:
                    P.I(nxt.pop(0))
                elif ks + 1 < 16 or True:
                    pass
                if n in (11,):
                    pass
                if 7 <= n <= 10:
                    pass
        P.I(f"v_and_b32 v{c_}, 15, v{vLANE}")
        P.I(f"v_lshl_add_u32 v{c_}, v{c_}, 2, 0")
        P.I(f"v_add_u32 v{c_}, {MISC}, v{c_}")
        P.I(f"v_lshrrev_b32 v{d}, 4, v{vLANE}")
        P.I(f"v_lshlrev_b32 v{d}, 4, v{d}")
        P.I(f"v_add_u32 v{d}, {MISC}, v{d}")
        for t in range(5):
            P.I(f"ds_read2_b32 {V(SI + 2 * t, 2)}, v{c_} offset0:{t * 16} offset1:{128 + t * 16}")
        for t in range(5):
            P.I(f"ds_read_b128 {V(MJ + 4 * t, 4)}, v{d} offset:{t * 64}")
            P.I(f"ds_read_b128 {V(RJ + 4 * t, 4)}, v{d} offset:{512 + t * 64}")
        P.wait_lg_all()
        self.bar()
        P.I(f"v_mov_b32 v252, {MISC + 4096}")
        P.I(f"ds_read_b64 v[250:251], v252")
        P.I(f"v_readfirstlane_b32 s{sFAST}, v250")
        P.I(f"v_readfirstlane_b32 s{sNONCE}, v251")
        for t in range(1, 5):
            P.I(f"v_mul_f32 v{CI + 2 * (t - 1)}, {hex(f2u(0.25 * 1.4426950408889634))}, v{SI + 2 * t + 1}")
        for k in range(12, 16):
            self.ld_w2(k)
        for u in range(4):
            self.ld_w3(u)
        self.ts(2)
        csQ, csK, csV = 100, 104, 108
        for r in range(4):
            P.I(f"v_mov_b32_dpp v{csQ + r}, v{accQ + r} row_newbcast:0 row_mask:0xf bank_mask:0xf")
            P.I(f"v_mov_b32_dpp v{csK + r}, v{accK + r} row_newbcast:0 row_mask:0xf bank_mask:0xf")
        P.I(f"v_mov_b32 v{csV}, v{accV}")
        P.I(f"v_mov_b32 v{csV + 1}, v{accV}")
        Qp, Kp, Vp = 20, 30, 110
        BL = "op_sel:[0,0,0] op_sel_hi:[1,0,1]"
        for t in range(5):
            for j in range(2):
                P.I(f"v_pk_fma_f32 {V(accK + 4 * t + 2 * j, 2)}, {V(csK + 2 * j, 2)}, {V(SI + 2 * t, 2)}, {V(accK + 4 * t + 2 * j, 2)} {BL}")
        P.I(f"v_permlane16_swap_b32 v{csV}, v{csV + 1}")
        for t in range(1, 5):
            for j in range(2):
                P.I(f"v_pk_fma_f32 {V(accQ + 4 * t + 2 * j, 2)}, {V(csQ + 2 * j, 2)}, {V(SI + 2 * t, 2)}, {V(accQ + 4 * t + 2 * j, 2)} {BL}")
        P.I(f"v_mov_b32 v{csV + 1}, v{csV}")
        for t in range(5):
            for j in range(2):
                P.I(f"v_pk_mul_f32 {V(accK + 4 * t + 2 * j, 2)}, {V(accK + 4 * t + 2 * j, 2)}, {V(SI + 2 * t, 2)} op_sel:[0,1] op_sel_hi:[1,1]")
        P.I(f"v_permlane32_swap_b32 v{csV}, v{csV + 1}")
        for t in range(1, 5):
            for j in range(2):
                P.I(f"v_cvt_pk_bf16_f32 v{Qp + 2 * (t - 1) + j}, v{accQ + 4 * t + 2 * j}, v{accQ + 4 * t + 2 * j + 1}")
        for t in range(5):
            for j in range(2):
                P.I(f"v_cvt_pk_bf16_f32 v{Kp + 2 * t + j}, v{accK + 4 * t + 2 * j}, v{accK + 4 * t + 2 * j + 1}")
        SP, SC = 40, 60
        for t in range(1, 5):
            q = V(Qp + 2 * (t - 1), 2)
            P.I(f"v_mfma_f32_16x16x16_bf16 {V(SP + 4 * t, 4)}, {V(Kp + 2 * (t - 1), 2)}, {q}, 0")
            P.I(f"v_mfma_f32_16x16x16_bf16 {V(SC + 4 * t, 4)}, {V(Kp + 2 * t, 2)}, {q}, 0")
        for t in range(5):
            for j in range(2):
                P.I(f"v_pk_fma_f32 {V(accV + 4 * t + 2 * j, 2)}, {V(MJ + 4 * t + 2 * j, 2)}, {V(csV, 2)}, {V(accV + 4 * t + 2 * j, 2)} {BL}")
        for t in range(5):
            for j in range(2):
                P.I(f"v_pk_mul_f32 {V(accV + 4 * t + 2 * j, 2)}, {V(accV + 4 * t + 2 * j, 2)}, {V(RJ + 4 * t + 2 * j, 2)}")
        for t in range(5):
            for j in range(2):
                P.I(f"v_cvt_pk_bf16_f32 v{Vp + 2 * t + j}, v{accV + 4 * t + 2 * j}, v{accV + 4 * t + 2 * j + 1}")
        Z = 120
        MX = [0, 140, 142, 144, 146]; TM = [0, 148, 149, 150, 151]; SM = [0, 152, 153, 154, 155]
        def z(t, r): return Z + 4 * (t - 1) + r
        for t in range(1, 5):
            for r in range(4):
                P.I(f"v_cndmask_b32 v{z(t, r)}, v{SP + 4 * t + r}, v{SC + 4 * t + r}, {sp(sMCUR + 2 * r)}")
        for t in range(1, 5):
            pm = PMf if t == 1 else PM
            for j in range(2):
                P.I(f"v_pk_fma_f32 {V(z(t, 2 * j), 2)}, {V(z(t, 2 * j), 2)}, {V(CI + 2 * (t - 1), 2)}, {V(pm + 2 * j, 2)} {BL}")
        for t in range(1, 5):
            P.I(f"v_max3_f32 v{MX[t]}, v{z(t, 0)}, v{z(t, 1)}, v{z(t, 2)}")
        for t in range(1, 5):
            P.I(f"v_max_f32 v{MX[t]}, v{MX[t]}, v{z(t, 3)}")
        for step in ("16", "32"):
            for t in range(1, 5):
                P.I(f"v_mov_b32 v{TM[t]}, v{MX[t]}")
            for t in range(1, 5):
                P.I(f"v_permlane{step}_swap_b32 v{MX[t]}, v{TM[t]}")
            for t in range(1, 5):
                P.I(f"v_max_f32 v{MX[t]}, v{MX[t]}, v{TM[t]}")
        for t in range(1, 5):
            for j in range(2):
                P.I(f"v_pk_add_f32 {V(z(t, 2 * j), 2)}, {V(z(t, 2 * j), 2)}, {V(MX[t], 2)} op_sel_hi:[1,0] neg_lo:[0,1] neg_hi:[0,1]")
        for t in range(1, 5):
            for r in range(4):
                P.I(f"v_exp_f32 v{z(t, r)}, v{z(t, r)}")
        PB = 40
        pk = [0, 156, 158, 160, 162]
        for t in range(1, 5):
            P.I(f"v_add_f32 v{SM[t]}, v{z(t, 0)}, v{z(t, 1)}")
            P.I(f"v_add_f32 v{TM[t]}, v{z(t, 2)}, v{z(t, 3)}")
        for t in range(1, 5):
            P.I(f"v_cvt_pk_bf16_f32 v{pk[t]}, v{z(t, 0)}, v{z(t, 1)}")
            P.I(f"v_cvt_pk_bf16_f32 v{pk[t] + 1}, v{z(t, 2)}, v{z(t, 3)}")
            P.I(f"v_add_f32 v{SM[t]}, v{SM[t]}, v{TM[t]}")
        for t in range(1, 5):
            P.I(f"v_cndmask_b32 v{PB + 4 * t + 0}, v{pk[t]}, 0, {sp(sM01)}")
            P.I(f"v_cndmask_b32 v{PB + 4 * t + 1}, v{pk[t] + 1}, 0, {sp(sM23)}")
            P.I(f"v_cndmask_b32 v{PB + 4 * t + 2}, 0, v{pk[t]}, {sp(sM01)}")
            P.I(f"v_cndmask_b32 v{PB + 4 * t + 3}, 0, v{pk[t] + 1}, {sp(sM23)}")
        O = 60
        for t in range(1, 5):
            P.I(f"v_mfma_f32_16x16x32_bf16 {V(O + 4 * t, 4)}, {V(Vp + 2 * (t - 1), 4)}, {V(PB + 4 * t, 4)}, 0")
        for step in ("16", "32"):
            for t in range(1, 5):
                P.I(f"v_mov_b32 v{TM[t]}, v{SM[t]}")
            for t in range(1, 5):
                P.I(f"v_permlane{step}_swap_b32 v{SM[t]}, v{TM[t]}")
            for t in range(1, 5):
                P.I(f"v_add_f32 v{SM[t]}, v{SM[t]}, v{TM[t]}")
        for t in range(1, 5):
            P.I(f"v_rcp_f32 v{MX[t]}, v{SM[t]}")
        P.I(f"s_and_b32 s{sT1}, s{sW}, 1")
        P.I(f"s_lshl_b32 s{sT1}, s{sT1}, 3")
        P.I(f"v_add_u32 v{c_}, s{sT1}, v{vL16}")
        P.I(f"s_lshl_b32 s{sT1}, s{sRB}, 16")
        P.I(f"s_lshl_b32 s{sT2}, s{sC}, 11")
        P.I(f"s_add_u32 s{sT1}, s{sT1}, s{sT2}")
        P.I(f"s_lshr_b32 s{sT2}, s{sW}, 1")
        P.I(f"s_lshl_b32 s{sT2}, s{sT2}, 10")
        P.I(f"s_add_u32 s{sT1}, s{sT1}, s{sT2}")
        P.I(f"s_add_u32 s{sT1}, s{sT1}, s{sL2M}")
        P.I(f"s_add_u32 s{sT1}, s{sT1}, {OBUF}")
        Op = 84
        for t in range(1, 5):
            for j in range(2):
                P.I(f"v_pk_mul_f32 {V(O + 4 * t + 2 * j, 2)}, {V(O + 4 * t + 2 * j, 2)}, {V(MX[t], 2)} op_sel_hi:[1,0]")
            P.I(f"v_cvt_pk_bf16_f32 v{Op + 2 * t}, v{O + 4 * t}, v{O + 4 * t + 1}")
            P.I(f"v_cvt_pk_bf16_f32 v{Op + 2 * t + 1}, v{O + 4 * t + 2}, v{O + 4 * t + 3}")
        lines = []
        for t in range(1, 5):
            if t > 1:
                lines.append(f"s_add_u32 s{sT2}, s{sT1}, {16384 * (t - 1)}")
            lines.append(f"buffer_store_dwordx2 {V(Op + 2 * t, 2)}, v{c_}, {srd(S_WS)}, s{sT1 if t == 1 else sT2} offen")
        self.stores(lines)

    def gemm_res(self, which, part):
        P = self.P; L = self.L
        nks = 16 if which == 2 else 43
        page = (lambda k: self.W2_PAGES[k]) if which == 2 else self.w4_page
        vB = 16
        acc = 32
        WR = 48; NR = 8; LA = 6
        a, b, c_, d, e_ = 80, 81, 82, 83, 84
        XR = 96; NX = 32
        if part == 'pre':
            P.I(f"v_mov_b32 v{vB}, v{vL16}")
            P.I(f"v_add_u32 v{vB + 1}, 0x10000, v{vL16}")
            P.I(f"v_add_u32 v{vB + 2}, 0x20000, v{vL16}")
            for r in range(16):
                P.I(f"v_mov_b32 v{acc + r}, 0")
            if which == 2:
                P.I(f"s_lshl_b32 s{sT5}, s{sRT}, 14")
                P.I(f"s_add_u32 s{sT5}, s{sT5}, s{sL2M}")
                P.I(f"s_add_u32 s{sT5}, s{sT5}, {OBUF}")
            else:
                P.I(f"s_mul_i32 s{sT5}, s{sRT}, {43 * 1024}")
                P.I(f"s_add_u32 s{sT5}, s{sT5}, s{sLH}")
                P.I(f"s_add_u32 s{sT5}, s{sT5}, {HBUF}")
            return
        self._xn = 0
        def xload():
            k = self._xn
            if k >= nks: return
            self._xn += 1
            if k % 4 == 0:
                P.I(f"s_add_u32 s{sT1}, s{sT5}, {(k // 4) * 4096}")
            off = f" offset:{(k % 4) * 1024}" if k % 4 else ""
            P.I(f"buffer_load_dwordx4 {V(XR + 4 * (k % NX), 4)}, v{vL16}, {srd(S_WS)}, s{sT1} offen{off} sc1", tag=(f'X{which}', k))
        for _ in range(self.init24):
            xload()
        half_off = 2048 if which == 2 else 1024
        frags = [(k, T) for k in range(nks) for T in range(4)]
        def reads(n):
            k, T = frags[n]
            Ld = []
            off = page(k) * PAGE + T * 1024
            Ld.append(f"ds_read_b128 {V(WR + 4 * (n % NR), 4)}, v{vB + (off >> 16)} offset:{off & 0xffff}")
            return Ld
        def hook(k):
            if which == 2 and k == 5:
                self.bar()
                self.ld_w3(4); self.ld_w3(5)
            if which == 4:
                if k == 8:
                    self.bar()
                    for kk in range(38, 43):
                        self.ld_w4(kk)
                if k == 28:
                    self.wait_units('W4', 42)
                    self.bar()
                    lsk = self.newlab("lnow1")
                    L.I(f"s_cmp_lg_u32 s{sLAYER}, 0")
                    L.I(f"s_cbranch_scc1 {lsk}")
                    L.optional += 1
                    if not self.latew1:
                        for ks in range(6):
                            self.ld_w1(ks)
                    L.optional -= 1
                    L.label(lsk)
                    L.fence_hazards(2)
        for n in range(LA):
            if frags[n][1] == 0:
                hook(frags[n][0])
            for x in reads(n):
                P.I(x)
        for n, (k, T) in enumerate(frags):
            rd = []
            if n + LA < len(frags):
                if frags[n + LA][1] == 0:
                    hook(frags[n + LA][0])
                rd = reads(n + LA)
            xr = XR + 4 * (k % NX)
            if T in (0, 2):
                P.need([f"v{WR + 4 * ((n + j) % NR) + i}" for j in range(2) for i in range(4)] + regs(xr, 4))
            if T == 0 and which == 2 and k in (0, 2, 4, 6, 8, 10, 12):
                self.ts(9 + k // 2, fine=4)
            if T == 0 and which == 4 and k in (0, 4, 8, 16, 24, 32, 40):
                self.ts(9 + (0, 4, 8, 16, 24, 32, 40).index(k), fine=5)
            P.I(f"v_mfma_f32_16x16x32_bf16 {V(acc + 4 * T, 4)}, {V(WR + 4 * (n % NR), 4)}, {V(xr, 4)}, {V(acc + 4 * T, 4)}")
            for x in rd:
                P.I(x)
            if (T == 1 or (T == 3 and k % 2 == 0 and self._xn < k + 12)) and self._xn <= k + NX - 1:
                xload()
        P.wait_lg_all()
        self.bar()
        self.ts(4 if which == 2 else 8)
        t0 = 80
        for T in range(4):
            for j in range(2):
                rr = vRES + 2 * T + j
                tt = t0 + 2 * ((2 * T + j) % 4)
                P.I(f"v_lshlrev_b32 v{tt}, 16, v{rr}")
                P.I(f"v_and_b32 v{tt + 1}, 0xffff0000, v{rr}")
                P.I(f"v_pk_add_f32 {V(tt, 2)}, {V(tt, 2)}, {V(acc + 4 * T + 2 * j, 2)}")
                P.I(f"v_cvt_pk_bf16_f32 v{rr}, v{tt}, v{tt + 1}")
        if which == 2:
            P.I(f"s_add_u32 s{sT3}, s{sL2M}, {XMID}")
            P.I(f"s_add_u32 s{sT4}, s{sLST}, {STMID}")
            self.emit_x(True, sT3, sT4)
        else:
            self.lfin = self.newlab("final")
            P.I(f"s_cmp_lg_u32 s{sLAYER}, 0")
            P.I(f"s_cbranch_scc1 {self.lfin}")
            L.I(f"s_cmp_lg_u32 s{sLAYER}, 0")
            L.I(f"s_cbranch_scc1 L_lend")
            if self.latew1:
                for ks in range(6):
                    self.ld_w1(ks)
            P.I(f"s_add_u32 s{sT3}, s{sL2M}, {XIN + 0x200000}")
            P.I(f"s_add_u32 s{sT4}, s{sLST}, {STIN + 0x20000}")
            self.emit_x(False, sT3, sT4, halo_l=1)

    def final_store(self):
        P = self.P
        P.label(self.lfin)
        P.fence_hazards(4)
        a, b = 80, 81
        P.I(f"v_and_b32 v{a}, 15, v{vLANE}")
        P.I(f"v_lshlrev_b32 v{a}, 10, v{a}")
        P.I(f"v_lshrrev_b32 v{b}, 4, v{vLANE}")
        P.I(f"v_lshlrev_b32 v{b}, 3, v{b}")
        P.I(f"v_add_u32 v{a}, v{a}, v{b}")
        P.I(f"s_lshl_b32 s{sT0}, s{sRT}, 14")
        P.I(f"s_lshl_b32 s{sT1}, s{sC}, 7")
        P.I(f"s_add_u32 s{sT0}, s{sT0}, s{sT1}")
        for T in range(4):
            P.I(f"buffer_store_dwordx2 {V(vRES + 2 * T, 2)}, v{a}, {srd(S_OUT)}, s{sT0} offen offset:{T * 32}")
        self.ts(9)

    def phase3(self, part):
        P = self.P; L = self.L
        vB3 = 16
        vST = 20
        tmps = 28
        WR = 32
        NRW = 12
        XR = 80
        NXR = 18
        acc = 152
        a, b = 28, 29
        if part == 'pre':
            P.I(f"v_mov_b32 v{vB3}, v{vL16}")
            P.I(f"v_add_u32 v{vB3 + 1}, 0x10000, v{vL16}")
            P.I(f"v_add_u32 v{vB3 + 2}, 0x20000, v{vL16}")
            for r in range(96):
                P.I(f"v_mov_b32 v{acc + r}, 0")
            P.I(f"v_and_b32 v{a}, 31, v{vLANE}")
            P.I(f"v_lshlrev_b32 v{a}, 6, v{a}")
            P.I(f"v_lshrrev_b32 v{b}, 5, v{vLANE}")
            P.I(f"v_lshl_add_u32 v{a}, v{b}, 5, v{a}")
            P.I(f"s_lshl_b32 s{sT5}, s{sR32}, 11")
            P.I(f"s_add_u32 s{sT5}, s{sT5}, s{sLST}")
            P.I(f"s_add_u32 s{sT5}, s{sT5}, {STMID}")
            P.I(f"s_lshl_b32 s{sT4}, s{sR32}, 15")
            P.I(f"s_add_u32 s{sT4}, s{sT4}, s{sL2M}")
            P.I(f"s_add_u32 s{sT4}, s{sT4}, {XMID}")
            return
        self._xn = 0
        def xload():
            n = self._xn
            if n >= 32: return
            self._xn += 1
            if n % 4 == 0:
                P.I(f"s_add_u32 s{sT3}, s{sT4}, {(n // 4) * 4096}")
            off = f" offset:{(n % 4) * 1024}" if n % 4 else ""
            P.I(f"buffer_load_dwordx4 {V(XR + 4 * (n % NXR), 4)}, v{vL16}, {srd(S_WS)}, s{sT3} offen{off} sc1", tag=('X3', n))
        for n in range(self.init3):
            xload()
        P.I(f"buffer_load_dwordx4 {V(vST, 4)}, v{a}, {srd(S_WS)}, s{sT5} offen sc1")
        P.I(f"buffer_load_dwordx4 {V(vST + 4, 4)}, v{a}, {srd(S_WS)}, s{sT5} offen offset:16 sc1")
        frags = [(n, F, mat) for n in range(32) for F in range(3) for mat in range(2)]
        LA = 8
        def wread(i):
            n, F, mat = frags[i]
            p, u = n >> 1, n & 1
            off = self.w3_page(p) * PAGE + F * 4096 + u * 2048 + mat * 1024
            return f"ds_read_b128 {V(WR + 4 * (i % NRW), 4)}, v{vB3 + (off >> 16)} offset:{off & 0xffff}"
        def stage(j):
            self.wait_units('W3', 2 * j + 3)
            self.bar()
            if j == 0:
                self.ld_w3(9); self.ld_w3(10); self.ld_w3(11)
            elif j == 1:
                self.ld_w3(12); self.ld_w3(13)
                self.w4_ready('issue')
            elif j == 2:
                self.ld_w3(14); self.ld_w3(15)
            elif j == 3:
                self.w4_ready('check')
                for k in range(0, 8): self.ld_w4(k)
            elif j == 4:
                for k in range(8, 14): self.ld_w4(k)
            if self.pull and j == 0:
                def part4(S, d):
                    S.I(f"s_and_b32 s{d}, s{sRB}, 3")
                self.l2_pull(sW4B, part4, 344)
            if self.pull and j == 4:
                self.w1_touch()
            if self.touch and j in (0, 2):
                lsk = self.newlab("ntch")
                L.I(f"s_cmp_lg_u32 s{sW}, 3")
                L.I(f"s_cbranch_scc1 {lsk}")
                L.optional += 1
                if j == 0:
                    self.touch_h(L, 68, 69, 70)
                else:
                    self.touch16(L, 68, 74, XIN + 0x200000)
                    self.touch_stats(L, 68, 75, STIN + 0x20000)
                L.optional -= 1
                L.label(lsk)
                L.fence_hazards(2)
            if j <= 4:
                pass
            if j == 5:
                for k in range(14, 20): self.ld_w4(k)
            elif j == 6:
                for k in range(20, 26): self.ld_w4(k)
        for i in range(LA):
            P.I(wread(i))
        for i, (n, F, mat) in enumerate(frags):
            nx = []
            if i + LA < len(frags):
                n2, F2, m2 = frags[i + LA]
                if F2 == 0 and m2 == 0 and n2 % 4 == 0 and n2 >= 4:
                    stage(n2 // 4 - 1)
                nx = [wread(i + LA)]
            if i % 2 == 0:
                P.need(regs(WR + 4 * (i % NRW), 4) + regs(WR + 4 * ((i + 1) % NRW), 4) + regs(XR + 4 * (n % NXR), 4))
            if F == 0 and mat == 0 and n in (0, 4, 8, 12, 16, 24, 28):
                self.ts(9 + (0, 4, 8, 12, 16, 24, 28).index(n), fine=6)
            ac = acc + 16 * (2 * F + mat)
            P.I(f"v_mfma_f32_32x32x16_bf16 {V(ac, 16)}, {V(WR + 4 * (i % NRW), 4)}, {V(XR + 4 * (n % NXR), 4)}, {V(ac, 16)}")
            for x in nx:
                P.I(x)
            if F == 1 and mat == 0 and self._xn <= n + NXR - 1:
                xload()
            if F == 2 and mat == 0 and self._xn < n + 12 and self._xn <= n + NXR - 1:
                xload()
            if n == 6 and F == 0 and mat == 0:
                self._st = []
                S_ = self._st
                for j in (2, 4, 6):
                    S_.append(f"v_add_f32 v{vST}, v{vST}, v{vST + j}")
                    S_.append(f"v_add_f32 v{vST + 1}, v{vST + 1}, v{vST + j + 1}")
                S_.append(f"v_mov_b32 v{a}, v{vST}")
                S_.append(f"v_mov_b32 v{b}, v{vST + 1}")
                S_.append(f"v_nop")
                S_.append(f"v_permlane32_swap_b32 v{vST}, v{a}")
                S_.append(f"v_permlane32_swap_b32 v{vST + 1}, v{b}")
                S_.append(f"v_add_f32 v{vST}, v{vST}, v{a}")
                S_.append(f"v_add_f32 v{vST + 1}, v{vST + 1}, v{b}")
                S_.append(f"v_mul_f32 v{vST}, {hex(f2u(-1.0/512))}, v{vST}")
                S_.append(f"v_mul_f32 v{vST + 1}, {hex(f2u(1.0/512))}, v{vST + 1}")
                S_.append(f"v_fma_f32 v{vST + 1}, -v{vST}, v{vST}, v{vST + 1}")
                S_.append(f"v_max_f32 v{vST + 1}, 0, v{vST + 1}")
                S_.append(f"v_add_f32 v{vST + 1}, {hex(f2u(1e-5))}, v{vST + 1}")
                S_.append(f"v_rsq_f32 v{vST + 2}, v{vST + 1}")
                S_.append(f"v_nop")
                S_.append(f"v_mul_f32 v{vST + 3}, v{vST + 2}, v{vST + 2}")
                S_.append(f"v_mul_f32 v{vST + 4}, {hex(f2u(GC0))}, v{vST + 2}")
                S_.append(f"v_mul_f32 v{vST + 5}, v{vST + 3}, v{vST + 2}")
                S_.append(f"v_mul_f32 v{vST + 5}, {hex(f2u(GC0 * 0.044715))}, v{vST + 5}")
            if n >= 6 and getattr(self, '_st', None):
                P.I(self._st.pop(0))
        assert not self._st
        P.wait_lg_all()
        self.bar()
        for k in range(26, 38):
            self.ld_w4(k)
        self.ts(6)
        va = 30
        P.I(f"v_bfe_u32 v{a}, v{vLANE}, 4, 1")
        P.I(f"v_mul_u32_u24 v{a}, {43 * 1024}, v{a}")
        P.I(f"v_lshrrev_b32 v{b}, 5, v{vLANE}")
        P.I(f"v_lshl_add_u32 v{a}, v{b}, 8, v{a}")
        P.I(f"v_lshlrev_b32 v{b}, 6, v{b}")
        P.I(f"v_add_u32 v31, {MISC + 1024}, v{b}")
        P.I(f"v_and_b32 v{b}, 15, v{vLANE}")
        P.I(f"v_lshl_add_u32 v{va}, v{b}, 4, v{a}")
        P.I(f"s_lshl_b32 s{sT1}, s{sR32}, 1")
        P.I(f"s_mul_i32 s{sT1}, s{sT1}, 43")
        P.I(f"s_add_u32 s{sT1}, s{sT1}, s{sP0}")
        P.I(f"s_lshl_b32 s{sT1}, s{sT1}, 10")
        P.I(f"s_add_u32 s{sT1}, s{sT1}, s{sLH}")
        P.I(f"s_add_u32 s{sT1}, s{sT1}, {HBUF}")
        CS = 32
        HP = 96
        T0 = 120
        def csreads(F):
            for mat in range(2):
                for j in range(4):
                    P.I(f"ds_read_b128 {V(CS + 32 * (F & 1) + 16 * mat + 4 * j, 4)}, v31 offset:{F * 256 + mat * 128 + j * 16}")
        NM = f"{V(vST, 2)}"
        csreads(0)
        lskip = self.newlab("nof2")
        for F in range(3):
            if F == 2:
                P.I(f"s_cmp_lt_u32 s{sNP}, 3")
                P.I(f"s_cbranch_scc1 {lskip}")
                P.optional += 1
            if F + 1 < 3 and F == 0:
                csreads(1)
            if F == 1:
                pass
            G = acc + 16 * (2 * F); U = acc + 16 * (2 * F + 1)
            cg = CS + 32 * (F & 1); cu = cg + 16
            if F == 2:
                csreads(2)
            for pr in range(8):
                P.I(f"v_pk_fma_f32 {V(G + 2 * pr, 2)}, {V(cg + 2 * pr, 2)}, {NM}, {V(G + 2 * pr, 2)} op_sel:[0,0,0] op_sel_hi:[1,0,1]")
            for pr in range(8):
                P.I(f"v_pk_fma_f32 {V(U + 2 * pr, 2)}, {V(cu + 2 * pr, 2)}, {NM}, {V(U + 2 * pr, 2)} op_sel:[0,0,0] op_sel_hi:[1,0,1]")
            for grp in range(2):
                prs = [4 * grp + j for j in range(4)]
                def T(j, k): return T0 + 8 * j + 2 * k
                for j, pr in enumerate(prs):
                    P.I(f"v_pk_mul_f32 {V(T(j,0),2)}, {V(G + 2 * pr, 2)}, {V(G + 2 * pr, 2)}")
                for j, pr in enumerate(prs):
                    P.I(f"v_pk_fma_f32 {V(T(j,0),2)}, {V(T(j,0),2)}, {V(vST + 4, 2)}, {V(vST + 4, 2)} op_sel:[0,1,0] op_sel_hi:[1,1,0]")
                for j, pr in enumerate(prs):
                    P.I(f"v_pk_mul_f32 {V(T(j,0),2)}, {V(T(j,0),2)}, {V(G + 2 * pr, 2)}")
                for j, pr in enumerate(prs):
                    P.I(f"v_exp_f32 v{T(j,0)}, v{T(j,0)}")
                    P.I(f"v_exp_f32 v{T(j,0)+1}, v{T(j,0)+1}")
                for j, pr in enumerate(prs):
                    P.I(f"v_pk_mul_f32 {V(T(j,1),2)}, {V(G + 2 * pr, 2)}, {V(U + 2 * pr, 2)}")
                for j, pr in enumerate(prs):
                    P.I(f"v_pk_add_f32 {V(T(j,0),2)}, {V(T(j,0),2)}, {sp(sONEF)}")
                for j, pr in enumerate(prs):
                    P.I(f"v_pk_mul_f32 {V(T(j,1),2)}, {V(T(j,1),2)}, {V(vST + 2, 2)} op_sel:[0,1] op_sel_hi:[1,1]")
                for j, pr in enumerate(prs):
                    P.I(f"v_rcp_f32 v{T(j,0)}, v{T(j,0)}")
                    P.I(f"v_rcp_f32 v{T(j,0)+1}, v{T(j,0)+1}")
                for j, pr in enumerate(prs):
                    P.I(f"v_pk_mul_f32 {V(T(j,1),2)}, {V(T(j,1),2)}, {V(T(j,0),2)}")
                for j, pr in enumerate(prs):
                    P.I(f"v_cvt_pk_bf16_f32 v{HP + 8 * F + pr}, v{T(j,1)}, v{T(j,1)+1}")
            self.stores([f"buffer_store_dwordx4 {V(HP + 8 * F + 4 * AB, 4)}, v{va}, {srd(S_WS)}, s{sT1} offen offset:{F * 1024 + AB * 512}" for AB in range(2)])
            if F == 2:
                P.optional -= 1
                P.label(lskip)
                P.fence_hazards(2)

    def set_layer1(self, P):
        P.I(f"s_mov_b32 s{sLAYER}, 1")
        P.I(f"s_mov_b32 s{sL2M}, 0x200000")
        P.I(f"s_mov_b32 s{sLH}, 0x600000")
        P.I(f"s_mov_b32 s{sLST}, 0x20000")
        P.I(f"s_mov_b32 s{sLFL}, 0x1000")

    def build(self):
        P = self.P; L = self.L
        self.prologue()
        P.I(f"s_mov_b32 s{sT3}, {XIN}")
        P.I(f"s_mov_b32 s{sT4}, {STIN}")
        self.ts(0)
        self.phase1('pre')
        self.emit_x(False, sT3, sT4, halo_l=0, stats_only=True)
        lp = self.newlab("cn"); ld = self.newlab("cnd")
        P.I(f"s_mov_b32 s{sCNT}, 0")
        P.label(lp)
        P.raw(f"    buffer_load_dword v249, v248, {srd(S_DBG)}, 0 offen sc1")
        P.raw("    s_waitcnt vmcnt(0)")
        P.I(f"v_readfirstlane_b32 s{sNONCE}, v249")
        P.I(f"s_cmp_lg_u32 s{sNONCE}, 0")
        P.I(f"s_cbranch_scc1 {ld}")
        P.I(f"s_add_u32 s{sCNT}, s{sCNT}, 1")
        P.I(f"s_cmp_lt_u32 s{sCNT}, 200000")
        P.I(f"s_cbranch_scc1 {lp}")
        P.label(ld)
        P.I(f"s_lshl_b32 s{sT1}, s{sRB}, 3")
        P.I(f"s_add_u32 s{sT1}, s{sT1}, s{sC}")
        P.I(f"s_lshl_b32 s{sT1}, s{sT1}, 2")
        P.I(f"s_add_u32 s{sT1}, s{sT1}, s{sW}")
        P.I(f"s_lshl_b32 s{sT1}, s{sT1}, 2")
        P.I(f"s_add_u32 s{sT1}, s{sT1}, {FLAGS4}")
        P.I(f"s_or_b32 s{sT2}, s{sNONCE}, s{sXCC}")
        P.I(f"v_mov_b32 v249, s{sT2}")
        P.I(f"s_mov_b64 exec, 1")
        P.I(f"buffer_store_dword v249, v248, {srd(S_WS)}, s{sT1} offen sc1")
        P.I(f"s_mov_b64 exec, -1")
        P.label("L_layer")
        P.fence_hazards(4)
        L.label("L_llayer")
        L.fence_hazards(2)
        L.vmq = [{'regs': set(), 'tag': ('W1', ks), 'definite': True} for ks in range(6) for _ in range(3)]
        P.vmq = []
        self.phase1('lpre')
        if self.touch: self.phase1('touch')
        self.bar()
        self.ts(1)
        self.phase1('body')
        self.finish_phase(1, 1, self.poll_rb, lambda: self.gemm_res(2, 'pre'))
        self.wait_units('W2', 15)
        self.bar()
        self.ts(3)
        self.gemm_res(2, 'body')
        self.finish_phase(2, 2, self.poll_pair, lambda: self.phase3('pre'), lpost=lambda: [self.ld_w3(u) for u in (6, 7, 8)])
        self.wait_units('W3', 1)
        self.bar()
        self.ts(5)
        self.phase3('body')
        self.finish_phase(3, 3, self.poll_pair, lambda: self.gemm_res(4, 'pre'))
        self.wait_units('W4', 37)
        self.bar()
        self.ts(7)
        self.gemm_res(4, 'body')
        self.finish_phase(4, 4, self.poll_rb_prev, lambda: self.phase1('pre'))
        self.set_layer1(P)
        P.I("s_branch L_layer")
        self.set_layer1(L)
        L.I("s_branch L_llayer")
        self.final_store()
        P.label("L_end")
        P.I("s_endpgm")
        L.label("L_lend")
        L.wait_vm_all()
        L.I("s_endpgm")

    def text(self):
        hdr = open('cdna_kernels/' + NAME + '.s.ref').read().split('\n')
        head = [l for l in hdr if l.startswith(';') and '@launch' not in l and 'Override' not in l and 'grid=ceil' not in l]
        s = "\n".join(head) + "\n"
        s += f"; @launch grid=(256,1,1) block=(512,1,1) lds={LDS_BYTES}\n"
        s += '.amdgcn_target "amdgcn-amd-amdhsa--gfx950"\n.text\n'
        s += f".globl {NAME}_kernel\n.p2align 8\n.type {NAME}_kernel,@function\n{NAME}_kernel:\n"
        s += self.P.text()
        s += "L_loader:\n    s_nop 1\n"
        s += self.L.text()
        s += f""".section .rodata,"a"
.p2align 6
.amdhsa_kernel {NAME}_kernel
  .amdhsa_next_free_vgpr 256
  .amdhsa_next_free_sgpr 102
  .amdhsa_accum_offset 256
  .amdhsa_group_segment_fixed_size 0
  .amdhsa_kernarg_size 80
  .amdhsa_user_sgpr_count 2
  .amdhsa_user_sgpr_kernarg_segment_ptr 1
  .amdhsa_system_sgpr_workgroup_id_x 1
.end_amdhsa_kernel
"""
        return s

if __name__ == "__main__":
    import argparse
    ap = argparse.ArgumentParser()
    ap.add_argument('-o', default='cdna_kernels/' + NAME + '.s')
    ap.add_argument('--profile', type=int, default=0)
    ap.add_argument('--drop', default='')
    ap.add_argument('--slow', action='store_true')
    ap.add_argument('--init24', type=int, default=0)
    ap.add_argument('--notouch', action='store_true')
    ap.add_argument('--nopull', action='store_true')
    ap.add_argument('--earlytouch', action='store_true')
    ap.add_argument('--prefetch', action='store_true')
    ap.add_argument('--tlbwarm', type=int, default=0)
    ap.add_argument('--latew1', action='store_true')
    ap.add_argument('--init3', type=int, default=0)
    a = ap.parse_args()
    g = Gen(profile=a.profile, drop=a.drop.split(',') if a.drop else (), force_slow=a.slow)
    if a.notouch: g.touch = False
    if a.earlytouch:
        g.earlytouch = True; g.touch = False
    g.prefetch = a.prefetch
    g.tlbwarm = a.tlbwarm
    g.latew1 = a.latew1
    if a.init24: g.init24 = a.init24
    if a.init3: g.init3 = a.init3
    g.build()
    open(a.o, 'w').write(g.text())
    print("compute instrs:", g.P.ninstr, "nops:", g.P.nops, " loader instrs:", g.L.ninstr,
          " barriers:", sum(1 for l in g.P.out if 's_barrier' in l), sum(1 for l in g.L.out if 's_barrier' in l))
```

```python
import sys, struct
from asmlib import Prog

NAME = "interleave_layers__sliding_local_dilated__geglu_ffn__prompt"

def f2u(x):
    return struct.unpack('<I', struct.pack('<f', x))[0]

XIN   = 0x000000
XMID  = 0x400000
OBUF  = 0x800000
HBUF  = 0xC00000
STIN  = 0x1800000
STMID = 0x1840000
FLAGS = 0x1900000
FLAGS2 = FLAGS + 0x10000
XHALO = 0x1920000
STHALO = 0x1960000
TSBUF = 0x1A00000
CSBUF = 0x1BF0000
FLAGS3 = 0x1918000
FLAGS4 = 0x1914000
W2S = 0x1C00000
W4S = 0x1C80000
W3S = 0x2000000
WS_SIZE = 0x2400000

S_WS, S_X0, S_WQKV, S_WO, S_W3, S_WD, S_OUT, S_DBG = 8, 12, 16, 20, 24, 32, 36, 40
sRB, sC, sW, sNONCE, sLAYER = 44, 45, 46, 47, 48
sL2M, sLH, sLST, sLFL = 49, 50, 51, 52
sT0, sT1, sT2, sT3, sT4, sT5 = 53, 54, 55, 56, 57, 58
sW3072, sW1024, sW5120, sONES = 59, 60, 61, 62
sRT = 63
sMCUR = 64
sM01, sM23, sMI0, sMLO16 = 72, 74, 76, 78
sP0, sNP, sR32, sCNT = 80, 81, 82, 83
sK3 = 84
sONEF = 86
sTS = 88
sXT0 = 90
sISL = 91
sEXEC = 92
sBG = 96
sXB0, sXB1 = 97, 98
sW2B, sW3B, sW4B = 64, 65, 66
sSH1, sSH2, sSH3, sSH4 = 67, 68, 69, 70
sSTS = 71
sW4OK = 78
CSL = None
sFAST, sXCC, sHALO = 99, 100, 101
def srd(b): return f"s[{b}:{b+3}]"
def sp(b): return f"s[{b}:{b+1}]"

vL16 = 1
vRES = 2
vLANE = 15
vW1OFF, vW2OFF = 10, 11
vW3OFF = 12
vX1OFF = 16
vLONE = 120
vX0 = 130
vZERO, vDUM = 126, 127
vXW = 119
S_NULL = 28

def V(b, n=1):
    return f"v{b}" if n == 1 else f"v[{b}:{b+n-1}]"
def regs(base, n): return [f"v{base + i}" for i in range(n)]

PAGE = 4096
XB = 18 * PAGE
MISC = 38 * PAGE
LDS_BYTES = 40 * PAGE
NEG = hex(f2u(-3.0e38))
GC0 = -2.0 * 0.7978845608028654 * 1.4426950408889634


class Gen:
    def __init__(self, profile=0, drop=(), force_slow=False):
        self.force_slow = force_slow
        self.init24 = 10
        self.init3 = 8
        self.touch = True
        self.codepf = 0
        self.tplace = 'p3'
        self.pull = False
        self.earlytouch = False
        self.prefetch = False
        self.tlbwarm = 0
        self.latew1 = False
        self.dbgfast = False
        self.P = Prog()
        self.L = Prog()
        self.P.drop = set(drop); self.L.drop = set(drop)
        self.profile = profile
        self.lab = 0

    def newlab(self, s):
        self.lab += 1
        return f"L_{s}_{self.lab}"

    def bar(self):
        self.P.barrier()
        self.L.barrier()

    def w1_page(self, ks): return (ks % 9) * 3
    W2_PAGES = [3, 4, 5, 6, 7, 8, 9, 10, 11, 12, 13, 14, 15, 16, 17, 18]
    def w3_page(self, u):
        t = {0: 7, 1: 8, 2: 9, 3: 10, 4: 11, 5: 0, 12: 7, 13: 8, 14: 9, 15: 10}
        return 3 * (t[u] if u in t else u - 5)
    def w4_page(self, k):
        if k < 2: return 36 + k
        if k < 5: return 33 + (k - 2)
        if k < 8: return k - 5
        if k < 26: return 3 + (k - 8)
        if k < 38: return 21 + (k - 26)
        return [36, 37, 33, 34, 35][k - 38]
    def x_base(self, m): return (33 if m % 2 == 0 else 27) * PAGE

    def dma_group(self, voffs, srd_b, soff_imm, m0_base_s, m0_imm, tag):
        L = self.L
        L.I(f"s_add_u32 m0, s{m0_base_s}, {m0_imm}")
        L.I(f"s_mov_b32 s{sBG}, {soff_imm}")
        for e, voff in enumerate(voffs):
            off = f" offset:{e * 1024}" if e else ""
            L.I(f"buffer_load_dwordx4 v{voff}, {srd(srd_b)}, s{sBG} offen{off} lds", tag=tag)
    def ld_w1(self, ks): self.dma_group([vW1OFF] * 3, S_WQKV, ks * 98304, sW3072, self.w1_page(ks) * PAGE, ('W1', ks))
    def lin(self, base_s, goff, lds_off, tag):
        L = self.L
        L.I(f"s_add_u32 m0, s{sW1024}, {lds_off}")
        L.I(f"s_add_u32 s{sBG}, s{base_s}, {goff}")
        L.I(f"buffer_load_dwordx4 v{vX1OFF}, {srd(S_WS)}, s{sBG} offen lds", tag=tag)
    def ld_w2(self, ks): self.lin(sW2B, ks * 4096, self.W2_PAGES[ks] * PAGE, ('W2', ks))
    def ld_w3(self, u):
        for F in range(3):
            self.lin(sW3B, F * 65536 + u * 4096, self.w3_page(u) * PAGE + F * 4096, ('W3', u))
    def ld_w4(self, k): self.lin(sW4B, k * 4096, self.w4_page(k) * PAGE, ('W4', k))
    def wait_units(self, name, upto):
        self.L.wait_vm_tag(lambda t: t[0] == name and t[1] <= upto)

    def ts(self, idx, fine=False):
        if not self.profile:
            return
        if self.profile >= 3:
            keep = {3: (1, 2), 4: (3, 4), 5: (7, 8), 6: (5, 6), 7: (0, 1, 2)}[self.profile]
            if fine != self.profile and not (fine is False and idx in keep):
                return
        elif fine:
            return
        P = self.P
        l = self.newlab("ts")
        P.I(f"s_cmp_lg_u32 s{sW}, 0")
        P.I(f"s_cbranch_scc1 {l}")
        P.optional += 1
        P.I(f"{'s_memtime' if self.profile in (2, 3, 4, 5, 6) else 's_memrealtime'} {sp(sTS)}")
        P.raw("    s_waitcnt lgkmcnt(0)")
        P.I(f"s_mov_b64 {sp(sEXEC)}, exec")
        P.I(f"s_mov_b64 exec, 1")
        P.I(f"v_mov_b32 v254, s{sTS}")
        P.I(f"v_mov_b32 v255, s{sTS+1}")
        P.I(f"s_lshl_b32 s95, s2, 8")
        P.I(f"s_lshl_b32 s94, s{sLAYER}, 7")
        P.I(f"s_add_u32 s95, s95, s94")
        P.I(f"s_add_u32 s95, s95, {TSBUF + idx * 8}")
        P.I(f"v_mov_b32 v253, 0")
        P.I(f"buffer_store_dwordx2 v[254:255], v253, {srd(S_WS)}, s95 offen")
        P.I(f"s_mov_b64 exec, {sp(sEXEC)}")
        P.optional -= 1
        P.label(l)
        P.fence_hazards(2)

    def stores(self, lines):
        P = self.P
        ls = self.newlab("slow"); lj = self.newlab("join")
        for t in lines:
            from asmlib import classify
            if t.startswith('buffer_store'):
                P.need(sorted(classify(t).rd))
        P.fence_hazards(8)
        P.I(f"s_cmp_eq_u32 s{sFAST}, 0")
        P.I(f"s_cbranch_scc1 {ls}")
        for t in lines:
            P.I(t, tag=('ST', 0) if t.startswith('buffer_store') else None)
        P.raw(f"    s_branch {lj}")
        P.label(ls)
        for t in lines:
            P.raw("    " + t + (" sc1" if t.startswith('buffer_store') else ""))
        P.label(lj)
        P.fence_hazards(2)

    def lts(self, idx, wave=0):
        if self.profile != 7:
            return
        L = self.L
        l = self.newlab("lts")
        L.I(f"s_cmp_lg_u32 s{sW}, {wave}")
        L.I(f"s_cbranch_scc1 {l}")
        L.I(f"s_cmp_lg_u32 s{sLAYER}, 0")
        L.I(f"s_cbranch_scc1 {l}")
        L.optional += 1
        L.I(f"s_memrealtime {sp(sTS)}")
        L.raw("    s_waitcnt lgkmcnt(0)")
        L.I(f"s_mov_b64 exec, 1")
        L.I(f"v_mov_b32 v254, s{sTS}")
        L.I(f"v_mov_b32 v255, s{sTS+1}")
        L.I(f"s_lshl_b32 s95, s2, 8")
        L.I(f"s_add_u32 s95, s95, {TSBUF + idx * 8}")
        L.I(f"v_mov_b32 v253, 0")
        L.I(f"buffer_store_dwordx2 v[254:255], v253, {srd(S_WS)}, s95 offen")
        L.I(f"s_mov_b64 exec, -1")
        L.optional -= 1
        L.label(l)
        L.fence_hazards(2)

    def signal_and_poll(self, flag_phase, poll_phase, poll_off_v, first=False):
        P = self.P
        l = self.newlab("w0skip")
        P.I(f"s_cmp_lg_u32 s{sW}, 0")
        P.I(f"s_cbranch_scc1 {l}")
        P.optional += 1
        if first:
            lp = self.newlab("npoll"); ld = self.newlab("ndone")
            P.I(f"s_mov_b32 s{sCNT}, 0")
            P.label(lp)
            P.I(f"v_mov_b32 v252, 0")
            P.I(f"buffer_load_dword v253, v252, {srd(S_DBG)}, 0 offen sc1")
            P.raw("    s_waitcnt vmcnt(0)")
            P.I(f"v_readfirstlane_b32 s{sNONCE}, v253")
            P.I(f"s_cmp_lg_u32 s{sNONCE}, 0")
            P.I(f"s_cbranch_scc1 {ld}")
            P.I(f"s_sleep 1")
            P.I(f"s_add_u32 s{sCNT}, s{sCNT}, 1")
            P.I(f"s_cmp_lt_u32 s{sCNT}, 100000")
            P.I(f"s_cbranch_scc1 {lp}")
            P.label(ld)
        P.I(f"s_lshl_b32 s{sT1}, s{sRB}, 3")
        P.I(f"s_add_u32 s{sT1}, s{sT1}, s{sC}")
        P.I(f"s_lshl_b32 s{sT1}, s{sT1}, 2")
        P.I(f"s_add_u32 s{sT1}, s{sT1}, s{sLFL}")
        P.I(f"s_add_u32 s{sT1}, s{sT1}, {FLAGS + flag_phase * 0x400}")
        P.I(f"s_mov_b64 {sp(sEXEC)}, exec")
        P.I(f"s_mov_b64 exec, 1")
        P.I(f"v_mov_b32 v252, 0")
        if first:
            P.I(f"s_or_b32 s{sT2}, s{sNONCE}, s{sXCC}")
            P.I(f"v_mov_b32 v253, s{sT2}")
            P.I(f"buffer_store_dword v253, v252, {srd(S_WS)}, s{sT1} offen sc1")
        else:
            P.I(f"v_mov_b32 v253, s{sNONCE}")
            lsl = self.newlab("fslow"); lfj = self.newlab("fjoin")
            P.I(f"s_cmp_eq_u32 s{sFAST}, 0")
            P.I(f"s_cbranch_scc1 {lsl}")
            P.I(f"buffer_store_dword v253, v252, {srd(S_WS)}, s{sT1} offen")
            P.I(f"s_branch {lfj}")
            P.label(lsl)
            P.I(f"buffer_store_dword v253, v252, {srd(S_WS)}, s{sT1} offen sc1")
            P.label(lfj)
        P.I(f"s_mov_b64 exec, {sp(sEXEC)}")
        lp = self.newlab("poll"); ld = self.newlab("pdone")
        P.I(f"s_add_u32 s{sT1}, s{sLFL}, {FLAGS + poll_phase * 0x400}")
        P.I(f"s_mov_b32 s{sCNT}, 0")
        P.label(lp)
        P.I(f"buffer_load_dword v253, v{poll_off_v}, {srd(S_WS)}, s{sT1} offen sc1")
        P.raw("    s_waitcnt vmcnt(0)")
        P.I(f"v_and_b32 v252, -16, v253")
        P.I(f"v_cmp_ne_u32 vcc, s{sNONCE}, v252")
        P.I(f"s_cmp_eq_u64 vcc, 0")
        P.I(f"s_cbranch_scc1 {ld}")
        P.I(f"s_add_u32 s{sCNT}, s{sCNT}, 1")
        P.I(f"s_cmp_lt_u32 s{sCNT}, 200000")
        P.I(f"s_cbranch_scc1 {lp}")
        P.label(ld)
        if first:
            P.I(f"v_and_b32 v252, 15, v253")
            P.I(f"v_cmp_ne_u32 vcc, s{sXCC}, v252")
            P.I(f"s_cmp_eq_u32 vcc_lo, 0")
            P.I(f"s_cselect_b32 s{sT2}, {0 if self.force_slow else 1}, 0")
            P.I(f"v_mov_b32 v252, {MISC + 4096}")
            P.I(f"v_mov_b32 v253, s{sT2}")
            P.I(f"ds_write_b32 v252, v253")
            P.I(f"v_mov_b32 v253, s{sNONCE}")
            P.I(f"ds_write_b32 v252, v253 offset:4")
            P.raw("    s_waitcnt lgkmcnt(0)")
        P.optional -= 1
        P.label(l)
        P.fence_hazards(4)

    def finish_phase(self, flag_phase, poll_phase, poll_setup, pre, first=False, lpost=None):
        P = self.P
        if flag_phase in (1, 2, 3): self.ts(10 + 2 * (flag_phase - 1))
        pre()
        pv = poll_setup()
        P.wait_vm_tag(lambda t: t[0] == 'ST')
        self.bar()
        if lpost: lpost()
        if flag_phase in (1, 2, 3): self.ts(11 + 2 * (flag_phase - 1))
        if flag_phase in (0, 4):
            lh = self.newlab("nohalo")
            P.I(f"s_cmp_eq_u32 s{sHALO}, 0")
            P.I(f"s_cbranch_scc1 {lh}")
            P.optional += 1
            P.raw("    s_waitcnt vmcnt(0)")
            if first:
                lp = self.newlab("hn"); ld = self.newlab("hnd")
                P.I(f"s_mov_b32 s{sCNT}, 0")
                P.label(lp)
                P.I(f"v_mov_b32 v252, 0")
                P.I(f"buffer_load_dword v253, v252, {srd(S_DBG)}, 0 offen sc1")
                P.raw("    s_waitcnt vmcnt(0)")
                P.I(f"v_readfirstlane_b32 s{sNONCE}, v253")
                P.I(f"s_cmp_lg_u32 s{sNONCE}, 0")
                P.I(f"s_cbranch_scc1 {ld}")
                P.I(f"s_add_u32 s{sCNT}, s{sCNT}, 1")
                P.I(f"s_cmp_lt_u32 s{sCNT}, 200000")
                P.I(f"s_cbranch_scc1 {lp}")
                P.label(ld)
            P.I(f"s_lshr_b32 s{sT1}, s{sRB}, 2")
            P.I(f"s_lshl_b32 s{sT1}, s{sT1}, 3")
            P.I(f"s_add_u32 s{sT1}, s{sT1}, s{sC}")
            P.I(f"s_lshl_b32 s{sT1}, s{sT1}, 2")
            P.I(f"s_add_u32 s{sT1}, s{sT1}, s{sLFL}")
            P.I(f"s_add_u32 s{sT1}, s{sT1}, {FLAGS2 + flag_phase * 0x400}")
            P.I(f"s_mov_b64 {sp(sEXEC)}, exec")
            P.I(f"s_mov_b64 exec, 1")
            P.I(f"v_mov_b32 v252, 0")
            P.I(f"v_mov_b32 v253, s{sNONCE}")
            P.I(f"buffer_store_dword v253, v252, {srd(S_WS)}, s{sT1} offen sc1")
            P.I(f"s_mov_b64 exec, {sp(sEXEC)}")
            P.optional -= 1
            P.label(lh)
            P.fence_hazards(2)
        self.signal_and_poll(flag_phase, poll_phase, pv, first=first)

    def poll_rb_prev(self, first=False):
        P = self.P
        P.I(f"v_and_b32 v250, 7, v{vLANE}")
        P.I(f"s_lshr_b32 s{sT1}, s{sRB}, 2")
        P.I(f"s_lshl_b32 s{sT1}, s{sT1}, 3")
        P.I(f"s_add_u32 s{sT1}, s{sT1}, {0x4000 - 8}")
        P.I(f"s_lshl_b32 s{sT2}, s{sRB}, 3")
        P.I(f"s_sub_u32 s{sT3}, s{sT2}, 8")
        P.I(f"s_and_b32 s{sT4}, s{sRB}, 3")
        P.I(f"s_cmp_eq_u32 s{sT4}, 0")
        P.I(f"s_cselect_b32 s{sT3}, s{sT1}, s{sT3}")
        P.I(f"s_cmp_eq_u32 s{sRB}, 0")
        P.I(f"s_cselect_b32 s{sT3}, s{sT2}, s{sT3}")
        if not first:
            P.I(f"v_add_u32 v251, s{sT2}, v250")
            P.I(f"v_add_u32 v250, s{sT3}, v250")
            P.I(f"v_and_b32 v249, 8, v{vLANE}")
            P.I(f"v_cmp_eq_u32 vcc, 0, v249")
            P.I(f"v_cndmask_b32 v251, v250, v251, vcc")
        else:
            P.I(f"s_lshr_b32 s{sT1}, s{sRB}, 2")
            P.I(f"s_lshl_b32 s{sT1}, s{sT1}, 5")
            P.I(f"v_and_b32 v251, 31, v{vLANE}")
            P.I(f"v_add_u32 v251, s{sT1}, v251")
            P.I(f"v_add_u32 v250, s{sT3}, v250")
            P.I(f"v_cmp_gt_u32 vcc, 32, v{vLANE}")
            P.I(f"v_cndmask_b32 v251, v250, v251, vcc")
        P.I(f"v_lshlrev_b32 v251, 2, v251")
        return 251
    def poll_rb(self):
        P = self.P
        P.I(f"v_and_b32 v251, 7, v{vLANE}")
        P.I(f"s_lshl_b32 s{sT1}, s{sRB}, 3")
        P.I(f"v_add_u32 v251, s{sT1}, v251")
        P.I(f"v_lshlrev_b32 v251, 2, v251")
        return 251
    def poll_pair(self):
        P = self.P
        P.I(f"v_and_b32 v251, 15, v{vLANE}")
        P.I(f"s_lshr_b32 s{sT1}, s{sRB}, 1")
        P.I(f"s_lshl_b32 s{sT1}, s{sT1}, 4")
        P.I(f"v_add_u32 v251, s{sT1}, v251")
        P.I(f"v_lshlrev_b32 v251, 2, v251")
        return 251

    def touch16(self, S, va, vd, base_const, use_l2m=True, extra_l2m=0):
        S.I(f"v_lshrrev_b32 v{va}, 4, v{vLANE}")
        S.I(f"v_lshlrev_b32 v{va}, 14, v{va}")
        S.I(f"v_and_b32 v{vd}, 15, v{vLANE}")
        S.I(f"v_lshl_add_u32 v{va}, v{vd}, 7, v{va}")
        S.I(f"s_lshl_b32 s{sT1}, s{sRB}, 16")
        S.I(f"s_lshl_b32 s{sT2}, s{sC}, 11")
        S.I(f"s_add_u32 s{sT1}, s{sT1}, s{sT2}")
        S.I(f"s_add_u32 s{sT1}, s{sT1}, s{sL2M}")
        S.I(f"s_add_u32 s{sT1}, s{sT1}, {base_const}")
        S.I(f"buffer_load_dword v{vd}, v{va}, {srd(S_WS)}, s{sT1} offen")
    def touch32(self, S, va, vd):
        S.I(f"v_lshrrev_b32 v{va}, 5, v{vLANE}")
        S.I(f"v_lshlrev_b32 v{va}, 15, v{va}")
        S.I(f"v_and_b32 v{vd}, 31, v{vLANE}")
        S.I(f"v_lshl_add_u32 v{va}, v{vd}, 7, v{va}")
        S.I(f"s_lshl_b32 s{sT1}, s{sRB}, 16")
        S.I(f"s_lshl_b32 s{sT2}, s{sC}, 12")
        S.I(f"s_add_u32 s{sT1}, s{sT1}, s{sT2}")
        S.I(f"s_add_u32 s{sT1}, s{sT1}, s{sL2M}")
        S.I(f"s_add_u32 s{sT1}, s{sT1}, {XMID}")
        S.I(f"buffer_load_dword v{vd}, v{va}, {srd(S_WS)}, s{sT1} offen")
    def touch_stats(self, S, va, vd, base_const):
        S.I(f"v_and_b32 v{va}, 31, v{vLANE}")
        S.I(f"v_lshlrev_b32 v{va}, 7, v{va}")
        S.I(f"s_lshl_b32 s{sT1}, s{sRB}, 12")
        S.I(f"s_add_u32 s{sT1}, s{sT1}, s{sLST}")
        S.I(f"s_add_u32 s{sT1}, s{sT1}, {base_const}")
        S.I(f"buffer_load_dword v{vd}, v{va}, {srd(S_WS)}, s{sT1} offen")
    def touch_h(self, S, va, vb, vd):
        S.I(f"s_lshr_b32 s{sT1}, s{sRB}, 1")
        S.I(f"s_mul_i32 s{sT1}, s{sT1}, {8 * 43}")
        S.I(f"s_add_u32 s{sT1}, s{sT1}, s{sP0}")
        S.I(f"s_lshl_b32 s{sT1}, s{sT1}, 10")
        S.I(f"s_add_u32 s{sT1}, s{sT1}, s{sLH}")
        S.I(f"s_add_u32 s{sT1}, s{sT1}, {HBUF}")
        for e in range(3):
            S.I(f"v_add_u32 v{va}, {64 * e}, v{vLANE}")
            S.I(f"v_mul_u32_u24 v{vb}, 43691, v{va}")
            S.I(f"v_lshrrev_b32 v{vb}, 20, v{vb}")
            S.I(f"v_mul_u32_u24 v{vd + e}, 24, v{vb}")
            S.I(f"v_sub_u32 v{va}, v{va}, v{vd + e}")
            S.I(f"v_lshlrev_b32 v{va}, 7, v{va}")
            S.I(f"v_mul_u32_u24 v{vb}, {43 * 1024}, v{vb}")
            S.I(f"v_add_u32 v{va}, v{va}, v{vb}")
            S.I(f"buffer_load_dword v{vd + e}, v{va}, {srd(S_WS)}, s{sT1} offen")

    def prologue(self):
        P = self.P; L = self.L
        P.I("s_cmp_ge_u32 s2, 256")
        P.I("s_cbranch_scc1 L_end")
        P.I("s_load_dwordx16 s[64:79], s[0:1], 0")
        P.I("s_load_dwordx4 s[84:87], s[0:1], 64")
        P.I(f"s_and_b32 s{sT0}, s2, 7")
        P.I(f"s_lshr_b32 s{sT1}, s2, 3")
        P.I(f"s_lshl_b32 s{sRB}, s{sT0}, 2")
        P.I(f"s_lshr_b32 s{sT2}, s{sT1}, 3")
        P.I(f"s_add_u32 s{sRB}, s{sRB}, s{sT2}")
        P.I(f"s_and_b32 s{sC}, s{sT1}, 7")
        P.I(f"v_lshrrev_b32 v1, 6, v0")
        P.I(f"v_and_b32 v{vLANE}, 63, v0")
        P.I(f"v_readfirstlane_b32 s{sW}, v1")
        P.I(f"v_lshlrev_b32 v{vL16}, 4, v{vLANE}")
        P.I(f"s_lshr_b32 s{sISL}, s{sW}, 2")
        P.I(f"s_and_b32 s{sW}, s{sW}, 3")
        P.wait_lg_all()
        def mk(b, ptr, size):
            P.I(f"s_mov_b32 s{b}, s{ptr}")
            P.I(f"s_and_b32 s{b+1}, s{ptr+1}, 0xffff")
            P.I(f"s_mov_b32 s{b+2}, {size}")
            P.I(f"s_mov_b32 s{b+3}, 0x20000")
        mk(S_X0, 64, 2048 * 512 * 2)
        mk(S_WQKV, 66, 512 * 1536 * 2)
        mk(S_WO, 68, 512 * 512 * 2)
        mk(S_WD, 76, 1376 * 512 * 2)
        mk(S_OUT, 78, 2048 * 512 * 2)
        mk(S_DBG, 84, 256)
        mk(S_WS, 86, WS_SIZE)
        P.I(f"s_cmp_lt_u32 s{sW}, 2")
        P.I(f"s_cselect_b32 s{S_W3}, s72, s74")
        P.I(f"s_cselect_b32 s{sT0}, s73, s75")
        P.I(f"s_and_b32 s{S_W3+1}, s{sT0}, 0xffff")
        P.I(f"s_mov_b32 s{S_W3+2}, {512 * 1376 * 2}")
        P.I(f"s_mov_b32 s{S_W3+3}, 0x20000")
        if self.tlbwarm:
            T = 28
            P.I(f"s_lshr_b32 s{sT0}, s2, 3")
            P.I(f"s_lshl_b32 s{sT0}, s{sT0}, 3")
            P.I(f"s_lshl_b32 s{sT1}, s{sISL}, 2")
            P.I(f"s_add_u32 s{sT0}, s{sT0}, s{sT1}")
            P.I(f"s_add_u32 s{sT0}, s{sT0}, s{sW}")
            P.I(f"s_and_b32 s{sT0}, s{sT0}, 63")
            P.I(f"s_mov_b32 s{T}, s{S_WS}")
            P.I(f"s_mov_b32 s{T + 1}, s{S_WS + 1}")
            P.I(f"s_lshl_b32 s{sT1}, s{sT0}, 20")
            for lo, (bl, bh) in ((36, (S_X0, S_X0 + 1)), (38, (S_WQKV, S_WQKV + 1)), (40, (S_WO, S_WO + 1)), (41, (72, 73)), (43, (74, 75)), (45, (S_WD, S_WD + 1)), (47, (S_OUT, S_OUT + 1)), (49, (S_WS, S_WS + 1))):
                P.I(f"s_sub_u32 s{sT2}, s{sT0}, {lo}")
                P.I(f"s_lshl_b32 s{sT2}, s{sT2}, 20")
                P.I(f"s_cmp_ge_u32 s{sT0}, {lo}")
                P.I(f"s_cselect_b32 s{T}, s{bl}, s{T}")
                P.I(f"s_cselect_b32 s{T + 1}, s{bh}, s{T + 1}")
                P.I(f"s_cselect_b32 s{sT1}, s{sT2}, s{sT1}")
            P.I(f"s_and_b32 s{T + 1}, s{T + 1}, 0xffff")
            P.I(f"s_mov_b32 s{T + 2}, 0x2400000")
            P.I(f"s_mov_b32 s{T + 3}, 0x20000")
            P.I(f"v_mov_b32 v14, 0")
            P.I(f"s_mov_b64 exec, 1")
            P.I(f"buffer_load_dword v13, v14, {srd(T)}, s{sT1} offen")
            P.I(f"s_mov_b64 exec, -1")
            P.vmq = []
        P.I(f"s_mul_i32 s{sW3072}, s{sW}, 3072")
        P.I(f"s_lshl_b32 s{sW1024}, s{sW}, 10")
        P.I(f"s_mul_i32 s{sW5120}, s{sW}, 5120")
        P.I(f"s_mov_b32 s{sONES}, 0x3f803f80")
        P.I(f"s_lshl_b32 s{sRT}, s{sRB}, 2")
        P.I(f"s_add_u32 s{sRT}, s{sRT}, s{sW}")
        for r in (sLAYER, sL2M, sLH, sLST, sLFL):
            P.I(f"s_mov_b32 s{r}, 0")
        P.I(f"s_and_b32 s{sT0}, s{sRB}, 1")
        P.I(f"s_lshl_b32 s{sT0}, s{sT0}, 3")
        P.I(f"s_add_u32 s{sT0}, s{sT0}, s{sC}")
        P.I(f"s_mul_i32 s{sT1}, s{sT0}, 3")
        P.I(f"s_lshl_b32 s{sT2}, s{sT0}, 1")
        P.I(f"s_add_u32 s{sT2}, s{sT2}, 11")
        P.I(f"s_cmp_le_u32 s{sT0}, 10")
        P.I(f"s_cselect_b32 s{sP0}, s{sT1}, s{sT2}")
        P.I(f"s_cselect_b32 s{sNP}, 3, 2")
        P.I(f"s_lshr_b32 s{sT0}, s{sRB}, 1")
        P.I(f"s_lshl_b32 s{sT0}, s{sT0}, 2")
        P.I(f"s_add_u32 s{sR32}, s{sT0}, s{sW}")
        P.I(f"s_lshl_b32 s{sT1}, s{sRB}, 2")
        P.I(f"s_sub_u32 s{sT2}, s{sT1}, 1")
        P.I(f"s_max_i32 s{sXT0}, s{sT2}, 0")
        if self.codepf:
            P.raw("    s_getpc_b64 s[94:95]")
            P.raw("L_pcref:")
            P.I(f"s_lshr_b32 s{sT0}, s2, 3")
            P.I(f"s_lshl_b32 s{sT0}, s{sT0}, 3")
            P.I(f"s_lshl_b32 s{sT1}, s{sISL}, 2")
            P.I(f"s_add_u32 s{sT0}, s{sT0}, s{sT1}")
            P.I(f"s_add_u32 s{sT0}, s{sT0}, s{sW}")
            P.I(f"s_lshl_b32 s{sT0}, s{sT0}, 8")
            P.I(f"v_lshlrev_b32 v12, 7, v{vLANE}")
            P.I(f"v_add_u32 v12, s{sT0}, v12")
            P.I(f"v_min_u32 v12, {self.codepf}, v12")
            P.I(f"s_mov_b64 exec, 3")
            P.raw("    global_load_dword v13, v12, s[94:95]")
            P.I(f"s_mov_b64 exec, -1")
        P.I(f"s_getreg_b32 s{sXCC}, hwreg(HW_REG_XCC_ID, 0, 4)")
        P.I(f"s_mov_b32 s{sFAST}, 0")
        P.I(f"s_and_b32 s{sT0}, s{sRT}, 15")
        P.I(f"s_cmp_eq_u32 s{sT0}, 15")
        P.I(f"s_cselect_b32 s{sHALO}, 1, 0")
        P.I(f"s_cmp_lg_u32 s{sISL}, 0")
        P.I(f"s_cbranch_scc1 L_loader")
        a, b, c_ = 20, 21, 22
        L.I(f"v_lshrrev_b32 v{a}, 3, v{vLANE}")
        L.I(f"v_and_b32 v{b}, 6, v{a}")
        L.I(f"v_and_b32 v{c_}, 7, v{vLANE}")
        L.I(f"v_xor_b32 v{c_}, v{c_}, v{b}")
        L.I(f"v_lshlrev_b32 v{c_}, 4, v{c_}")
        L.I(f"s_lshl_b32 s{sT0}, s{sC}, 7")
        L.I(f"v_add_u32 v{c_}, s{sT0}, v{c_}")
        L.I(f"s_lshl_b32 s{sT1}, s{sW}, 3")
        L.I(f"v_add_u32 v{a}, s{sT1}, v{a}")
        L.I(f"v_mul_u32_u24 v{b}, 3072, v{a}")
        L.I(f"v_add_u32 v{vW1OFF}, v{b}, v{c_}")
        L.I(f"v_lshlrev_b32 v{b}, 10, v{a}")
        L.I(f"v_add_u32 v{vW2OFF}, v{b}, v{c_}")
        L.I(f"v_add_u32 v{vX1OFF}, s{sW1024}, v{vL16}")
        L.I(f"v_add_u32 v{vLONE}, s{sW5120}, v{vL16}")
        for j in range(4):
            L.I(f"v_mov_b32 v{vLONE + 2 + j}, 0x3f803f80")
        L.I(f"s_mov_b32 s{sMI0}, 0x00010001")
        L.I(f"s_mov_b32 s{sMI0 + 1}, 0x00010001")
        L.I(f"s_mov_b32 s{S_NULL}, s{S_WS}")
        L.I(f"s_mov_b32 s{S_NULL + 1}, s{S_WS + 1}")
        L.I(f"s_mov_b32 s{S_NULL + 2}, 0")
        L.I(f"s_mov_b32 s{S_NULL + 3}, 0x20000")
        L.I(f"v_mov_b32 v{vZERO}, 0")
        for r in (45, 50, 54, 115):
            L.I(f"v_mov_b32 v{r}, 0")
        L.I(f"v_lshrrev_b32 v{a}, 4, v{vLANE}")
        L.I(f"v_lshlrev_b32 v{a}, 10, v{a}")
        L.I(f"v_and_b32 v{b}, 15, v{vLANE}")
        L.I(f"v_lshl_add_u32 v{a}, v{b}, 4, v{a}")
        L.I(f"s_lshl_b32 s{sT0}, s{sW}, 8")
        L.I(f"v_add_u32 v{a}, s{sT0}, v{a}")
        L.I(f"s_lshl_b32 s{sT1}, s{sRB}, 16")
        L.I(f"s_sub_u32 s{sT1}, s{sT1}, 16384")
        L.I(f"s_lshl_b32 s{sT2}, s{sXT0}, 14")
        for j in range(20):
            if j < 4:
                L.I(f"s_add_u32 s{sBG}, s{sT2}, {j * 4096}")
            else:
                L.I(f"s_add_u32 s{sBG}, s{sT1}, {j * 4096}")
            L.I(f"buffer_load_dwordx4 {V(vX0 + 4 * j, 4)}, v{a}, {srd(S_X0)}, s{sBG} offen")
        for ks in range(6):
            self.ld_w1(ks)
        self.shuffle('issue')
        self.lts(10)
        L.I(f"v_bfe_u32 v{a}, v{vLANE}, 2, 2")
        L.I(f"v_mul_u32_u24 v{a}, 5120, v{a}")
        L.I(f"v_lshrrev_b32 v{b}, 4, v{vLANE}")
        L.I(f"v_lshl_add_u32 v{a}, v{b}, 4, v{a}")
        L.I(f"v_and_b32 v{b}, 1, v{vLANE}")
        L.I(f"v_lshl_add_u32 v{a}, v{b}, 9, v{a}")
        L.I(f"v_bfe_u32 v{b}, v{vLANE}, 1, 1")
        L.I(f"v_lshl_add_u32 v{a}, v{b}, 3, v{a}")
        L.I(f"s_and_b32 s{sT0}, s{sW}, 1")
        L.I(f"s_cmp_eq_u32 s{sT0}, 0")
        L.I(f"s_cselect_b32 s{sT0}, 33, 27")
        L.I(f"s_lshl_b32 s{sT0}, s{sT0}, 12")
        L.I(f"v_add_u32 v{vXW}, s{sT0}, v{a}")
        lx = self.newlab("x0late")
        L.I(f"s_cmp_gt_u32 s{sW}, 1")
        L.I(f"s_cbranch_scc1 {lx}")
        L.optional += 1
        self.x0_to_lds()
        L.optional -= 1
        L.label(lx)
        L.fence_hazards(2)
        self.lts(11)
        ln = self.newlab("lnn")
        L.I(f"s_cmp_lg_u32 s{sW}, 2")
        L.I(f"s_cbranch_scc1 {ln}")
        L.optional += 1
        lp = self.newlab("lnp"); ld = self.newlab("lnd")
        L.I(f"s_mov_b32 s{sCNT}, 0")
        L.label(lp)
        L.I(f"buffer_load_dword v{b}, v{vZERO}, {srd(S_DBG)}, 0 offen sc1")
        L.raw("    s_waitcnt vmcnt(0)")
        L.I(f"v_readfirstlane_b32 s{sNONCE}, v{b}")
        L.I(f"s_cmp_lg_u32 s{sNONCE}, 0")
        L.I(f"s_cbranch_scc1 {ld}")
        L.I(f"s_add_u32 s{sCNT}, s{sCNT}, 1")
        L.I(f"s_cmp_lt_u32 s{sCNT}, 200000")
        L.I(f"s_cbranch_scc1 {lp}")
        L.label(ld)
        L.I(f"v_mov_b32 v{c_}, {MISC + 4096}")
        L.I(f"ds_write_b32 v{c_}, v{b} offset:4")
        L.optional -= 1
        L.label(ln)
        L.fence_hazards(2)
        L.raw("    s_waitcnt lgkmcnt(0)")
        L.vmq = []; L.lgq = []
        l = self.newlab("nonce")
        P.I(f"s_or_b32 s{sT0}, s2, s{sW}")
        P.I(f"s_cmp_lg_u32 s{sT0}, 0")
        P.I(f"s_cbranch_scc1 {l}")
        P.optional += 1
        P.I(f"s_memrealtime {sp(sTS)}")
        P.raw("    s_waitcnt lgkmcnt(0)")
        P.I(f"s_or_b32 s{sT1}, s{sTS}, 16")
        P.I(f"s_andn2_b32 s{sT1}, s{sT1}, 15")
        P.I(f"v_mov_b32 v20, s{sT1}")
        P.I(f"v_mov_b32 v21, 0")
        P.I(f"s_mov_b64 exec, 1")
        P.I(f"buffer_store_dword v20, v21, {srd(S_DBG)}, 0 offen sc1")
        P.I(f"s_mov_b64 exec, -1")
        P.optional -= 1
        P.label(l)
        P.fence_hazards(2)
        P.I(f"v_and_b32 v{a}, 15, v{vLANE}")
        P.I(f"v_lshlrev_b32 v{a}, 10, v{a}")
        P.I(f"v_lshrrev_b32 v{b}, 4, v{vLANE}")
        P.I(f"v_lshlrev_b32 v{b}, 3, v{b}")
        P.I(f"v_add_u32 v{a}, v{a}, v{b}")
        P.I(f"s_lshl_b32 s{sT0}, s{sRT}, 14")
        P.I(f"s_lshl_b32 s{sT1}, s{sC}, 7")
        P.I(f"s_add_u32 s{sT0}, s{sT0}, s{sT1}")
        for T in range(4):
            P.I(f"buffer_load_dwordx2 {V(vRES + 2 * T, 2)}, v{a}, {srd(S_X0)}, s{sT0} offen offset:{T * 32}")
        P.I(f"v_mov_b32 v248, 0")
        if self.prefetch:
            for base, ptr in ((24, 72), (28, 74)):
                P.I(f"s_mov_b32 s{base}, s{ptr}")
                P.I(f"s_and_b32 s{base + 1}, s{ptr + 1}, 0xffff")
                P.I(f"s_mov_b32 s{base + 2}, {512 * 1376 * 2}")
                P.I(f"s_mov_b32 s{base + 3}, 0x20000")
            P.I(f"s_lshl_b32 s{sT0}, s2, 2")
            P.I(f"s_add_u32 s{sT0}, s{sT0}, s{sW}")
            n = 0
            for sr, chunk in ((S_WQKV, 1536), (24, 1376), (28, 1376), (S_WD, 1376), (S_WO, 512)):
                P.I(f"s_mul_i32 s{sT1}, s{sT0}, {chunk}")
                for o in range(0, chunk, 1024):
                    P.raw(f"    buffer_load_dwordx4 v[200:203], v{vL16}, {srd(sr)}, s{sT1} offen offset:{o}")
                    P.vmq.append({'regs': set(), 'tag': None, 'definite': True})
        if self.earlytouch:
            for wv in (1, 2, 3):
                lsk = self.newlab("et")
                P.I(f"s_cmp_lg_u32 s{sW}, {wv}")
                P.I(f"s_cbranch_scc1 {lsk}")
                P.optional += 1
                if wv == 3:
                    P.I(f"s_mov_b32 s{sL2M}, 0x200000")
                    P.I(f"s_mov_b32 s{sLH}, 0x600000")
                    P.I(f"s_mov_b32 s{sLST}, 0x20000")
                if wv in (1, 3):
                    self.touch16(P, 210, 211, OBUF)
                    self.touch32(P, 212, 213)
                    self.touch_stats(P, 214, 215, STMID)
                if wv in (2, 3):
                    self.touch_h(P, 216, 217, 218)
                if wv == 2:
                    self.touch16(P, 222, 223, XIN + 0x200000)
                    self.touch_stats(P, 224, 225, STIN + 0x20000)
                if wv == 3:
                    P.I(f"s_mov_b32 s{sL2M}, 0")
                    P.I(f"s_mov_b32 s{sLH}, 0")
                    P.I(f"s_mov_b32 s{sLST}, 0")
                P.optional -= 1
                P.label(lsk)
                P.fence_hazards(2)
        d = 23
        P.I(f"v_and_b32 v{a}, 15, v{vLANE}")
        P.I(f"v_lshrrev_b32 v{b}, 4, v{vLANE}")
        P.I(f"v_lshlrev_b32 v{b}, 2, v{b}")
        for r in range(4):
            P.I(f"v_add_u32 v{c_}, {r}, v{b}")
            P.I(f"v_cmp_ge_u32 {sp(sMCUR + 2 * r)}, v{a}, v{c_}")
        P.I(f"v_and_b32 v{d}, 1, v{a}")
        P.I(f"v_add_u32 v{c_}, v{b}, v{d}")
        P.I(f"v_cmp_ge_u32 {sp(sM01)}, v{a}, v{c_}")
        P.I(f"v_add_u32 v{c_}, 2, v{c_}")
        P.I(f"v_cmp_ge_u32 {sp(sM23)}, v{a}, v{c_}")
        P.I(f"v_cmp_eq_u32 {sp(sMI0)}, 0, v{a}")
        P.I(f"s_mov_b64 {sp(sMLO16)}, 0xffff")
        P.I(f"s_mov_b32 s{sK3}, {hex(f2u(GC0 * 0.044715))}")
        P.I(f"s_mov_b32 s{sK3+1}, {hex(f2u(GC0 * 0.044715))}")
        P.I(f"s_mov_b32 s{sONEF}, 1.0")
        P.I(f"s_mov_b32 s{sONEF+1}, 1.0")

    def fs_lanes(self):
        L = self.L
        L.I(f"s_lshl_b32 s{sT1}, s{sC}, 4")
        L.I(f"s_add_u32 s{sT1}, s{sT1}, 344")
        L.I(f"v_add_u32 v45, s{sT1}, v{vLANE}")
        L.I(f"s_lshl_b32 s{sT1}, s{sP0}, 3")
        L.I(f"s_sub_u32 s{sT1}, s{sT1}, 16")
        L.I(f"v_min_u32 v47, 39, v{vLANE}")
        L.I(f"v_add_u32 v47, s{sT1}, v47")
        L.I(f"v_cmp_lt_u32 vcc, 15, v{vLANE}")
        L.I(f"v_cndmask_b32 v45, v45, v47, vcc")
        L.I(f"v_lshlrev_b32 v45, 2, v45")
        L.I(f"s_mul_i32 s{sT1}, s{sC}, 43")
        L.I(f"s_add_u32 s{sT1}, s{sT1}, {344 + 128}")
        L.I(f"v_min_u32 v115, 42, v{vLANE}")
        L.I(f"v_add_u32 v115, s{sT1}, v115")
        L.I(f"v_lshlrev_b32 v115, 2, v115")

    def w4_ready(self, part):
        L = self.L
        lsk = self.newlab("w4ok")
        L.I(f"s_cmp_lg_u32 s{sLAYER}, 0")
        L.I(f"s_cbranch_scc1 {lsk}")
        L.optional += 1
        if part == 'issue':
            L.I(f"s_mov_b32 s{sT1}, {FLAGS3}")
            L.raw(f"    buffer_load_dword v46, v115, {srd(S_WS)}, s{sT1} offen sc1")
        else:
            lp = self.newlab("w4p")
            L.raw("    s_waitcnt vmcnt(6)")
            L.I(f"s_mov_b32 s{sCNT}, 0")
            L.label(lp)
            L.I(f"v_cmp_ne_u32 vcc, s{sNONCE}, v46")
            L.I(f"s_cmp_eq_u64 vcc, 0")
            L.I(f"s_cbranch_scc1 {lsk}")
            L.I(f"s_add_u32 s{sCNT}, s{sCNT}, 1")
            L.I(f"s_cmp_ge_u32 s{sCNT}, 200000")
            L.I(f"s_cbranch_scc1 {lsk}")
            L.I(f"s_mov_b32 s{sT1}, {FLAGS3}")
            L.raw(f"    buffer_load_dword v46, v115, {srd(S_WS)}, s{sT1} offen sc1")
            L.raw("    s_waitcnt vmcnt(0)")
            L.I(f"s_branch {lp}")
        L.optional -= 1
        L.label(lsk)
        L.fence_hazards(2)

    def l2_pull(self, base_s, part_s_expr, nlines_per_wg, srd_b=None):
        L = self.L
        per = nlines_per_wg // 4
        part_s_expr(L, sT1)
        L.I(f"s_lshl_b32 s{sT1}, s{sT1}, 2")
        L.I(f"s_add_u32 s{sT1}, s{sT1}, s{sW}")
        L.I(f"s_mul_i32 s{sT1}, s{sT1}, {per * 128}")
        L.I(f"s_add_u32 s{sT1}, s{sT1}, s{base_s}")
        L.I(f"v_lshlrev_b32 v116, 7, v{vLANE}")
        n = 0
        while n < per:
            k = min(64, per - n)
            if k < 64:
                L.I(f"v_min_u32 v117, {k - 1}, v{vLANE}")
                L.I(f"v_lshlrev_b32 v117, 7, v117")
                va = 117
            else:
                va = 116
            if n:
                L.I(f"s_add_u32 s{sT1}, s{sT1}, 8192")
            L.raw(f"    buffer_load_dword v{vDUM}, v{va}, {srd(S_WS)}, s{sT1} offen")
            L.vmq.append({'regs': set(), 'tag': None, 'definite': L.optional == 0})
            n += k

    def x0_to_lds(self):
        L = self.L
        L.I(f"v_cmp_gt_u32 vcc, 16, v{vLANE}")
        for j in range(20):
            if j == 0:
                for r in range(4):
                    L.I(f"v_cndmask_b32 v{vX0 + r}, v{vX0 + r}, v{vLONE + 2}, vcc")
            off = (j >> 2) * 1024 + (j & 3) * 64
            L.I(f"ds_write_b64 v{vXW}, {V(vX0 + 4 * j, 2)} offset:{off}")
            L.I(f"ds_write_b64 v{vXW}, {V(vX0 + 4 * j + 2, 2)} offset:{off + 256}")
        L.raw("    s_waitcnt lgkmcnt(0)")

    def w1_touch(self):
        L = self.L
        b, c_ = 21, 22
        L.I(f"s_and_b32 s{sT0}, s{sRB}, 3")
        L.I(f"s_lshl_b32 s{sT0}, s{sT0}, 2")
        L.I(f"s_add_u32 s{sT0}, s{sT0}, s{sW}")
        L.I(f"s_mul_i32 s{sT0}, s{sT0}, 96")
        L.I(f"s_lshl_b32 s{sT1}, s{sC}, 7")
        b, c_ = 116, 117
        for e in range(2):
            L.I(f"v_and_b32 v{b}, {63 if e == 0 else 31}, v{vLANE}")
            L.I(f"v_add_u32 v{b}, s{sT0}, v{b}")
            if e: L.I(f"v_add_u32 v{b}, 64, v{b}")
            L.I(f"v_mul_u32_u24 v{c_}, 21846, v{b}")
            L.I(f"v_lshrrev_b32 v{c_}, 16, v{c_}")
            L.I(f"v_mul_u32_u24 v118, 3, v{c_}")
            L.I(f"v_sub_u32 v{b}, v{b}, v118")
            L.I(f"v_lshlrev_b32 v{b}, 10, v{b}")
            L.I(f"v_mul_u32_u24 v{c_}, 3072, v{c_}")
            L.I(f"v_add_u32 v{b}, v{b}, v{c_}")
            L.raw(f"    buffer_load_dword v{vDUM}, v{b}, {srd(S_WQKV)}, s{sT1} offen")
            L.vmq.append({'regs': set(), 'tag': None, 'definite': L.optional == 0})

    def shuffle(self, part):
        L = self.L
        STG = 18 * PAGE
        SRC = S_W3
        a, b, c_ = 24, 25, 26
        F0 = 84
        ACC, ONE = 64, 80
        if part == 'issue':
            lA = self.newlab("shA"); lB = self.newlab("shB"); lE = self.newlab("shE")
            L.I(f"s_lshl_b32 s{sW2B}, s{sC}, 16")
            L.I(f"s_add_u32 s{sW2B}, s{sW2B}, {W2S}")
            L.I(f"s_lshl_b32 s{sW3B}, s{sP0}, 16")
            L.I(f"s_add_u32 s{sW3B}, s{sW3B}, {W3S}")
            L.I(f"s_mul_i32 s{sW4B}, s{sC}, {43 * 4096}")
            L.I(f"s_add_u32 s{sW4B}, s{sW4B}, {W4S}")
            L.optional += 1
            L.I(f"s_cmp_lt_u32 s2, 86")
            L.I(f"s_cbranch_scc1 {lA}")
            L.I(f"s_cmp_lt_u32 s2, 204")
            L.I(f"s_cbranch_scc1 {lB}")
            L.I(f"s_branch {lE}")
            L.label(lA)
            L.I(f"s_and_b32 s{sT0}, s2, 1")
            L.I(f"s_cmp_eq_u32 s{sT0}, 0")
            L.I(f"s_cselect_b32 s{SRC}, s72, s74")
            L.I(f"s_cselect_b32 s{sT1}, s73, s75")
            L.I(f"s_and_b32 s{SRC + 1}, s{sT1}, 0xffff")
            L.I(f"s_mov_b32 s{SRC + 2}, {512 * 1376 * 2}")
            L.I(f"s_mov_b32 s{SRC + 3}, 0x20000")
            L.I(f"v_lshrrev_b32 v{a}, 2, v{vLANE}")
            L.I(f"v_mul_u32_u24 v{a}, 2752, v{a}")
            L.I(f"v_and_b32 v{b}, 3, v{vLANE}")
            L.I(f"v_lshl_add_u32 v{a}, v{b}, 4, v{a}")
            L.I(f"s_lshr_b32 s{sSH1}, s2, 1")
            L.I(f"s_lshl_b32 s{sT1}, s{sSH1}, 6")
            L.I(f"s_mul_i32 s{sT2}, s{sW}, {32 * 2752}")
            L.I(f"s_add_u32 s{sT1}, s{sT1}, s{sT2}")
            L.I(f"s_lshl_b32 s{sT2}, s{sW}, 11")
            for i in range(4):
                for half in range(2):
                    L.I(f"s_add_u32 m0, s{sT2}, {STG + i * 8192 + half * 1024}")
                    L.I(f"s_add_u32 s{sBG}, s{sT1}, {(i * 128 + half * 16) * 2752}")
                    L.I(f"buffer_load_dwordx4 v{a}, {srd(SRC)}, s{sBG} offen lds")
            L.I(f"v_lshrrev_b32 v{b}, 5, v{vLANE}")
            L.I(f"v_bfe_u32 v{c_}, v{vLANE}, 2, 2")
            L.I(f"v_lshl_add_u32 v{b}, v{b}, 2, v{c_}")
            L.I(f"v_lshlrev_b32 v{b}, 6, v{b}")
            L.I(f"v_bfe_u32 v{c_}, v{vLANE}, 4, 1")
            L.I(f"v_lshl_add_u32 v{b}, v{c_}, 5, v{b}")
            L.I(f"v_and_b32 v{c_}, 3, v{vLANE}")
            L.I(f"v_lshl_add_u32 v{b}, v{c_}, 3, v{b}")
            L.I(f"s_add_u32 s{sT2}, s{sT2}, {STG}")
            L.I(f"v_add_u32 v{b}, s{sT2}, v{b}")
            L.I(f"s_lshl_b32 s{sT1}, s{sSH1}, 16")
            L.I(f"s_and_b32 s{sT0}, s2, 1")
            L.I(f"s_lshl_b32 s{sT0}, s{sT0}, 10")
            L.I(f"s_add_u32 s{sT1}, s{sT1}, s{sT0}")
            L.I(f"s_lshl_b32 s{sT0}, s{sW}, 12")
            L.I(f"s_add_u32 s{sT1}, s{sT1}, s{sT0}")
            L.I(f"s_add_u32 s{sSH1}, s{sT1}, {W3S}")
            L.I(f"s_branch {lE}")
            L.label(lB)
            L.I(f"s_sub_u32 s{sT0}, s2, 86")
            L.I(f"s_lshl_b32 s{sT0}, s{sT0}, 2")
            L.I(f"s_add_u32 s{sT0}, s{sT0}, s{sW}")
            L.I(f"s_sub_u32 s{sT1}, s{sT0}, 128")
            L.I(f"s_mul_i32 s{sT2}, s{sT1}, 1525")
            L.I(f"s_lshr_b32 s{sT2}, s{sT2}, 16")
            L.I(f"s_mul_i32 s{sT3}, s{sT2}, 43")
            L.I(f"s_sub_u32 s{sT3}, s{sT1}, s{sT3}")
            L.I(f"s_lshr_b32 s{sT4}, s{sT0}, 4")
            L.I(f"s_and_b32 s{sT5}, s{sT0}, 15")
            L.I(f"s_lshl_b32 s{sSH1}, s{sT0}, 12")
            L.I(f"s_add_u32 s{sSH1}, s{sSH1}, {W2S}")
            L.I(f"s_lshl_b32 s{sSH2}, s{sT1}, 12")
            L.I(f"s_add_u32 s{sSH2}, s{sSH2}, {W4S}")
            L.I(f"s_cmp_lt_u32 s{sT0}, 128")
            L.I(f"s_cselect_b32 s{sT2}, s{sT4}, s{sT2}")
            L.I(f"s_cselect_b32 s{sT3}, s{sT5}, s{sT3}")
            L.I(f"s_cselect_b32 s{sSH1}, s{sSH1}, s{sSH2}")
            L.I(f"s_cselect_b32 s{SRC}, s{S_WO}, s{S_WD}")
            L.I(f"s_cselect_b32 s{SRC + 1}, s{S_WO + 1}, s{S_WD + 1}")
            L.I(f"s_cselect_b32 s{SRC + 2}, s{S_WO + 2}, s{S_WD + 2}")
            L.I(f"s_cselect_b32 s{sSH3}, 10, 11")
            L.I(f"s_cselect_b32 s{sSH4}, 2, 1")
            L.I(f"s_lshl_b32 s{sSH4}, s{sSH4}, 10")
            L.I(f"s_mov_b32 s{SRC + 3}, 0x20000")
            L.I(f"s_lshl_b32 s{sT3}, s{sT3}, 15")
            L.I(f"s_lshl_b32 s{sT2}, s{sT2}, 7")
            L.I(f"s_add_u32 s{sT3}, s{sT3}, s{sT2}")
            L.I(f"v_lshrrev_b32 v{a}, 3, v{vLANE}")
            L.I(f"v_and_b32 v{b}, 6, v{a}")
            L.I(f"v_and_b32 v{c_}, 7, v{vLANE}")
            L.I(f"v_xor_b32 v{c_}, v{c_}, v{b}")
            L.I(f"v_lshlrev_b32 v{c_}, 4, v{c_}")
            L.I(f"v_lshl_add_u32 v{a}, v{a}, 10, v{c_}")
            L.I(f"s_lshl_b32 s{sT2}, s{sW}, 12")
            for j in range(4):
                L.I(f"s_add_u32 m0, s{sT2}, {STG + j * 1024}")
                L.I(f"s_add_u32 s{sBG}, s{sT3}, {j * 8192}")
                L.I(f"buffer_load_dwordx4 v{a}, {srd(SRC)}, s{sBG} offen lds")
            g_, r_, lb, q_ = 56, 57, 58, 59
            L.I(f"v_lshrrev_b32 v{g_}, 4, v{vLANE}")
            L.I(f"v_bfe_u32 v{r_}, v{vLANE}, 2, 2")
            L.I(f"v_and_b32 v{c_}, 1, v{g_}")
            L.I(f"v_lshl_add_u32 v{c_}, v{c_}, 2, v{r_}")
            L.I(f"v_and_b32 v{lb}, 6, v{c_}")
            L.I(f"v_lshlrev_b32 v{c_}, 7, v{c_}")
            L.I(f"v_lshrrev_b32 v{g_}, 1, v{g_}")
            L.I(f"v_lshlrev_b32 v{g_}, s{sSH3}, v{g_}")
            L.I(f"v_add_u32 v{c_}, v{c_}, v{g_}")
            L.I(f"v_and_b32 v{r_}, 1, v{vLANE}")
            L.I(f"v_lshl_add_u32 v{c_}, v{r_}, 3, v{c_}")
            L.I(f"s_add_u32 s{sT2}, s{sT2}, {STG}")
            L.I(f"v_add_u32 v{c_}, s{sT2}, v{c_}")
            L.I(f"v_bfe_u32 v{r_}, v{vLANE}, 1, 1")
            for T in range(4):
                L.I(f"v_xor_b32 v{q_}, {2 * T}, v{lb}")
                L.I(f"v_or_b32 v{q_}, v{q_}, v{r_}")
                L.I(f"v_lshl_add_u32 v{60 + 2 * T}, v{q_}, 4, v{c_}")
                L.I(f"v_add_u32 v{61 + 2 * T}, s{sSH4}, v{60 + 2 * T}")
            L.label(lE)
            L.optional -= 1
            L.fence_hazards(2)
            return
        lA = self.newlab("spA"); lB = self.newlab("spB"); lE = self.newlab("spE")
        L.optional += 1
        L.I(f"s_cmp_lt_u32 s2, 86")
        L.I(f"s_cbranch_scc1 {lA}")
        L.I(f"s_cmp_lt_u32 s2, 204")
        L.I(f"s_cbranch_scc1 {lB}")
        L.I(f"s_branch {lE}")
        L.label(lA)
        for r in range(16):
            L.I(f"v_mov_b32 v{ACC + r}, 0")
        for r in range(4):
            L.I(f"v_mov_b32 v{ONE + r}, 0x3f803f80")
        for i in range(4):
            for u in range(2):
                fr = F0 + 4 * (2 * i + u)
                for half in range(2):
                    L.I(f"ds_read_b64_tr_b16 {V(fr + 2 * half, 2)}, v{b} offset:{i * 8192 + u * 512 + half * 1024}")
        for i in range(4):
            for u in range(2):
                fr = F0 + 4 * (2 * i + u)
                L.I(f"v_mfma_f32_32x32x16_bf16 {V(ACC, 16)}, {V(fr, 4)}, {V(ONE, 4)}, {V(ACC, 16)}")
                L.I(f"s_add_u32 s{sBG}, s{sSH1}, {i * 16384 + u * 2048}")
                L.I(f"buffer_store_dwordx4 {V(fr, 4)}, v{vL16}, {srd(S_WS)}, s{sBG} offen sc1")
        L.I(f"s_lshl_b32 s{sT1}, s2, 2")
        L.I(f"s_add_u32 s{sT1}, s{sT1}, s{sW}")
        L.I(f"s_lshl_b32 s{sT1}, s{sT1}, 7")
        L.I(f"s_add_u32 s{sT1}, s{sT1}, {CSBUF}")
        L.I(f"v_lshrrev_b32 v{a}, 5, v{vLANE}")
        L.I(f"v_lshlrev_b32 v{a}, 6, v{a}")
        L.I(f"s_mov_b32 s{sSH2}, 1")
        L.I(f"s_mov_b32 s{sSH3}, 1")
        L.I(f"s_mov_b64 exec, {sp(sSH2)}")
        for j in range(4):
            L.I(f"buffer_store_dwordx4 {V(ACC + 4 * j, 4)}, v{a}, {srd(S_WS)}, s{sT1} offen offset:{16 * j} sc1")
        L.I(f"s_mov_b64 exec, -1")
        L.I(f"s_branch {lE}")
        L.label(lB)
        for T in range(4):
            L.I(f"ds_read_b64_tr_b16 {V(F0 + 4 * T, 2)}, v{60 + 2 * T}")
            L.I(f"ds_read_b64_tr_b16 {V(F0 + 4 * T + 2, 2)}, v{61 + 2 * T}")
        for T in range(4):
            L.I(f"buffer_store_dwordx4 {V(F0 + 4 * T, 4)}, v{vL16}, {srd(S_WS)}, s{sSH1} offen offset:{T * 1024} sc1")
        L.label(lE)
        L.raw("    s_waitcnt lgkmcnt(0)")
        L.optional -= 1
        L.fence_hazards(4)

    def emit_x(self, layout32, xbase_s, stbase_s, halo_l=None, stats_only=False):
        P = self.P
        a, b, t, a2 = 240, 241, 242, 239
        s1, s1b, s2, s2b = 244, 245, 246, 247
        if not layout32:
            P.I(f"s_lshl_b32 s{sT1}, s{sRT}, 14")
            P.I(f"s_lshl_b32 s{sT2}, s{sC}, 11")
            P.I(f"s_add_u32 s{sT1}, s{sT1}, s{sT2}")
            P.I(f"s_add_u32 s{sT1}, s{sT1}, s{xbase_s}")
            av = vL16; ustride = 1024
        else:
            P.I(f"v_lshrrev_b32 v{a2}, 4, v{vLANE}")
            P.I(f"v_lshlrev_b32 v{a2}, 9, v{a2}")
            P.I(f"v_and_b32 v{b}, 15, v{vLANE}")
            P.I(f"v_lshl_add_u32 v{a2}, v{b}, 4, v{a2}")
            P.I(f"s_lshr_b32 s{sT1}, s{sRT}, 1")
            P.I(f"s_lshl_b32 s{sT1}, s{sT1}, 15")
            P.I(f"s_lshl_b32 s{sT2}, s{sC}, 12")
            P.I(f"s_add_u32 s{sT1}, s{sT1}, s{sT2}")
            P.I(f"s_and_b32 s{sT2}, s{sRT}, 1")
            P.I(f"s_lshl_b32 s{sT2}, s{sT2}, 8")
            P.I(f"s_add_u32 s{sT1}, s{sT1}, s{sT2}")
            P.I(f"s_add_u32 s{sT1}, s{sT1}, s{xbase_s}")
            av = a2; ustride = 2048
        if not stats_only:
            self.stores([f"buffer_store_dwordx4 {V(vRES + 4 * u, 4)}, v{av}, {srd(S_WS)}, s{sT1} offen" + (f" offset:{u * ustride}" if u else "") for u in range(2)])
        for x in (s1, s1b, s2, s2b):
            P.I(f"v_mov_b32 v{x}, 0")
        for j in range(8):
            P.I(f"v_dot2c_f32_bf16 v{s1 if j % 2 == 0 else s1b}, s{sONES}, v{vRES + j}")
            P.I(f"v_dot2c_f32_bf16 v{s2 if j % 2 == 0 else s2b}, v{vRES + j}, v{vRES + j}")
        P.I(f"v_lshlrev_b32 v{a}, 6, v{vLANE}")
        P.I(f"s_lshl_b32 s{sT1}, s{sRT}, 10")
        P.I(f"s_lshl_b32 s{sT2}, s{sC}, 3")
        P.I(f"v_add_f32 v{s1}, v{s1}, v{s1b}")
        P.I(f"v_add_f32 v{s1b}, v{s2}, v{s2b}")
        P.I(f"s_add_u32 s{sT1}, s{sT1}, s{sT2}")
        P.I(f"s_add_u32 s{sT1}, s{sT1}, s{stbase_s}")
        for step in ("16", "32"):
            P.I(f"v_mov_b32 v{t}, v{s1}")
            P.I(f"v_mov_b32 v{t + 1}, v{s1b}")
            P.I(f"s_nop 0")
            P.I(f"v_permlane{step}_swap_b32 v{s1}, v{t}")
            P.I(f"v_permlane{step}_swap_b32 v{s1b}, v{t + 1}")
            P.I(f"v_add_f32 v{s1}, v{s1}, v{t}")
            P.I(f"v_add_f32 v{s1b}, v{s1b}, v{t + 1}")
        P.I(f"s_mov_b64 exec, {sp(sMLO16)}")
        self.stores([f"buffer_store_dwordx2 {V(s1, 2)}, v{a}, {srd(S_WS)}, s{sT1} offen"])
        P.I(f"s_mov_b64 exec, -1")
        if halo_l is not None:
            lh = self.newlab("nohc")
            P.I(f"s_cmp_eq_u32 s{sHALO}, 0")
            P.I(f"s_cbranch_scc1 {lh}")
            P.optional += 1
            P.I(f"s_lshr_b32 s{sT1}, s{sRB}, 2")
            P.I(f"s_lshl_b32 s{sT2}, s{sT1}, 14")
            P.I(f"s_lshl_b32 s{sT3}, s{sC}, 11")
            P.I(f"s_add_u32 s{sT2}, s{sT2}, s{sT3}")
            P.I(f"s_add_u32 s{sT2}, s{sT2}, {XHALO + halo_l * 0x20000}")
            for u in range(2):
                if stats_only: break
                off = f" offset:{u * 1024}" if u else ""
                P.I(f"buffer_store_dwordx4 {V(vRES + 4 * u, 4)}, v{vL16}, {srd(S_WS)}, s{sT2} offen{off} sc1")
            P.I(f"s_lshl_b32 s{sT2}, s{sT1}, 10")
            P.I(f"s_lshl_b32 s{sT3}, s{sC}, 3")
            P.I(f"s_add_u32 s{sT2}, s{sT2}, s{sT3}")
            P.I(f"s_add_u32 s{sT2}, s{sT2}, {STHALO + halo_l * 0x2000}")
            P.I(f"s_mov_b64 exec, {sp(sMLO16)}")
            P.I(f"buffer_store_dwordx2 {V(s1, 2)}, v{a}, {srd(S_WS)}, s{sT2} offen sc1")
            P.I(f"s_mov_b64 exec, -1")
            P.optional -= 1
            P.label(lh)
            P.fence_hazards(2)

    def phase1(self, part):
        P = self.P; L = self.L
        vB1, vB1h, vX, vXh = 16, 17, 18, 19
        vST = 20
        accQ, accK, accV = 40, 60, 80
        XF = [100, 120]
        WF = [140, 152]
        vONES = 164
        a = 166
        c_, d, e_ = 168, 169, 170
        SI = 172
        CI = 182
        MJ, RJ = 190, 210
        PM, PMf = 230, 234
        if part == 'pre':
            P.I(f"v_lshrrev_b32 v{c_}, 4, v{vLANE}")
            P.I(f"v_bfe_u32 v{d}, v{vLANE}, 2, 2")
            P.I(f"v_and_b32 v{e_}, 1, v{c_}")
            P.I(f"v_lshl_add_u32 v{e_}, v{e_}, 2, v{d}")
            P.I(f"v_and_b32 v{d}, 6, v{e_}")
            P.I(f"s_lshl_b32 s{sT1}, s{sW}, 1")
            P.I(f"v_xor_b32 v{d}, s{sT1}, v{d}")
            P.I(f"v_bfe_u32 v{vB1}, v{vLANE}, 1, 1")
            P.I(f"v_or_b32 v{d}, v{d}, v{vB1}")
            P.I(f"v_lshlrev_b32 v{d}, 4, v{d}")
            P.I(f"v_lshl_add_u32 v{d}, v{e_}, 7, v{d}")
            P.I(f"v_lshrrev_b32 v{c_}, 1, v{c_}")
            P.I(f"v_mul_u32_u24 v{c_}, 3072, v{c_}")
            P.I(f"v_add_u32 v{d}, v{d}, v{c_}")
            P.I(f"v_and_b32 v{c_}, 1, v{vLANE}")
            P.I(f"v_lshl_add_u32 v{vB1}, v{c_}, 3, v{d}")
            P.I(f"v_add_u32 v{vB1h}, 0x10000, v{vB1}")
            P.I(f"v_add_u32 v{vX}, {self.x_base(0)}, v{vL16}")
            P.I(f"v_add_u32 v{vXh}, {self.x_base(1)}, v{vL16}")
            P.I(f"v_mov_b32 v{vONES}, 0x3f803f80")
            for r in range(60):
                P.I(f"v_mov_b32 v{accQ + r}, 0")
            P.I(f"v_and_b32 v{a}, 15, v{vLANE}")
            P.I(f"v_lshlrev_b32 v{a}, 6, v{a}")
            P.I(f"v_lshrrev_b32 v{c_}, 4, v{vLANE}")
            P.I(f"v_lshl_add_u32 v{a}, v{c_}, 4, v{a}")
            P.I(f"v_and_b32 v{c_}, 1, v{vLANE}")
            P.I(f"v_cmp_eq_u32 vcc, 0, v{c_}")
            P.I(f"v_mov_b32 v{d}, {NEG}")
            P.I(f"v_cndmask_b32 v{PM}, v{d}, 0, vcc")
            P.I(f"v_cndmask_b32 v{PM + 1}, 0, v{d}, vcc")
            P.I(f"v_mov_b32 v{PM + 2}, v{PM}")
            P.I(f"v_mov_b32 v{PM + 3}, v{PM + 1}")
            P.I(f"s_cmp_eq_u32 s{sRB}, 0")
            P.I(f"s_cselect_b32 s{sT1}, {NEG}, 0")
            for r in range(4):
                P.I(f"v_mov_b32 v{c_}, s{sT1}")
                P.I(f"v_cndmask_b32 v{c_}, v{c_}, 0, {sp(sMCUR + 2 * r)}")
                P.I(f"v_min_f32 v{PMf + r}, v{c_}, v{PM + r}")
            return
        if part == 'touch':
            lsk = self.newlab("ntch1")
            P.I(f"s_cmp_lg_u32 s{sW}, 1")
            P.I(f"s_cbranch_scc1 {lsk}")
            P.optional += 1
            self.touch16(P, 240, 241, OBUF)
            self.touch32(P, 242, 243)
            self.touch_stats(P, 244, 245, STMID)
            P.optional -= 1
            P.label(lsk)
            P.fence_hazards(2)
            return
        lST = 20; la, lc = 40, 41
        if part == 'lpre':
            L.I(f"s_lshl_b32 s{sXB0}, s{sXT0}, 14")
            L.I(f"s_add_u32 s{sXB0}, s{sXB0}, s{sL2M}")
            L.I(f"s_lshr_b32 s{sT1}, s{sRB}, 2")
            L.I(f"s_lshl_b32 s{sT1}, s{sT1}, 14")
            L.I(f"s_lshr_b32 s{sT2}, s{sL2M}, 4")
            L.I(f"s_add_u32 s{sT1}, s{sT1}, s{sT2}")
            L.I(f"s_add_u32 s{sT1}, s{sT1}, {XHALO - XIN - 0x4000}")
            L.I(f"s_and_b32 s{sT2}, s{sRB}, 3")
            L.I(f"s_cmp_eq_u32 s{sT2}, 0")
            L.I(f"s_cselect_b32 s{sT1}, s{sT1}, s{sXB0}")
            L.I(f"s_cmp_eq_u32 s{sRB}, 0")
            L.I(f"s_cselect_b32 s{sXB0}, s{sXB0}, s{sT1}")
            L.I(f"s_lshl_b32 s{sXB1}, s{sRB}, 16")
            L.I(f"s_add_u32 s{sXB1}, s{sXB1}, s{sL2M}")
            L.I(f"s_lshl_b32 s{sT1}, s{sXT0}, 10")
            L.I(f"s_add_u32 s{sT1}, s{sT1}, s{sLST}")
            L.I(f"s_add_u32 s{sT1}, s{sT1}, {STIN}")
            L.I(f"s_lshr_b32 s{sT2}, s{sRB}, 2")
            L.I(f"s_lshl_b32 s{sT2}, s{sT2}, 10")
            L.I(f"s_lshr_b32 s{sT3}, s{sL2M}, 8")
            L.I(f"s_add_u32 s{sT2}, s{sT2}, s{sT3}")
            L.I(f"s_add_u32 s{sT2}, s{sT2}, {STHALO - 0x400}")
            L.I(f"s_and_b32 s{sT3}, s{sRB}, 3")
            L.I(f"s_cmp_eq_u32 s{sT3}, 0")
            L.I(f"s_cselect_b32 s{sT2}, s{sT2}, s{sT1}")
            L.I(f"s_cmp_eq_u32 s{sRB}, 0")
            L.I(f"s_cselect_b32 s{sT1}, s{sT1}, s{sT2}")
            L.I(f"s_lshl_b32 s{sT2}, s{sRB}, 12")
            L.I(f"s_add_u32 s{sT2}, s{sT2}, s{sLST}")
            L.I(f"s_add_u32 s{sT2}, s{sT2}, {STIN}")
            L.I(f"s_cmp_eq_u32 s{sW}, 0")
            L.I(f"s_cselect_b32 s{sSTS}, s{sT2}, s{sT1}")
            L.I(f"s_cselect_b32 s{sT3}, 63, 15")
            L.I(f"s_cselect_b32 s{sT4}, 64, 0")
            L.I(f"s_add_u32 s{sT4}, s{sT4}, {MISC}")
            L.I(f"v_and_b32 v{lc}, s{sT3}, v{vLANE}")
            L.I(f"v_lshlrev_b32 v{la}, 6, v{lc}")
            L.I(f"v_lshlrev_b32 v{lc}, 2, v{lc}")
            L.I(f"v_add_u32 v{lc}, s{sT4}, v{lc}")
            return
        def xdma(m):
            for t in range(5):
                L.I(f"s_add_u32 m0, s{sW5120}, {self.x_base(m) + t * 1024}")
                if t == 0:
                    L.I(f"s_add_u32 s{sBG}, s{sXB0}, {XIN + m * 4096}")
                else:
                    L.I(f"s_add_u32 s{sBG}, s{sXB1}, {XIN + (t - 1) * 16384 + m * 4096}")
                L.I(f"buffer_load_dwordx4 v{vX1OFF}, {srd(S_WS)}, s{sBG} offen sc1 lds", tag=('X1', m))
        def raw_emit(fn):
            from asmlib import Prog
            keep = self.L
            tmp = Prog(); tmp.drop = keep.drop
            self.L = tmp
            fn(tmp)
            self.L = keep
            keep.fence_hazards(2)
            for line in tmp.out: keep.raw(line)
            keep.fence_hazards(2)
        def dummies(n, tagf):
            for k in range(n):
                L.raw(f"    buffer_load_dword v{vDUM}, v{vZERO}, {srd(S_NULL)}, 0 offen")
                L.vmq.append({'regs': set(), 'tag': tagf(k), 'definite': True})
        def stats_issue():
            lsk = self.newlab("nostat")
            L.I(f"s_cmp_gt_u32 s{sW}, 1")
            L.I(f"s_cbranch_scc1 {lsk}")
            L.optional += 1
            for j in range(4):
                L.I(f"buffer_load_dwordx4 {V(lST + 4 * j, 4)}, v{la}, {srd(S_WS)}, s{sSTS} offen offset:{16 * j} sc1")
            L.optional -= 1
            L.label(lsk)
            L.fence_hazards(2)
        def alt(layer1_fn, n_ops, layer0_fn=None):
            l0 = self.newlab("alt0"); lj = self.newlab("altj")
            L.I(f"s_cmp_eq_u32 s{sLAYER}, 0")
            L.I(f"s_cbranch_scc1 {l0}")
            layer1_fn()
            L.raw(f"    s_branch {lj}")
            L.label(l0)
            if layer0_fn is not None:
                raw_emit(layer0_fn)
            for k in range(n_ops):
                L.raw(f"    buffer_load_dword v{vDUM}, v{vZERO}, {srd(S_NULL)}, 0 offen")
            L.label(lj)
            L.fence_hazards(2)
        def x0_late(m):
            def f(T):
                lsk = self.newlab("x0l")
                T.I(f"s_cmp_lg_u32 s{sW}, {m}")
                T.I(f"s_cbranch_scc1 {lsk}")
                self.x0_to_lds()
                T.label(lsk)
            return f
        alt(lambda: (xdma(0), stats_issue(), xdma(1)), 10)
        L.I(f"v_mov_b32 v42, {MISC + 4096}")
        L.I(f"ds_read_b32 v43, v42 offset:4")
        L.I(f"v_readfirstlane_b32 s{sNONCE}, v43")
        def late678():
            l0 = self.newlab("l678"); lj = self.newlab("l678j")
            L.I(f"s_cmp_eq_u32 s{sLAYER}, 0")
            L.I(f"s_cbranch_scc1 {l0}")
            dummies(9, lambda k: ('W1', 6 + k // 3))
            L.raw(f"    s_branch {lj}")
            L.label(l0)
            raw_emit(lambda T: [self.ld_w1(k) for k in (6, 7, 8)])
            L.label(lj)
            L.fence_hazards(2)
        def first_layer(fn, cond_w=None):
            lsk = self.newlab("fl")
            L.I(f"s_cmp_lg_u32 s{sLAYER}, 0")
            L.I(f"s_cbranch_scc1 {lsk}")
            if cond_w is not None:
                L.I(f"{cond_w[0]} s{sW}, {cond_w[1]}")
                L.I(f"s_cbranch_scc1 {lsk}")
            L.optional += 1
            fn()
            L.optional -= 1
            L.label(lsk)
            L.fence_hazards(2)
        def flag_store(off_s, val_s, add):
            L.I(f"s_add_u32 s{sT1}, s{off_s}, {add}")
            L.I(f"v_mov_b32 v44, s{val_s}")
            L.I(f"s_mov_b64 exec, 1")
            L.I(f"buffer_store_dword v44, v{vZERO}, {srd(S_WS)}, s{sT1} offen sc1")
            L.I(f"s_mov_b64 exec, -1")
        def fs_flag():
            def f():
                L.raw("    s_waitcnt vmcnt(15)")
                L.I(f"s_lshl_b32 s{sT2}, s2, 2")
                L.I(f"s_add_u32 s{sT2}, s{sT2}, s{sW}")
                L.I(f"s_lshl_b32 s{sT2}, s{sT2}, 2")
                flag_store(sT2, sNONCE, FLAGS3)
            first_layer(f)
        def f0_flag():
            def f():
                L.I(f"s_lshl_b32 s{sT2}, s{sRB}, 3")
                L.I(f"s_add_u32 s{sT2}, s{sT2}, s{sC}")
                L.I(f"s_lshl_b32 s{sT2}, s{sT2}, 2")
                L.I(f"s_or_b32 s{sT3}, s{sNONCE}, s{sXCC}")
                flag_store(sT2, sT3, FLAGS)
                lh = self.newlab("nofh")
                L.I(f"s_and_b32 s{sT2}, s{sRB}, 3")
                L.I(f"s_cmp_lg_u32 s{sT2}, 3")
                L.I(f"s_cbranch_scc1 {lh}")
                L.I(f"s_lshr_b32 s{sT2}, s{sRB}, 2")
                L.I(f"s_lshl_b32 s{sT2}, s{sT2}, 3")
                L.I(f"s_add_u32 s{sT2}, s{sT2}, s{sC}")
                L.I(f"s_lshl_b32 s{sT2}, s{sT2}, 2")
                flag_store(sT2, sNONCE, FLAGS2)
                L.label(lh)
            first_layer(f, ("s_cmp_lg_u32", 2))
        def poll_loads(kind):
            if kind == 'fs':
                L.I(f"s_mov_b32 s{sT1}, {FLAGS3}")
                L.I(f"buffer_load_dword v46, v45, {srd(S_WS)}, s{sT1} offen sc1")
            else:
                L.I(f"s_mov_b32 s{sT1}, {FLAGS4}")
                L.I(f"buffer_load_dword v51, v50, {srd(S_WS)}, s{sT1} offen sc1")
                L.I(f"buffer_load_dword v55, v54, {srd(S_WS)}, s{sT1} offen sc1")
        def polls_issue(kind):
            def f():
                if kind == 'f0':
                    L.I(f"s_lshl_b32 s{sT1}, s{sRB}, 5")
                    L.I(f"v_and_b32 v50, 31, v{vLANE}")
                    L.I(f"v_add_u32 v50, s{sT1}, v50")
                    L.I(f"s_sub_u32 s{sT2}, s{sT1}, 32")
                    L.I(f"s_cmp_eq_u32 s{sRB}, 0")
                    L.I(f"s_cselect_b32 s{sT2}, s{sT1}, s{sT2}")
                    L.I(f"v_and_b32 v52, 7, v{vLANE}")
                    L.I(f"v_lshlrev_b32 v52, 2, v52")
                    L.I(f"v_add_u32 v52, 3, v52")
                    L.I(f"v_add_u32 v52, s{sT2}, v52")
                    L.I(f"v_cmp_gt_u32 vcc, 32, v{vLANE}")
                    L.I(f"v_cndmask_b32 v50, v52, v50, vcc")
                    L.I(f"v_lshlrev_b32 v50, 2, v50")
                    L.I(f"s_lshr_b32 s{sT1}, s{sRB}, 2")
                    L.I(f"s_lshl_b32 s{sT1}, s{sT1}, 7")
                    L.I(f"v_and_b32 v54, 31, v{vLANE}")
                    L.I(f"v_lshlrev_b32 v54, 2, v54")
                    L.I(f"v_add_u32 v54, s{sT1}, v54")
                    L.I(f"v_lshlrev_b32 v54, 2, v54")
                else:
                    self.fs_lanes()
                poll_loads(kind)
            first_layer(f, ("s_cmp_gt_u32", 1) if kind == 'f0' else None)
        def polls_check(kind, nyoung):
            rs = {'v46'} if kind == 'fs' else {'v51', 'v55'}
            def f():
                lc0 = self.newlab("pchk"); ld = self.newlab("pok")
                L.raw(f"    s_waitcnt vmcnt({nyoung})")
                L.I(f"s_mov_b32 s{sCNT}, 0")
                L.label(lc0)
                L.vmq = [e for e in L.vmq if not (e['regs'] & rs)]
                if kind == 'fs':
                    L.I(f"v_cmp_ne_u32 vcc, s{sNONCE}, v46")
                    L.I(f"s_cmp_eq_u64 vcc, 0")
                else:
                    L.I(f"v_and_b32 v52, -16, v51")
                    L.I(f"v_xor_b32 v52, s{sNONCE}, v52")
                    L.I(f"v_and_b32 v53, -16, v55")
                    L.I(f"v_xor_b32 v53, s{sNONCE}, v53")
                    L.I(f"v_or_b32 v52, v52, v53")
                    L.I(f"v_cmp_ne_u32 vcc, 0, v52")
                    L.I(f"s_cmp_eq_u64 vcc, 0")
                L.I(f"s_cbranch_scc1 {ld}")
                L.I(f"s_add_u32 s{sCNT}, s{sCNT}, 1")
                L.I(f"s_cmp_ge_u32 s{sCNT}, 200000")
                L.I(f"s_cbranch_scc1 {ld}")
                poll_loads(kind)
                L.raw("    s_waitcnt vmcnt(0)")
                L.I(f"s_branch {lc0}")
                L.label(ld)
                L.vmq = [e for e in L.vmq if not (e['regs'] & rs)]
                l1 = self.newlab("nl0")
                if kind == 'f0':
                    stats_issue_inner()
                    L.I(f"s_cmp_lg_u32 s{sW}, 0")
                    L.I(f"s_cbranch_scc1 {l1}")
                    L.I(f"v_and_b32 v52, 15, v55")
                    L.I(f"v_cmp_ne_u32 vcc, s{sXCC}, v52")
                    L.I(f"s_cmp_eq_u32 vcc_lo, 0")
                    L.I(f"s_cselect_b32 s{sT2}, {0 if self.force_slow else 1}, 0")
                    L.I(f"v_mov_b32 v52, {MISC + 4096}")
                    L.I(f"v_mov_b32 v53, s{sT2}")
                    L.I(f"ds_write_b32 v52, v53")
                    L.raw("    s_waitcnt lgkmcnt(0)")
                else:
                    L.I(f"s_cmp_lg_u32 s{sW}, 0")
                    L.I(f"s_cbranch_scc1 {l1}")
                    L.I(f"v_lshrrev_b32 v52, 5, v{vLANE}")
                    L.I(f"v_lshlrev_b32 v52, 9, v52")
                    L.I(f"v_and_b32 v53, 31, v{vLANE}")
                    L.I(f"v_lshl_add_u32 v52, v53, 2, v52")
                    L.I(f"s_lshl_b32 s{sT1}, s{sP0}, 10")
                    L.I(f"s_add_u32 s{sT1}, s{sT1}, {CSBUF}")
                    for F in range(3):
                        for part in range(4):
                            L.I(f"buffer_load_dword v{56 + 4 * F + part}, v52, {srd(S_WS)}, s{sT1} offen offset:{F * 1024 + part * 128} sc1")
                L.label(l1)
            first_layer(f, ("s_cmp_gt_u32", 1) if kind == 'f0' else None)
        def stats_issue_inner():
            lsk = self.newlab("nostat0")
            L.I(f"s_cmp_gt_u32 s{sW}, 1")
            L.I(f"s_cbranch_scc1 {lsk}")
            for j in range(4):
                L.I(f"buffer_load_dwordx4 {V(lST + 4 * j, 4)}, v{la}, {srd(S_WS)}, s{sSTS} offen offset:{16 * j} sc1")
            L.label(lsk)
        def cs_finish():
            def f():
                L.I(f"v_lshlrev_b32 v53, 2, v{vLANE}")
                L.I(f"v_add_u32 v53, {MISC + 1024}, v53")
                for F in range(3):
                    q = 56 + 4 * F
                    L.I(f"v_add_f32 v{q}, v{q}, v{q + 1}")
                    L.I(f"v_add_f32 v{q + 2}, v{q + 2}, v{q + 3}")
                    L.I(f"v_add_f32 v{q}, v{q}, v{q + 2}")
                    L.I(f"ds_write_b32 v53, v{q} offset:{F * 256}")
                L.raw("    s_waitcnt lgkmcnt(0)")
            first_layer(f, ("s_cmp_lg_u32", 0))
        def stats_finish():
            lsk = self.newlab("nostat2")
            L.I(f"s_cmp_gt_u32 s{sW}, 1")
            L.I(f"s_cbranch_scc1 {lsk}")
            L.optional += 1
            for j in range(4):
                pass
            L.I(f"v_pk_add_f32 {V(lST, 2)}, {V(lST, 2)}, {V(lST + 2, 2)}")
            L.I(f"v_pk_add_f32 {V(lST + 4, 2)}, {V(lST + 4, 2)}, {V(lST + 6, 2)}")
            L.I(f"v_pk_add_f32 {V(lST + 8, 2)}, {V(lST + 8, 2)}, {V(lST + 10, 2)}")
            L.I(f"v_pk_add_f32 {V(lST + 12, 2)}, {V(lST + 12, 2)}, {V(lST + 14, 2)}")
            L.I(f"v_pk_add_f32 {V(lST, 2)}, {V(lST, 2)}, {V(lST + 4, 2)}")
            L.I(f"v_pk_add_f32 {V(lST + 8, 2)}, {V(lST + 8, 2)}, {V(lST + 12, 2)}")
            L.I(f"v_pk_add_f32 {V(lST, 2)}, {V(lST, 2)}, {V(lST + 8, 2)}")
            L.I(f"v_mul_f32 v{lST}, {hex(f2u(-1.0/512))}, v{lST}")
            L.I(f"v_mul_f32 v{lST + 1}, {hex(f2u(1.0/512))}, v{lST + 1}")
            L.I(f"v_fma_f32 v{lST + 1}, -v{lST}, v{lST}, v{lST + 1}")
            L.I(f"v_max_f32 v{lST + 1}, 0, v{lST + 1}")
            L.I(f"v_add_f32 v{lST + 1}, {hex(f2u(1e-5))}, v{lST + 1}")
            L.I(f"v_rsq_f32 v{lST + 1}, v{lST + 1}")
            L.I(f"ds_write_b32 v{lc}, v{lST}")
            L.I(f"ds_write_b32 v{lc}, v{lST + 1} offset:512")
            L.raw("    s_waitcnt lgkmcnt(0)")
            L.optional -= 1
            L.label(lsk)
            L.fence_hazards(2)

        def loads(ks):
            bf = ks & 1
            Ld = []
            def wread(mat):
                base = self.w1_page(ks) * PAGE + mat * 1024
                for half in range(2):
                    off = base + half * 6144
                    reg = vB1 if off < 65536 else vB1h
                    Ld.append(f"ds_read_b64_tr_b16 {V(WF[bf] + 4 * mat + 2 * half, 2)}, v{reg} offset:{off & 0xffff}")
            def xread(t):
                off = ((ks & 3) * 5 + t) * 1024
                reg = vX if (ks >> 2) % 2 == 0 else vXh
                Ld.append(f"ds_read_b128 {V(XF[bf] + 4 * t, 4)}, v{reg} offset:{off}")
            wread(1); xread(1); wread(2); wread(0); xread(0); xread(2); xread(3); xread(4)
            return Ld
        def mfmas(ks):
            bf = ks & 1
            M = []
            for t in (1, 2, 3, 4, 0):
                x = V(XF[bf] + 4 * t, 4)
                M.append(f"v_mfma_f32_16x16x32_bf16 {V(accK + 4 * t, 4)}, {V(WF[bf] + 4, 4)}, {x}, {V(accK + 4 * t, 4)}")
                M.append(f"v_mfma_f32_16x16x32_bf16 {V(accV + 4 * t, 4)}, {x}, {V(WF[bf] + 8, 4)}, {V(accV + 4 * t, 4)}")
                M.append(f"v_mfma_f32_16x16x32_bf16 {V(accQ + 4 * t, 4)}, {V(WF[bf], 4)}, {x}, {V(accQ + 4 * t, 4)}")
            return M
        def xwait(m):
            L.wait_vm_tag(lambda t: t[0] == 'X1' and t[1] <= m)
            L.I(f"v_add_u32 v{vLONE + 1}, {self.x_base(m)}, v{vLONE}")
            L.I(f"s_mov_b64 exec, {sp(sMI0)}")
            L.I(f"ds_write_b128 v{vLONE + 1}, {V(vLONE + 2, 4)}")
            L.I(f"s_mov_b64 exec, -1")
            L.wait_lg_all()
        def stage_barrier(u):
            self.wait_units('W1', u + 2)
            if (u + 1) % 4 == 0:
                xwait((u + 1) >> 2)
            P.wait_lg_all()
            self.bar()
            if u == 1:
                late678()
                self.ld_w1(9); self.ld_w1(10)
                fs_flag()
            elif u == 3:
                self.ld_w1(11); self.ld_w1(12)
                alt(lambda: xdma(2), 5, x0_late(2))
            elif u == 5:
                self.ld_w1(13); self.ld_w1(14)
                polls_issue('f0')
                if self.touch and self.tplace == 'p1':
                    lsk = self.newlab("ntch")
                    L.I(f"s_cmp_lg_u32 s{sW}, 3")
                    L.I(f"s_cbranch_scc1 {lsk}")
                    L.optional += 1
                    self.touch_h(L, 68, 69, 70)
                    self.touch16(L, 68, 74, XIN + 0x200000)
                    self.touch_stats(L, 68, 75, STIN + 0x20000)
                    L.optional -= 1
                    L.label(lsk)
                    L.fence_hazards(2)
            elif u == 7:
                self.ld_w1(15)
                alt(lambda: xdma(3), 5, x0_late(3))
                polls_check('f0', 8); polls_issue('fs')
            elif u == 9:
                polls_check('fs', 0)
                self.ld_w3(0); self.ld_w3(1)
            elif u == 11:
                for k in range(0, 6): self.ld_w2(k)
                stats_finish()
            elif u == 13:
                for k in range(6, 12): self.ld_w2(k)
                cs_finish()
            self.lts(3 + (u >> 1))
            self.ts(3 + (u >> 1), fine=3)
        self.wait_units('W1', 1)
        xwait(0)
        self.bar()
        first_layer(lambda: (L.raw('    s_waitcnt vmcnt(10)'), self.shuffle('process')))
        self.lts(13)
        for x in loads(0):
            P.I(x)
        for ks in range(16):
            M = mfmas(ks)
            bf = ks & 1
            if ks & 1 and ks < 15:
                stage_barrier(ks)
            nxt = loads(ks + 1) if ks + 1 < 16 else []
            for n, m in enumerate(M):
                if n == 0:
                    P.need(regs(WF[bf], 12) + regs(XF[bf] + 4, 4) + regs(XF[bf], 4))
                if n == 3:
                    P.need(regs(XF[bf] + 8, 12))
                P.I(m)
                if nxt:
                    P.I(nxt.pop(0))
                elif ks + 1 < 16 or True:
                    pass
                if n in (11,):
                    pass
                if 7 <= n <= 10:
                    pass
        P.I(f"v_and_b32 v{c_}, 15, v{vLANE}")
        P.I(f"v_lshl_add_u32 v{c_}, v{c_}, 2, 0")
        P.I(f"v_add_u32 v{c_}, {MISC}, v{c_}")
        P.I(f"v_lshrrev_b32 v{d}, 4, v{vLANE}")
        P.I(f"v_lshlrev_b32 v{d}, 4, v{d}")
        P.I(f"v_add_u32 v{d}, {MISC}, v{d}")
        for t in range(5):
            P.I(f"ds_read2_b32 {V(SI + 2 * t, 2)}, v{c_} offset0:{t * 16} offset1:{128 + t * 16}")
        for t in range(5):
            P.I(f"ds_read_b128 {V(MJ + 4 * t, 4)}, v{d} offset:{t * 64}")
            P.I(f"ds_read_b128 {V(RJ + 4 * t, 4)}, v{d} offset:{512 + t * 64}")
        P.wait_lg_all()
        self.bar()
        P.I(f"v_mov_b32 v252, {MISC + 4096}")
        P.I(f"ds_read_b64 v[250:251], v252")
        P.I(f"v_readfirstlane_b32 s{sFAST}, v250")
        P.I(f"v_readfirstlane_b32 s{sNONCE}, v251")
        for t in range(1, 5):
            P.I(f"v_mul_f32 v{CI + 2 * (t - 1)}, {hex(f2u(0.25 * 1.4426950408889634))}, v{SI + 2 * t + 1}")
        for k in range(12, 16):
            self.ld_w2(k)
        for u in (2, 3, 4, 5):
            self.ld_w3(u)
        self.ts(2)
        csQ, csK, csV = 100, 104, 108
        for r in range(4):
            P.I(f"v_mov_b32_dpp v{csQ + r}, v{accQ + r} row_newbcast:0 row_mask:0xf bank_mask:0xf")
            P.I(f"v_mov_b32_dpp v{csK + r}, v{accK + r} row_newbcast:0 row_mask:0xf bank_mask:0xf")
        P.I(f"v_mov_b32 v{csV}, v{accV}")
        P.I(f"v_mov_b32 v{csV + 1}, v{accV}")
        Qp, Kp, Vp = 20, 30, 110
        BL = "op_sel:[0,0,0] op_sel_hi:[1,0,1]"
        for t in range(5):
            for j in range(2):
                P.I(f"v_pk_fma_f32 {V(accK + 4 * t + 2 * j, 2)}, {V(csK + 2 * j, 2)}, {V(SI + 2 * t, 2)}, {V(accK + 4 * t + 2 * j, 2)} {BL}")
        P.I(f"v_permlane16_swap_b32 v{csV}, v{csV + 1}")
        for t in range(1, 5):
            for j in range(2):
                P.I(f"v_pk_fma_f32 {V(accQ + 4 * t + 2 * j, 2)}, {V(csQ + 2 * j, 2)}, {V(SI + 2 * t, 2)}, {V(accQ + 4 * t + 2 * j, 2)} {BL}")
        P.I(f"v_mov_b32 v{csV + 1}, v{csV}")
        for t in range(5):
            for j in range(2):
                P.I(f"v_pk_mul_f32 {V(accK + 4 * t + 2 * j, 2)}, {V(accK + 4 * t + 2 * j, 2)}, {V(SI + 2 * t, 2)} op_sel:[0,1] op_sel_hi:[1,1]")
        P.I(f"v_permlane32_swap_b32 v{csV}, v{csV + 1}")
        for t in range(1, 5):
            for j in range(2):
                P.I(f"v_cvt_pk_bf16_f32 v{Qp + 2 * (t - 1) + j}, v{accQ + 4 * t + 2 * j}, v{accQ + 4 * t + 2 * j + 1}")
        for t in range(5):
            for j in range(2):
                P.I(f"v_cvt_pk_bf16_f32 v{Kp + 2 * t + j}, v{accK + 4 * t + 2 * j}, v{accK + 4 * t + 2 * j + 1}")
        SP, SC = 40, 60
        for t in range(1, 5):
            q = V(Qp + 2 * (t - 1), 2)
            P.I(f"v_mfma_f32_16x16x16_bf16 {V(SP + 4 * t, 4)}, {V(Kp + 2 * (t - 1), 2)}, {q}, 0")
            P.I(f"v_mfma_f32_16x16x16_bf16 {V(SC + 4 * t, 4)}, {V(Kp + 2 * t, 2)}, {q}, 0")
        for t in range(5):
            for j in range(2):
                P.I(f"v_pk_fma_f32 {V(accV + 4 * t + 2 * j, 2)}, {V(MJ + 4 * t + 2 * j, 2)}, {V(csV, 2)}, {V(accV + 4 * t + 2 * j, 2)} {BL}")
        for t in range(5):
            for j in range(2):
                P.I(f"v_pk_mul_f32 {V(accV + 4 * t + 2 * j, 2)}, {V(accV + 4 * t + 2 * j, 2)}, {V(RJ + 4 * t + 2 * j, 2)}")
        for t in range(5):
            for j in range(2):
                P.I(f"v_cvt_pk_bf16_f32 v{Vp + 2 * t + j}, v{accV + 4 * t + 2 * j}, v{accV + 4 * t + 2 * j + 1}")
        Z = 120
        MX = [0, 140, 142, 144, 146]; TM = [0, 148, 149, 150, 151]; SM = [0, 152, 153, 154, 155]
        def z(t, r): return Z + 4 * (t - 1) + r
        for t in range(1, 5):
            for r in range(4):
                P.I(f"v_cndmask_b32 v{z(t, r)}, v{SP + 4 * t + r}, v{SC + 4 * t + r}, {sp(sMCUR + 2 * r)}")
        for t in range(1, 5):
            pm = PMf if t == 1 else PM
            for j in range(2):
                P.I(f"v_pk_fma_f32 {V(z(t, 2 * j), 2)}, {V(z(t, 2 * j), 2)}, {V(CI + 2 * (t - 1), 2)}, {V(pm + 2 * j, 2)} {BL}")
        for t in range(1, 5):
            P.I(f"v_max3_f32 v{MX[t]}, v{z(t, 0)}, v{z(t, 1)}, v{z(t, 2)}")
        for t in range(1, 5):
            P.I(f"v_max_f32 v{MX[t]}, v{MX[t]}, v{z(t, 3)}")
        for step in ("16", "32"):
            for t in range(1, 5):
                P.I(f"v_mov_b32 v{TM[t]}, v{MX[t]}")
            for t in range(1, 5):
                P.I(f"v_permlane{step}_swap_b32 v{MX[t]}, v{TM[t]}")
            for t in range(1, 5):
                P.I(f"v_max_f32 v{MX[t]}, v{MX[t]}, v{TM[t]}")
        for t in range(1, 5):
            for j in range(2):
                P.I(f"v_pk_add_f32 {V(z(t, 2 * j), 2)}, {V(z(t, 2 * j), 2)}, {V(MX[t], 2)} op_sel_hi:[1,0] neg_lo:[0,1] neg_hi:[0,1]")
        for t in range(1, 5):
            for r in range(4):
                P.I(f"v_exp_f32 v{z(t, r)}, v{z(t, r)}")
        PB = 40
        pk = [0, 156, 158, 160, 162]
        for t in range(1, 5):
            P.I(f"v_add_f32 v{SM[t]}, v{z(t, 0)}, v{z(t, 1)}")
            P.I(f"v_add_f32 v{TM[t]}, v{z(t, 2)}, v{z(t, 3)}")
        for t in range(1, 5):
            P.I(f"v_cvt_pk_bf16_f32 v{pk[t]}, v{z(t, 0)}, v{z(t, 1)}")
            P.I(f"v_cvt_pk_bf16_f32 v{pk[t] + 1}, v{z(t, 2)}, v{z(t, 3)}")
            P.I(f"v_add_f32 v{SM[t]}, v{SM[t]}, v{TM[t]}")
        for t in range(1, 5):
            P.I(f"v_cndmask_b32 v{PB + 4 * t + 0}, v{pk[t]}, 0, {sp(sM01)}")
            P.I(f"v_cndmask_b32 v{PB + 4 * t + 1}, v{pk[t] + 1}, 0, {sp(sM23)}")
            P.I(f"v_cndmask_b32 v{PB + 4 * t + 2}, 0, v{pk[t]}, {sp(sM01)}")
            P.I(f"v_cndmask_b32 v{PB + 4 * t + 3}, 0, v{pk[t] + 1}, {sp(sM23)}")
        O = 60
        for t in range(1, 5):
            P.I(f"v_mfma_f32_16x16x32_bf16 {V(O + 4 * t, 4)}, {V(Vp + 2 * (t - 1), 4)}, {V(PB + 4 * t, 4)}, 0")
        for step in ("16", "32"):
            for t in range(1, 5):
                P.I(f"v_mov_b32 v{TM[t]}, v{SM[t]}")
            for t in range(1, 5):
                P.I(f"v_permlane{step}_swap_b32 v{SM[t]}, v{TM[t]}")
            for t in range(1, 5):
                P.I(f"v_add_f32 v{SM[t]}, v{SM[t]}, v{TM[t]}")
        for t in range(1, 5):
            P.I(f"v_rcp_f32 v{MX[t]}, v{SM[t]}")
        P.I(f"s_and_b32 s{sT1}, s{sW}, 1")
        P.I(f"s_lshl_b32 s{sT1}, s{sT1}, 3")
        P.I(f"v_add_u32 v{c_}, s{sT1}, v{vL16}")
        P.I(f"s_lshl_b32 s{sT1}, s{sRB}, 16")
        P.I(f"s_lshl_b32 s{sT2}, s{sC}, 11")
        P.I(f"s_add_u32 s{sT1}, s{sT1}, s{sT2}")
        P.I(f"s_lshr_b32 s{sT2}, s{sW}, 1")
        P.I(f"s_lshl_b32 s{sT2}, s{sT2}, 10")
        P.I(f"s_add_u32 s{sT1}, s{sT1}, s{sT2}")
        P.I(f"s_add_u32 s{sT1}, s{sT1}, s{sL2M}")
        P.I(f"s_add_u32 s{sT1}, s{sT1}, {OBUF}")
        Op = 84
        for t in range(1, 5):
            for j in range(2):
                P.I(f"v_pk_mul_f32 {V(O + 4 * t + 2 * j, 2)}, {V(O + 4 * t + 2 * j, 2)}, {V(MX[t], 2)} op_sel_hi:[1,0]")
            P.I(f"v_cvt_pk_bf16_f32 v{Op + 2 * t}, v{O + 4 * t}, v{O + 4 * t + 1}")
            P.I(f"v_cvt_pk_bf16_f32 v{Op + 2 * t + 1}, v{O + 4 * t + 2}, v{O + 4 * t + 3}")
        lines = []
        for t in range(1, 5):
            if t > 1:
                lines.append(f"s_add_u32 s{sT2}, s{sT1}, {16384 * (t - 1)}")
            lines.append(f"buffer_store_dwordx2 {V(Op + 2 * t, 2)}, v{c_}, {srd(S_WS)}, s{sT1 if t == 1 else sT2} offen")
        self.stores(lines)

    def gemm_res(self, which, part):
        P = self.P; L = self.L
        nks = 16 if which == 2 else 43
        page = (lambda k: self.W2_PAGES[k]) if which == 2 else self.w4_page
        vB = 16
        acc = 32
        WR = 48; NR = 8; LA = 6
        a, b, c_, d, e_ = 80, 81, 82, 83, 84
        XR = 96; NX = 32
        if part == 'pre':
            P.I(f"v_mov_b32 v{vB}, v{vL16}")
            P.I(f"v_add_u32 v{vB + 1}, 0x10000, v{vL16}")
            P.I(f"v_add_u32 v{vB + 2}, 0x20000, v{vL16}")
            for r in range(16):
                P.I(f"v_mov_b32 v{acc + r}, 0")
            if which == 2:
                P.I(f"s_lshl_b32 s{sT5}, s{sRT}, 14")
                P.I(f"s_add_u32 s{sT5}, s{sT5}, s{sL2M}")
                P.I(f"s_add_u32 s{sT5}, s{sT5}, {OBUF}")
            else:
                P.I(f"s_mul_i32 s{sT5}, s{sRT}, {43 * 1024}")
                P.I(f"s_add_u32 s{sT5}, s{sT5}, s{sLH}")
                P.I(f"s_add_u32 s{sT5}, s{sT5}, {HBUF}")
            return
        self._xn = 0
        def xload():
            k = self._xn
            if k >= nks: return
            self._xn += 1
            if k % 4 == 0:
                P.I(f"s_add_u32 s{sT1}, s{sT5}, {(k // 4) * 4096}")
            off = f" offset:{(k % 4) * 1024}" if k % 4 else ""
            P.I(f"buffer_load_dwordx4 {V(XR + 4 * (k % NX), 4)}, v{vL16}, {srd(S_WS)}, s{sT1} offen{off} sc1", tag=(f'X{which}', k))
        for _ in range(self.init24):
            xload()
        half_off = 2048 if which == 2 else 1024
        frags = [(k, T) for k in range(nks) for T in range(4)]
        def reads(n):
            k, T = frags[n]
            Ld = []
            off = page(k) * PAGE + T * 1024
            Ld.append(f"ds_read_b128 {V(WR + 4 * (n % NR), 4)}, v{vB + (off >> 16)} offset:{off & 0xffff}")
            return Ld
        def hook(k):
            if which == 4:
                if k == 8:
                    self.bar()
                    for kk in range(38, 43):
                        self.ld_w4(kk)
                if k in (28, 35):
                    if k == 28:
                        self.wait_units('W4', 42)
                    self.bar()
                    lsk = self.newlab("lnow1")
                    L.I(f"s_cmp_lg_u32 s{sLAYER}, 0")
                    L.I(f"s_cbranch_scc1 {lsk}")
                    L.optional += 1
                    for ks in (range(7) if k == 28 else (7, 8)):
                        self.ld_w1(ks)
                    L.optional -= 1
                    L.label(lsk)
                    L.fence_hazards(2)
        for n in range(LA):
            if frags[n][1] == 0:
                hook(frags[n][0])
            for x in reads(n):
                P.I(x)
        for n, (k, T) in enumerate(frags):
            rd = []
            if n + LA < len(frags):
                if frags[n + LA][1] == 0:
                    hook(frags[n + LA][0])
                rd = reads(n + LA)
            xr = XR + 4 * (k % NX)
            if T in (0, 2):
                P.need([f"v{WR + 4 * ((n + j) % NR) + i}" for j in range(2) for i in range(4)] + regs(xr, 4))
            if T == 0 and which == 2 and k in (0, 2, 4, 6, 8, 10, 12):
                self.ts(9 + k // 2, fine=4)
            if T == 0 and which == 4 and k in (0, 4, 8, 16, 24, 32, 40):
                self.ts(9 + (0, 4, 8, 16, 24, 32, 40).index(k), fine=5)
            P.I(f"v_mfma_f32_16x16x32_bf16 {V(acc + 4 * T, 4)}, {V(WR + 4 * (n % NR), 4)}, {V(xr, 4)}, {V(acc + 4 * T, 4)}")
            for x in rd:
                P.I(x)
            if (T == 1 or (T == 3 and k % 2 == 0 and self._xn < k + 12)) and self._xn <= k + NX - 1:
                xload()
        P.wait_lg_all()
        self.bar()
        self.ts(4 if which == 2 else 8)
        t0 = 80
        for T in range(4):
            for j in range(2):
                rr = vRES + 2 * T + j
                tt = t0 + 2 * ((2 * T + j) % 4)
                P.I(f"v_lshlrev_b32 v{tt}, 16, v{rr}")
                P.I(f"v_and_b32 v{tt + 1}, 0xffff0000, v{rr}")
                P.I(f"v_pk_add_f32 {V(tt, 2)}, {V(tt, 2)}, {V(acc + 4 * T + 2 * j, 2)}")
                P.I(f"v_cvt_pk_bf16_f32 v{rr}, v{tt}, v{tt + 1}")
        if which == 2:
            P.I(f"s_add_u32 s{sT3}, s{sL2M}, {XMID}")
            P.I(f"s_add_u32 s{sT4}, s{sLST}, {STMID}")
            self.emit_x(True, sT3, sT4)
        else:
            self.lfin = self.newlab("final")
            P.I(f"s_cmp_lg_u32 s{sLAYER}, 0")
            P.I(f"s_cbranch_scc1 {self.lfin}")
            L.I(f"s_cmp_lg_u32 s{sLAYER}, 0")
            L.I(f"s_cbranch_scc1 L_lend")
            if self.latew1:
                for ks in range(6):
                    self.ld_w1(ks)
            P.I(f"s_add_u32 s{sT3}, s{sL2M}, {XIN + 0x200000}")
            P.I(f"s_add_u32 s{sT4}, s{sLST}, {STIN + 0x20000}")
            self.emit_x(False, sT3, sT4, halo_l=1)

    def final_store(self):
        P = self.P
        P.label(self.lfin)
        P.fence_hazards(4)
        a, b = 80, 81
        P.I(f"v_and_b32 v{a}, 15, v{vLANE}")
        P.I(f"v_lshlrev_b32 v{a}, 10, v{a}")
        P.I(f"v_lshrrev_b32 v{b}, 4, v{vLANE}")
        P.I(f"v_lshlrev_b32 v{b}, 3, v{b}")
        P.I(f"v_add_u32 v{a}, v{a}, v{b}")
        P.I(f"s_lshl_b32 s{sT0}, s{sRT}, 14")
        P.I(f"s_lshl_b32 s{sT1}, s{sC}, 7")
        P.I(f"s_add_u32 s{sT0}, s{sT0}, s{sT1}")
        for T in range(4):
            P.I(f"buffer_store_dwordx2 {V(vRES + 2 * T, 2)}, v{a}, {srd(S_OUT)}, s{sT0} offen offset:{T * 32}")
        self.ts(9)

    def phase3(self, part):
        P = self.P; L = self.L
        vB3 = 16
        vST = 20
        tmps = 28
        WR = 32
        NRW = 12
        XR = 80
        NXR = 18
        acc = 152
        a, b = 28, 29
        if part == 'pre':
            P.I(f"v_mov_b32 v{vB3}, v{vL16}")
            P.I(f"v_add_u32 v{vB3 + 1}, 0x10000, v{vL16}")
            P.I(f"v_add_u32 v{vB3 + 2}, 0x20000, v{vL16}")
            for r in range(96):
                P.I(f"v_mov_b32 v{acc + r}, 0")
            P.I(f"v_and_b32 v{a}, 31, v{vLANE}")
            P.I(f"v_lshlrev_b32 v{a}, 6, v{a}")
            P.I(f"v_lshrrev_b32 v{b}, 5, v{vLANE}")
            P.I(f"v_lshl_add_u32 v{a}, v{b}, 5, v{a}")
            P.I(f"s_lshl_b32 s{sT5}, s{sR32}, 11")
            P.I(f"s_add_u32 s{sT5}, s{sT5}, s{sLST}")
            P.I(f"s_add_u32 s{sT5}, s{sT5}, {STMID}")
            P.I(f"s_lshl_b32 s{sT4}, s{sR32}, 15")
            P.I(f"s_add_u32 s{sT4}, s{sT4}, s{sL2M}")
            P.I(f"s_add_u32 s{sT4}, s{sT4}, {XMID}")
            return
        self._xn = 0
        def xload():
            n = self._xn
            if n >= 32: return
            self._xn += 1
            if n % 4 == 0:
                P.I(f"s_add_u32 s{sT3}, s{sT4}, {(n // 4) * 4096}")
            off = f" offset:{(n % 4) * 1024}" if n % 4 else ""
            P.I(f"buffer_load_dwordx4 {V(XR + 4 * (n % NXR), 4)}, v{vL16}, {srd(S_WS)}, s{sT3} offen{off} sc1", tag=('X3', n))
        for n in range(self.init3):
            xload()
        P.I(f"buffer_load_dwordx4 {V(vST, 4)}, v{a}, {srd(S_WS)}, s{sT5} offen sc1")
        P.I(f"buffer_load_dwordx4 {V(vST + 4, 4)}, v{a}, {srd(S_WS)}, s{sT5} offen offset:16 sc1")
        frags = [(n, F, mat) for n in range(32) for F in range(3) for mat in range(2)]
        LA = 8
        def wread(i):
            n, F, mat = frags[i]
            p, u = n >> 1, n & 1
            off = self.w3_page(p) * PAGE + F * 4096 + u * 2048 + mat * 1024
            return f"ds_read_b128 {V(WR + 4 * (i % NRW), 4)}, v{vB3 + (off >> 16)} offset:{off & 0xffff}"
        def stage(j):
            self.wait_units('W3', 2 * j + 3)
            self.bar()
            if j == 0:
                self.ld_w3(9); self.ld_w3(10); self.ld_w3(11)
            elif j == 1:
                self.ld_w3(12); self.ld_w3(13)
                self.w4_ready('issue')
            elif j == 2:
                self.ld_w3(14); self.ld_w3(15)
            elif j == 3:
                self.w4_ready('check')
                for k in range(0, 8): self.ld_w4(k)
            elif j == 4:
                for k in range(8, 14): self.ld_w4(k)
            if self.pull and j == 0:
                def part4(S, d):
                    S.I(f"s_and_b32 s{d}, s{sRB}, 3")
                self.l2_pull(sW4B, part4, 344)
            if self.pull and j == 4:
                self.w1_touch()
            if self.touch and self.tplace == 'p3' and j in (0, 2):
                lsk = self.newlab("ntch")
                L.I(f"s_cmp_lg_u32 s{sW}, 3")
                L.I(f"s_cbranch_scc1 {lsk}")
                L.optional += 1
                if j == 0:
                    self.touch_h(L, 68, 69, 70)
                else:
                    self.touch16(L, 68, 74, XIN + 0x200000)
                    self.touch_stats(L, 68, 75, STIN + 0x20000)
                L.optional -= 1
                L.label(lsk)
                L.fence_hazards(2)
            if j <= 4:
                pass
            if j == 5:
                for k in range(14, 20): self.ld_w4(k)
            elif j == 6:
                for k in range(20, 26): self.ld_w4(k)
        for i in range(LA):
            P.I(wread(i))
        for i, (n, F, mat) in enumerate(frags):
            nx = []
            if i + LA < len(frags):
                n2, F2, m2 = frags[i + LA]
                if F2 == 0 and m2 == 0 and n2 % 4 == 0 and n2 >= 4:
                    stage(n2 // 4 - 1)
                nx = [wread(i + LA)]
            if i % 2 == 0:
                P.need(regs(WR + 4 * (i % NRW), 4) + regs(WR + 4 * ((i + 1) % NRW), 4) + regs(XR + 4 * (n % NXR), 4))
            if F == 0 and mat == 0 and n in (0, 4, 8, 12, 16, 24, 28):
                self.ts(9 + (0, 4, 8, 12, 16, 24, 28).index(n), fine=6)
            ac = acc + 16 * (2 * F + mat)
            P.I(f"v_mfma_f32_32x32x16_bf16 {V(ac, 16)}, {V(WR + 4 * (i % NRW), 4)}, {V(XR + 4 * (n % NXR), 4)}, {V(ac, 16)}")
            for x in nx:
                P.I(x)
            if F == 1 and mat == 0 and self._xn <= n + NXR - 1:
                xload()
            if F == 2 and mat == 0 and self._xn < n + 12 and self._xn <= n + NXR - 1:
                xload()
            if n == 6 and F == 0 and mat == 0:
                self._st = []
                S_ = self._st
                for j in (2, 4, 6):
                    S_.append(f"v_add_f32 v{vST}, v{vST}, v{vST + j}")
                    S_.append(f"v_add_f32 v{vST + 1}, v{vST + 1}, v{vST + j + 1}")
                S_.append(f"v_mov_b32 v{a}, v{vST}")
                S_.append(f"v_mov_b32 v{b}, v{vST + 1}")
                S_.append(f"v_nop")
                S_.append(f"v_permlane32_swap_b32 v{vST}, v{a}")
                S_.append(f"v_permlane32_swap_b32 v{vST + 1}, v{b}")
                S_.append(f"v_add_f32 v{vST}, v{vST}, v{a}")
                S_.append(f"v_add_f32 v{vST + 1}, v{vST + 1}, v{b}")
                S_.append(f"v_mul_f32 v{vST}, {hex(f2u(-1.0/512))}, v{vST}")
                S_.append(f"v_mul_f32 v{vST + 1}, {hex(f2u(1.0/512))}, v{vST + 1}")
                S_.append(f"v_fma_f32 v{vST + 1}, -v{vST}, v{vST}, v{vST + 1}")
                S_.append(f"v_max_f32 v{vST + 1}, 0, v{vST + 1}")
                S_.append(f"v_add_f32 v{vST + 1}, {hex(f2u(1e-5))}, v{vST + 1}")
                S_.append(f"v_rsq_f32 v{vST + 2}, v{vST + 1}")
                S_.append(f"v_nop")
                S_.append(f"v_mul_f32 v{vST + 3}, v{vST + 2}, v{vST + 2}")
                S_.append(f"v_mul_f32 v{vST + 4}, {hex(f2u(GC0))}, v{vST + 2}")
                S_.append(f"v_mul_f32 v{vST + 5}, v{vST + 3}, v{vST + 2}")
                S_.append(f"v_mul_f32 v{vST + 5}, {hex(f2u(GC0 * 0.044715))}, v{vST + 5}")
            if n >= 6 and getattr(self, '_st', None):
                P.I(self._st.pop(0))
        assert not self._st
        P.wait_lg_all()
        self.bar()
        for k in range(26, 38):
            self.ld_w4(k)
        self.ts(6)
        va = 30
        P.I(f"v_bfe_u32 v{a}, v{vLANE}, 4, 1")
        P.I(f"v_mul_u32_u24 v{a}, {43 * 1024}, v{a}")
        P.I(f"v_lshrrev_b32 v{b}, 5, v{vLANE}")
        P.I(f"v_lshl_add_u32 v{a}, v{b}, 8, v{a}")
        P.I(f"v_lshlrev_b32 v{b}, 6, v{b}")
        P.I(f"v_add_u32 v31, {MISC + 1024}, v{b}")
        P.I(f"v_and_b32 v{b}, 15, v{vLANE}")
        P.I(f"v_lshl_add_u32 v{va}, v{b}, 4, v{a}")
        P.I(f"s_lshl_b32 s{sT1}, s{sR32}, 1")
        P.I(f"s_mul_i32 s{sT1}, s{sT1}, 43")
        P.I(f"s_add_u32 s{sT1}, s{sT1}, s{sP0}")
        P.I(f"s_lshl_b32 s{sT1}, s{sT1}, 10")
        P.I(f"s_add_u32 s{sT1}, s{sT1}, s{sLH}")
        P.I(f"s_add_u32 s{sT1}, s{sT1}, {HBUF}")
        CS = 32
        HP = 96
        T0 = 120
        def csreads(F):
            for mat in range(2):
                for j in range(4):
                    P.I(f"ds_read_b128 {V(CS + 32 * (F & 1) + 16 * mat + 4 * j, 4)}, v31 offset:{F * 256 + mat * 128 + j * 16}")
        NM = f"{V(vST, 2)}"
        csreads(0)
        lskip = self.newlab("nof2")
        for F in range(3):
            if F == 2:
                P.I(f"s_cmp_lt_u32 s{sNP}, 3")
                P.I(f"s_cbranch_scc1 {lskip}")
                P.optional += 1
            if F + 1 < 3 and F == 0:
                csreads(1)
            if F == 1:
                pass
            G = acc + 16 * (2 * F); U = acc + 16 * (2 * F + 1)
            cg = CS + 32 * (F & 1); cu = cg + 16
            if F == 2:
                csreads(2)
            for pr in range(8):
                P.I(f"v_pk_fma_f32 {V(G + 2 * pr, 2)}, {V(cg + 2 * pr, 2)}, {NM}, {V(G + 2 * pr, 2)} op_sel:[0,0,0] op_sel_hi:[1,0,1]")
            for pr in range(8):
                P.I(f"v_pk_fma_f32 {V(U + 2 * pr, 2)}, {V(cu + 2 * pr, 2)}, {NM}, {V(U + 2 * pr, 2)} op_sel:[0,0,0] op_sel_hi:[1,0,1]")
            for grp in range(2):
                prs = [4 * grp + j for j in range(4)]
                def T(j, k): return T0 + 8 * j + 2 * k
                for j, pr in enumerate(prs):
                    P.I(f"v_pk_mul_f32 {V(T(j,0),2)}, {V(G + 2 * pr, 2)}, {V(G + 2 * pr, 2)}")
                for j, pr in enumerate(prs):
                    P.I(f"v_pk_fma_f32 {V(T(j,0),2)}, {V(T(j,0),2)}, {V(vST + 4, 2)}, {V(vST + 4, 2)} op_sel:[0,1,0] op_sel_hi:[1,1,0]")
                for j, pr in enumerate(prs):
                    P.I(f"v_pk_mul_f32 {V(T(j,0),2)}, {V(T(j,0),2)}, {V(G + 2 * pr, 2)}")
                for j, pr in enumerate(prs):
                    P.I(f"v_exp_f32 v{T(j,0)}, v{T(j,0)}")
                    P.I(f"v_exp_f32 v{T(j,0)+1}, v{T(j,0)+1}")
                for j, pr in enumerate(prs):
                    P.I(f"v_pk_mul_f32 {V(T(j,1),2)}, {V(G + 2 * pr, 2)}, {V(U + 2 * pr, 2)}")
                for j, pr in enumerate(prs):
                    P.I(f"v_pk_add_f32 {V(T(j,0),2)}, {V(T(j,0),2)}, {sp(sONEF)}")
                for j, pr in enumerate(prs):
                    P.I(f"v_pk_mul_f32 {V(T(j,1),2)}, {V(T(j,1),2)}, {V(vST + 2, 2)} op_sel:[0,1] op_sel_hi:[1,1]")
                for j, pr in enumerate(prs):
                    P.I(f"v_rcp_f32 v{T(j,0)}, v{T(j,0)}")
                    P.I(f"v_rcp_f32 v{T(j,0)+1}, v{T(j,0)+1}")
                for j, pr in enumerate(prs):
                    P.I(f"v_pk_mul_f32 {V(T(j,1),2)}, {V(T(j,1),2)}, {V(T(j,0),2)}")
                for j, pr in enumerate(prs):
                    P.I(f"v_cvt_pk_bf16_f32 v{HP + 8 * F + pr}, v{T(j,1)}, v{T(j,1)+1}")
            self.stores([f"buffer_store_dwordx4 {V(HP + 8 * F + 4 * AB, 4)}, v{va}, {srd(S_WS)}, s{sT1} offen offset:{F * 1024 + AB * 512}" for AB in range(2)])
            if F == 2:
                P.optional -= 1
                P.label(lskip)
                P.fence_hazards(2)

    def set_layer1(self, P):
        P.I(f"s_mov_b32 s{sLAYER}, 1")
        P.I(f"s_mov_b32 s{sL2M}, 0x200000")
        P.I(f"s_mov_b32 s{sLH}, 0x600000")
        P.I(f"s_mov_b32 s{sLST}, 0x20000")
        P.I(f"s_mov_b32 s{sLFL}, 0x1000")

    def build(self):
        P = self.P; L = self.L
        self.prologue()
        P.I(f"s_mov_b32 s{sT3}, {XIN}")
        P.I(f"s_mov_b32 s{sT4}, {STIN}")
        self.ts(0)
        self.phase1('pre')
        self.emit_x(False, sT3, sT4, halo_l=0, stats_only=True)
        lp = self.newlab("cn"); ld = self.newlab("cnd")
        P.I(f"s_mov_b32 s{sCNT}, 0")
        P.label(lp)
        P.raw(f"    buffer_load_dword v249, v248, {srd(S_DBG)}, 0 offen sc1")
        P.raw("    s_waitcnt vmcnt(0)")
        P.I(f"v_readfirstlane_b32 s{sNONCE}, v249")
        P.I(f"s_cmp_lg_u32 s{sNONCE}, 0")
        P.I(f"s_cbranch_scc1 {ld}")
        P.I(f"s_add_u32 s{sCNT}, s{sCNT}, 1")
        P.I(f"s_cmp_lt_u32 s{sCNT}, 200000")
        P.I(f"s_cbranch_scc1 {lp}")
        P.label(ld)
        P.I(f"s_lshl_b32 s{sT1}, s{sRB}, 3")
        P.I(f"s_add_u32 s{sT1}, s{sT1}, s{sC}")
        P.I(f"s_lshl_b32 s{sT1}, s{sT1}, 2")
        P.I(f"s_add_u32 s{sT1}, s{sT1}, s{sW}")
        P.I(f"s_lshl_b32 s{sT1}, s{sT1}, 2")
        P.I(f"s_add_u32 s{sT1}, s{sT1}, {FLAGS4}")
        P.I(f"s_or_b32 s{sT2}, s{sNONCE}, s{sXCC}")
        P.I(f"v_mov_b32 v249, s{sT2}")
        P.I(f"s_mov_b64 exec, 1")
        P.I(f"buffer_store_dword v249, v248, {srd(S_WS)}, s{sT1} offen sc1")
        P.I(f"s_mov_b64 exec, -1")
        P.label("L_layer")
        P.fence_hazards(4)
        L.label("L_llayer")
        L.fence_hazards(2)
        L.vmq = [{'regs': set(), 'tag': ('W1', ks), 'definite': True} for ks in range(9) for _ in range(3)]
        P.vmq = []
        self.phase1('lpre')
        if self.touch: self.phase1('touch')
        self.bar()
        self.ts(1)
        self.phase1('body')
        self.finish_phase(1, 1, self.poll_rb, lambda: self.gemm_res(2, 'pre'))
        self.wait_units('W2', 15)
        self.bar()
        self.ts(3)
        self.gemm_res(2, 'body')
        self.finish_phase(2, 2, self.poll_pair, lambda: self.phase3('pre'), lpost=lambda: [self.ld_w3(u) for u in (6, 7, 8)])
        self.wait_units('W3', 1)
        self.bar()
        self.ts(5)
        self.phase3('body')
        self.finish_phase(3, 3, self.poll_pair, lambda: self.gemm_res(4, 'pre'))
        self.wait_units('W4', 37)
        self.bar()
        self.ts(7)
        self.gemm_res(4, 'body')
        self.finish_phase(4, 4, self.poll_rb_prev, lambda: self.phase1('pre'))
        self.set_layer1(P)
        P.I("s_branch L_layer")
        self.set_layer1(L)
        L.I("s_branch L_llayer")
        self.final_store()
        P.label("L_end")
        P.I("s_endpgm")
        L.label("L_lend")
        L.wait_vm_all()
        L.I("s_endpgm")

    def text(self):
        hdr = open('cdna_kernels/' + NAME + '.s.ref').read().split('\n')
        head = [l for l in hdr if l.startswith(';') and '@launch' not in l and 'Override' not in l and 'grid=ceil' not in l]
        s = "\n".join(head) + "\n"
        s += f"; @launch grid=(256,1,1) block=(512,1,1) lds={LDS_BYTES}\n"
        s += '.amdgcn_target "amdgcn-amd-amdhsa--gfx950"\n.text\n'
        s += f".globl {NAME}_kernel\n.p2align 8\n.type {NAME}_kernel,@function\n{NAME}_kernel:\n"
        s += self.P.text()
        s += "L_loader:\n    s_nop 1\n"
        s += self.L.text()
        s += f""".section .rodata,"a"
.p2align 6
.amdhsa_kernel {NAME}_kernel
  .amdhsa_next_free_vgpr 256
  .amdhsa_next_free_sgpr 102
  .amdhsa_accum_offset 256
  .amdhsa_group_segment_fixed_size 0
  .amdhsa_kernarg_size 80
  .amdhsa_user_sgpr_count 2
  .amdhsa_user_sgpr_kernarg_segment_ptr 1
  .amdhsa_system_sgpr_workgroup_id_x 1
.end_amdhsa_kernel
"""
        return s

if __name__ == "__main__":
    import argparse
    ap = argparse.ArgumentParser()
    ap.add_argument('-o', default='cdna_kernels/' + NAME + '.s')
    ap.add_argument('--profile', type=int, default=0)
    ap.add_argument('--drop', default='')
    ap.add_argument('--slow', action='store_true')
    ap.add_argument('--init24', type=int, default=0)
    ap.add_argument('--notouch', action='store_true')
    ap.add_argument('--codepf', type=int, default=0)
    ap.add_argument('--tplace', default='p3')
    ap.add_argument('--nopull', action='store_true')
    ap.add_argument('--earlytouch', action='store_true')
    ap.add_argument('--prefetch', action='store_true')
    ap.add_argument('--tlbwarm', type=int, default=0)
    ap.add_argument('--latew1', action='store_true')
    ap.add_argument('--init3', type=int, default=0)
    a = ap.parse_args()
    g = Gen(profile=a.profile, drop=a.drop.split(',') if a.drop else (), force_slow=a.slow)
    if a.notouch: g.touch = False
    g.codepf = a.codepf
    g.tplace = a.tplace
    if a.earlytouch:
        g.earlytouch = True; g.touch = False
    g.prefetch = a.prefetch
    g.tlbwarm = a.tlbwarm
    g.latew1 = a.latew1
    if a.init24: g.init24 = a.init24
    if a.init3: g.init3 = a.init3
    g.build()
    open(a.o, 'w').write(g.text())
    print("compute instrs:", g.P.ninstr, "nops:", g.P.nops, " loader instrs:", g.L.ninstr,
          " barriers:", sum(1 for l in g.P.out if 's_barrier' in l), sum(1 for l in g.L.out if 's_barrier' in l))
```
